```python
import torch

def _softmax(x, axis=-1):
    return torch.softmax(x, dim=axis)
def _gelu(x):
    return torch.nn.functional.gelu(x, approximate="tanh")
def _silu(x):
    return torch.nn.functional.silu(x)
def _sigmoid(x):
    return torch.sigmoid(x)
def _layernorm(x, axis=-1, eps=1e-5):
    m = x.mean(dim=axis, keepdim=True)
    v = x.var(dim=axis, keepdim=True, unbiased=False)
    return (x - m) / torch.sqrt(v + eps)
def _scatter_add(tgt, idx, src, axis=0):
    return tgt.clone().index_add_(axis, idx, src)
def _segment_sum(src, seg, n):
    out = torch.zeros((n,) + src.shape[1:], dtype=src.dtype)
    return out.index_add_(0, seg, src)
def _pad(x, pw):
    flat = tuple(v for pair in reversed(pw) for v in pair)
    return torch.nn.functional.pad(x, flat)

kernel_name = 'concat_heads__mha_block__grouped_kv_mqa__prompt'

def setup_inputs():

    _w = (lambda a: (lambda t: t.to(torch.bfloat16) if t.is_floating_point() else t)(torch.as_tensor(a)))
    def _A_setup():
        B, S, D, H = 1, 2048, 640, 32
        return {
            "x": _w((lambda *s: torch.randn(*s, dtype=torch.bfloat16) * 0.2)(B, S, D)),
            "wqkv": _w((lambda *s: torch.randn(*s, dtype=torch.bfloat16) * 0.2)(D, 3 * D)),
            "wo": _w((lambda *s: torch.randn(*s, dtype=torch.bfloat16) * 0.05)(D, D)),
        }
    _A_in = _A_setup()

    def _B_setup():
        B, S, D, H = 1, 2048, 640, 32
        Dh = D // H
        return {
            "x": _w((lambda *s: torch.randn(*s, dtype=torch.bfloat16) * 0.05)(B, S, D)),
            "wq": _w((lambda *s: torch.randn(*s, dtype=torch.bfloat16) * 0.8)(D, H * Dh)),
            "wk": _w((lambda *s: torch.randn(*s, dtype=torch.bfloat16) * 0.8)(D, Dh)),
            "wv": _w((lambda *s: torch.randn(*s, dtype=torch.bfloat16) * 0.1)(D, Dh)),
            "wo": _w((lambda *s: torch.randn(*s, dtype=torch.bfloat16) * 0.1)(H * Dh, D)),
        }
    _B_in = _B_setup()

    return {
        "A_x": _A_in["x"],
        "A_wqkv": _A_in["wqkv"],
        "A_wo": _A_in["wo"],
        "B_x": _B_in["x"],
        "B_wq": _B_in["wq"],
        "B_wk": _B_in["wk"],
        "B_wv": _B_in["wv"],
        "B_wo": _B_in["wo"],
    }

def reference(A_x, A_wqkv, A_wo, B_x, B_wq, B_wk, B_wv, B_wo):
    def _A_ref(x, wqkv, wo):
        B, S, D = x.shape
        H = 32
        Dh = D // H
        qkv = (lambda x, *d: x.permute(*d))((x @ wqkv).reshape(B, S, 3, H, Dh), 2, 0, 3, 1, 4)
        q, k, v = qkv[0], qkv[1], qkv[2]
        scores = torch.einsum("bhqd,bhkd->bhqk", q, k) * (Dh ** -0.5)
        p = _softmax(scores, axis=-1)
        o = torch.einsum("bhqk,bhkd->bhqd", p, v)
        return (lambda x, *d: x.permute(*d))(o, 0, 2, 1, 3).reshape(B, S, D) @ wo

    def _B_ref(x, wq, wk, wv, wo):
        B, S, D = x.shape
        H = 32
        Dh = D // H
        q = (lambda x, *d: x.permute(*d))((x @ wq).reshape(B, S, H, Dh), 0, 2, 1, 3)
        k = x @ wk
        v = x @ wv
        scores = torch.einsum("bhqd,bkd->bhqk", q, k) * (Dh ** -0.5)
        p = _softmax(scores, axis=-1)
        o = torch.einsum("bhqk,bkd->bhqd", p, v)
        return (lambda x, *d: x.permute(*d))(o, 0, 2, 1, 3).reshape(B, S, H * Dh) @ wo

    a = _A_ref(A_x, A_wqkv, A_wo)
    b = _B_ref(B_x, B_wq, B_wk, B_wv, B_wo)
    return torch.concatenate([a, b], axis=-1)
```

```python
from common import *

def gen_attn(a, name="attn_kernel", force_fallback=False, stamp=False):
    R = RegAlloc(1)
    vL = R.alloc("lane")
    vK = R.alloc("addrK")
    vV = R.alloc("addrV")
    vKey = R.alloc("key16")
    vIdx = R.alloc("idx")
    vD = R.alloc("dma")
    vT = [R.alloc(f"t{i}") for i in range(6)]
    vM = [R.alloc("Ma"), R.alloc("Mb")]
    vOst = R.alloc("ost"); vOst2 = R.alloc("ost2")
    Q0 = [R.alloc(f"Q0{s}", 4, 4) for s in range(2)]
    Q1 = [[R.alloc(f"Q1{s}{v}", 2, 2) for v in range(2)] for s in range(2)]
    K0 = [R.alloc(f"K0{i}", 4, 4) for i in range(2)]
    K1 = [R.alloc(f"K1{i}", 2, 2) for i in range(2)]
    KT0 = R.alloc("KT0", 4, 4); KT1 = R.alloc("KT1", 2, 2)
    V = [[R.alloc(f"V{i}{j}", 4, 4) for j in range(2)] for i in range(2)]
    NM = [R.alloc(f"NM{s}", 16, 4) for s in range(2)]
    S = [[R.alloc(f"S{s}{p}", 16, 4) for p in range(2)] for s in range(2)]
    O = [R.alloc(f"O{s}", 16, 4) for s in range(2)]
    nv = R.n
    sW, sHead, sBr, sQb, sG, sT0, sOff, sPass = 20, 21, 22, 23, 24, 25, 26, 27
    sVM = 28
    sB1, sB2, sN, sT1, sT2 = 32, 33, 34, 35, 36

    kernel_header(a, name)
    a(f"""
    s_cmp_ge_u32 s2, 256
    s_cbranch_scc1 L_{name}_end
    s_load_dwordx2 s[4:5], s[0:1], 80
    {"s_memtime s[40:41]" if stamp else ""}
    {"s_memrealtime s[42:43]" if stamp else ""}
    v_lshrrev_b32 v{vT[0]}, 6, v0
    v_and_b32 v{vL}, 63, v0
    s_and_b32 s{sT0}, s2, 7
    v_readfirstlane_b32 s{sW}, v{vT[0]}
    s_lshr_b32 s{sT1}, s2, 3
    s_lshr_b32 s{sBr}, s{sT1}, 4
    s_and_b32 s{sT1}, s{sT1}, 15
    s_and_b32 s{sQb}, s{sT1}, 3
    s_lshr_b32 s{sT1}, s{sT1}, 2
    s_lshl_b32 s{sHead}, s{sT0}, 2
    s_add_u32 s{sHead}, s{sHead}, s{sT1}
    v_lshlrev_b32 v{vK}, 4, v{vL}
    v_lshlrev_b32 v{vD}, 4, v{vL}
    v_and_b32 v{vT[1]}, 31, v{vL}
    v_lshlrev_b32 v{vKey}, 4, v{vT[1]}
    v_lshrrev_b32 v{vT[2]}, 5, v{vL}
    """)
    a.c("kv set offset, q offset")
    a(f"""
    s_cmp_eq_u32 s{sBr}, 0
    s_cselect_b32 s{sT0}, s{sHead}, 32
    s_mul_i32 s{sT0}, s{sT0}, {KV_SET}
    s_add_u32 s{sT0}, s{sT0}, {KV_OFF}
    s_lshl_b32 s{sT1}, s{sBr}, 5
    s_add_u32 s{sT1}, s{sT1}, s{sHead}
    s_mul_i32 s{sT1}, s{sT1}, {Q_HEAD}
    s_lshl_b32 s{sT2}, s{sQb}, 2
    s_lshr_b32 s{sN}, s{sW}, 1
    s_add_u32 s{sT2}, s{sT2}, s{sN}
    s_mul_i32 s{sT2}, s{sT2}, 5120
    s_add_u32 s{sT1}, s{sT1}, s{sT2}
    s_waitcnt lgkmcnt(0)
    s_add_u32 s8, s4, s{sT0}
    s_addc_u32 s9, s5, 0
    s_mov_b32 s10, {KV_SET}
    s_mov_b32 s11, 0x00020000
    s_add_u32 s12, s4, s{sT1}
    s_addc_u32 s13, s5, 0
    s_mov_b32 s14, 5120
    s_mov_b32 s15, 0x00020000
    """)
    a.c("Q loads : p = w&1")
    a(f"""
    s_and_b32 s{sN}, s{sW}, 1
    s_lshl_b32 s{sT0}, s{sN}, 11
    s_lshl_b32 s{sT1}, s{sN}, 3
    s_add_u32 s{sT1}, s{sT1}, 4096
    buffer_load_dwordx4 {vr(Q0[0],4)}, v{vK}, s[12:15], s{sT0} offen
    buffer_load_dwordx4 {vr(Q0[1],4)}, v{vK}, s[12:15], s{sT0} offen offset:1024
    buffer_load_dwordx2 {vr(Q1[0][0],2)}, v{vKey}, s[12:15], s{sT1} offen
    buffer_load_dwordx2 {vr(Q1[1][0],2)}, v{vKey}, s[12:15], s{sT1} offen offset:512
    """)
    a.c("K/V DMA : instr i = 8k + w")
    a(f"s_lshl_b32 s{sOff}, s{sW}, 10")
    for k in range(4):
        a(f"""
        s_mov_b32 m0, s{sOff}
        s_nop 0
        buffer_load_dwordx4 v{vD}, s[8:11], s{sOff} offen lds
        s_add_u32 s{sOff}, s{sOff}, 8192
        """)
    a.c("O srd + store offsets")
    a(f"""
    s_mul_i32 s{sT0}, s{sBr}, {O_BR}
    s_add_u32 s{sT0}, s{sT0}, {O_OFF}
    s_add_u32 s16, s4, s{sT0}
    s_addc_u32 s17, s5, 0
    s_mov_b32 s18, {O_BR}
    s_mov_b32 s19, 0x00020000
    s_lshl_b32 s{sT0}, s{sQb}, 13
    s_lshl_b32 s{sT1}, s{sW}, 10
    s_add_u32 s{sT0}, s{sT0}, s{sT1}
    s_lshl_b32 s{sT1}, s{sHead}, 16
    s_add_u32 s{sT1}, s{sT1}, s{sT0}
    v_lshlrev_b32 v{vOst}, 15, v{vT[2]}
    v_add3_u32 v{vOst}, v{vOst}, v{vKey}, s{sT1}
    s_lshr_b32 s{sT1}, s{sHead}, 1
    s_add_u32 s{sT1}, s{sT1}, 64
    s_lshl_b32 s{sT1}, s{sT1}, 15
    s_add_u32 s{sT1}, s{sT1}, s{sT0}
    s_and_b32 s{sT2}, s{sHead}, 1
    s_lshl_b32 s{sT2}, s{sT2}, 3
    s_add_u32 s{sT1}, s{sT1}, s{sT2}
    v_add_u32 v{vOst2}, s{sT1}, v{vKey}
    s_mov_b32 s{sVM}, 0x000fffff
    s_mov_b32 s{sVM+1}, 0x000fffff
    v_mov_b32 v{vIdx}, 0xdddddddd
    s_mov_b32 s{sPass}, 0
    s_mov_b32 s{sB1}, 6
    s_mov_b32 s{sN}, 1
    """)
    a.c("V buffers: ones in rows 24, 28; zero elsewhere")
    a(f"""
    v_and_b32 v{vT[3]}, 27, v{vL}
    v_cmp_eq_u32 vcc, 24, v{vT[3]}
    v_mov_b32 v{vT[4]}, 0x3f803f80
    v_mov_b32 v{vT[5]}, 0
    v_cndmask_b32 v{vT[4]}, v{vT[5]}, v{vT[4]}, vcc
    """)
    for i in range(2):
        for j in range(2):
            for r in range(4):
                a(f"v_mov_b32 v{V[i][j]+r}, v{vT[4]}")
    a.c("Q1 variants")
    a(f"""
    v_cmp_gt_u32 vcc, 32, v{vL}
    s_nop 0
    s_waitcnt vmcnt(4)
    """)
    for s in range(2):
        for r in range(2):
            a(f"v_cndmask_b32 v{Q1[s][1]+r}, v{Q1[s][0]+r}, v{vT[5]}, vcc")
        for r in range(2):
            a(f"v_cndmask_b32 v{Q1[s][0]+r}, v{vT[5]}, v{Q1[s][0]+r}, vcc")
    a(f"""
    s_waitcnt vmcnt(3)
    s_barrier
    """)
    a.label(f"L_{name}_pass")
    a.c("(re)start: addresses, preamble loads")
    a(f"""
    v_lshlrev_b32 v{vK}, 4, v{vL}
    v_lshrrev_b32 v{vT[2]}, 5, v{vL}
    v_mul_u32_u24 v{vV}, 320, v{vT[2]}
    v_add_u32 v{vV}, v{vV}, v{vKey}
    v_mov_b32 v{vM[0]}, 0xff800000
    v_mov_b32 v{vM[1]}, 0xff800000
    s_mov_b32 s{sG}, 0
    """)
    a.label(f"L_{name}_max")
    a(f"""
    s_lshr_b32 s{sT0}, s{sG}, 2
    s_mul_i32 s{sT0}, s{sT0}, 10240
    s_and_b32 s{sT1}, s{sG}, 3
    s_lshl_b32 s{sT1}, s{sT1}, 10
    s_add_u32 s{sT1}, s{sT1}, s{sT0}
    v_add_u32 v{vT[0]}, s{sT1}, v{vK}
    s_and_b32 s{sT1}, s{sG}, 1
    s_lshl_b32 s{sT1}, s{sT1}, 9
    s_add_u32 s{sT0}, s{sT0}, s{sT1}
    s_and_b32 s{sT1}, s{sG}, 2
    s_lshl_b32 s{sT1}, s{sT1}, 2
    s_add_u32 s{sT0}, s{sT0}, s{sT1}
    v_add_u32 v{vT[1]}, s{sT0}, v{vKey}
    ds_read_b128 {vr(KT0,4)}, v{vT[0]}
    ds_read_b64 {vr(KT1,2)}, v{vT[1]} offset:4096
    s_waitcnt lgkmcnt(0)
    v_mfma_f32_32x32x16_bf16 {vr(S[0][1],16)}, {vr(KT0,4)}, {vr(Q0[0],4)}, 0
    v_mfma_f32_32x32x16_bf16 {vr(S[1][1],16)}, {vr(KT0,4)}, {vr(Q0[1],4)}, 0
    v_mfma_f32_32x32x8_bf16 {vr(S[0][1],16)}, {vr(KT1,2)}, {vr(Q1[0][0],2)}, {vr(S[0][1],16)}
    v_mfma_f32_32x32x8_bf16 {vr(S[1][1],16)}, {vr(KT1,2)}, {vr(Q1[1][0],2)}, {vr(S[1][1],16)}
    s_add_u32 s{sG}, s{sG}, 1
    s_nop 10
    """)
    for s in range(2):
        for r in range(0, 16, 2):
            a(f"v_max3_f32 v{vM[s]}, v{S[s][1]+r}, v{S[s][1]+r+1}, v{vM[s]}")
    a(f"""
    s_cmp_lt_u32 s{sG}, s{sN}
    s_cbranch_scc1 L_{name}_max
    ds_read_b128 {vr(K0[0],4)}, v{vK}
    ds_read_b64 {vr(K1[0],2)}, v{vK} offset:4096
    ds_read_b128 {vr(K0[1],4)}, v{vK} offset:1024
    ds_read_b64 {vr(K1[1],2)}, v{vK} offset:4104
    s_mov_b64 exec, s[{sVM}:{sVM+1}]
    ds_read_b128 {vr(V[0][0],4)}, v{vV} offset:5120
    ds_read_b128 {vr(V[0][1],4)}, v{vV} offset:5760
    s_mov_b64 exec, -1
    v_mov_b32 v{vT[0]}, v{vM[0]}
    v_mov_b32 v{vT[1]}, v{vM[1]}
    s_nop 1
    v_permlane32_swap_b32 v{vT[0]}, v{vM[0]}
    v_permlane32_swap_b32 v{vT[1]}, v{vM[1]}
    s_nop 1
    v_max_f32 v{vM[0]}, v{vM[0]}, v{vT[0]}
    v_max_f32 v{vM[1]}, v{vM[1]}, v{vT[1]}
    """)
    for s in range(2):
        for r in range(16):
            a(f"v_sub_f32 v{NM[s]+r}, 0, v{vM[s]}")
    a(f"""
    s_waitcnt lgkmcnt(0)
    v_mfma_f32_32x32x16_bf16 {vr(S[0][0],16)}, {vr(K0[0],4)}, {vr(Q0[0],4)}, {vr(NM[0],16)}
    v_mfma_f32_32x32x8_bf16 {vr(S[0][0],16)}, {vr(K1[0],2)}, {vr(Q1[0][0],2)}, {vr(S[0][0],16)}
    v_mfma_f32_32x32x16_bf16 {vr(S[1][0],16)}, {vr(K0[0],4)}, {vr(Q0[1],4)}, {vr(NM[1],16)}
    v_mfma_f32_32x32x8_bf16 {vr(S[1][0],16)}, {vr(K1[0],2)}, {vr(Q1[1][0],2)}, {vr(S[1][0],16)}
    """)
    for s in range(2):
        for r in range(16):
            a(f"v_mov_b32 v{O[s]+r}, 0")
    for r in range(8, 16):
        a(f"v_mov_b32 v{S[1][1]+r}, 0")
    a.c("V1 of buffer 1 must be finite for the dummy PV2(-1,b)")
    a(f"""
    s_mov_b64 exec, s[{sVM}:{sVM+1}]
    v_mov_b32 v{V[1][1]}, 0
    v_mov_b32 v{V[1][1]+1}, 0
    v_mov_b32 v{V[1][1]+2}, 0
    v_mov_b32 v{V[1][1]+3}, 0
    s_mov_b64 exec, -1
    s_mov_b32 s{sG}, 0
    s_cmp_lg_u32 s{sPass}, 0
    s_cbranch_scc1 L_{name}_loop
    s_waitcnt vmcnt(1)
    s_barrier
    """)
    if stamp:
        a("s_memtime s[44:45]\ns_waitcnt lgkmcnt(0)")

    def qk1(s, T):
        p = T % 2
        return f"v_mfma_f32_32x32x16_bf16 {vr(S[s][p],16)}, {vr(K0[p],4)}, {vr(Q0[s],4)}, {vr(NM[s],16)}"
    def qk2(s, T):
        p = T % 2
        return f"v_mfma_f32_32x32x8_bf16 {vr(S[s][p],16)}, {vr(K1[(T//2)%2],2)}, {vr(Q1[s][p],2)}, {vr(S[s][p],16)}"
    def pv(s, T, h):
        p = T % 2
        return f"v_smfmac_f32_32x32x32_bf16 {vr(O[s],16)}, {vr(V[p][h],4)}, {vr(S[s][p]+8*h,8)}, v{vIdx}"
    def k0off(T): return (T // 4) * 10240 + (T % 4) * 1024
    def voff(T): return (T // 4) * 10240 + 5120 + (T % 4) * 1280

    def body(dma, bound):
        for tt in range(4):
            T = tt + 4
            for s in range(2):
                X = S[s][T % 2]
                e = lambda i: a(f"v_exp_f32 v{X+i}, v{X+i}")
                e(0); e(1)
                if s == 0:
                    a(pv(1, T - 1, 1))
                    a(f"s_mov_b64 exec, s[{sVM}:{sVM+1}]")
                    a(f"ds_read_b128 {vr(V[(T+1)%2][0],4)}, v{vV} offset:{voff(T+1)-10240}")
                    a(f"ds_read_b128 {vr(V[(T+1)%2][1],4)}, v{vV} offset:{voff(T+1)-10240+640}")
                    a("s_mov_b64 exec, -1")
                else:
                    a(pv(0, T, 1))
                    if dma:
                        a(f"s_mov_b32 m0, s{sOff}")
                    if tt == 3:
                        a(f"s_add_u32 s{sG}, s{sG}, 1")
                e(2); e(3); e(4); e(5)
                a(qk1(s, T + 1))
                if s == 0:
                    a(f"ds_read_b128 {vr(K0[T%2],4)}, v{vK} offset:{k0off(T+2)-10240}")
                elif dma:
                    a(f"buffer_load_dwordx4 v{vD}, s[8:11], s{sOff} offen lds")
                e(6); e(7); e(8); e(9)
                a(pv(s, T, 0))
                if s == 0:
                    if tt == 1:
                        a(f"ds_read_b64 {vr(K1[0],2)}, v{vK} offset:{10240+4096}")
                    if tt == 3:
                        a(f"ds_read_b64 {vr(K1[1],2)}, v{vK} offset:{10240+4096+8}")
                    if dma and tt > 0:
                        a(f"s_add_u32 s{sOff}, s{sOff}, 8192")
                else:
                    a("s_waitcnt lgkmcnt(0)")
                    if tt == 3:
                        a(f"s_cmp_lt_u32 s{sG}, {bound}")
                e(10); e(11); e(12); e(13)
                a(qk2(s, T + 1))
                if tt == 3 and s == 1:
                    a(f"v_add_u32 v{vK}, 10240, v{vK}")
                    a(f"v_add_u32 v{vV}, 10240, v{vV}")
                e(14); e(15)

    a.raw(".p2align 6")
    a.label(f"L_{name}_loopA")
    body(True, "4")
    a(f"""
    s_waitcnt vmcnt(4)
    s_barrier
    s_cbranch_scc0 L_{name}_loop
    s_add_u32 s{sOff}, s{sOff}, 8192
    s_branch L_{name}_loopA
    """)
    a.raw(".p2align 6")
    a.label(f"L_{name}_loop")
    body(False, f"s{sB1}")
    a(f"""
    s_cbranch_scc1 L_{name}_loop
    s_cmp_lt_u32 s{sG}, 16
    s_cbranch_scc1 L_{name}_w1
    s_nop 0
    {pv(1, 7, 1)}
    s_nop 15
    """)
    if stamp:
        a("s_memtime s[46:47]\ns_waitcnt lgkmcnt(0)")
    a.c("check")
    a(f"v_mov_b32 v{vT[0]}, v{O[0]+12}")
    a(f"v_mov_b32 v{vT[1]}, v{O[1]+12}")
    for r in range(12):
        for s in range(2):
            a(f"v_fma_f32 v{vT[s]}, v{O[s]+r}, 0, v{vT[s]}")
    lo, hi = 0x2b800000, 0x5d800000
    if force_fallback:
        lo = 0x7f000000
    a(f"""
    v_rcp_f32 v{vT[2]}, v{O[0]+12}
    v_rcp_f32 v{vT[3]}, v{O[1]+12}
    v_cmp_le_f32 vcc, 0x{lo:x}, v{vT[0]}
    s_mov_b64 s[30:31], vcc
    v_cmp_le_f32 vcc, 0x{lo:x}, v{vT[1]}
    s_and_b64 s[30:31], s[30:31], vcc
    v_cmp_ge_f32 vcc, 0x{hi:x}, v{vT[0]}
    s_and_b64 s[30:31], s[30:31], vcc
    v_cmp_ge_f32 vcc, 0x{hi:x}, v{vT[1]}
    s_and_b64 s[30:31], s[30:31], vcc
    s_cmp_lg_u32 s{sPass}, 0
    s_cbranch_scc1 L_{name}_store
    s_cmp_eq_u64 s[30:31], -1
    s_cbranch_scc1 L_{name}_store
    s_mov_b32 s{sPass}, 1
    s_mov_b32 s{sB1}, 16
    s_mov_b32 s{sN}, 64
    s_branch L_{name}_pass
    """)
    a.label(f"L_{name}_store")
    for s in range(2):
        for r in range(12):
            a(f"v_mul_f32 v{O[s]+r}, v{O[s]+r}, v{vT[2+s]}")
        for r in range(6):
            a(f"v_cvt_pk_bf16_f32 v{S[s][0]+r}, v{O[s]+2*r}, v{O[s]+2*r+1}")
        a(f"buffer_store_dwordx4 {vr(S[s][0],4)}, v{vOst}, s[16:19], 0 offen offset:{512*s}")
    a("s_mov_b32 exec_hi, 0")
    for s in range(2):
        a(f"buffer_store_dwordx2 {vr(S[s][0]+4,2)}, v{vOst2}, s[16:19], 0 offen offset:{512*s}")
    if stamp:
        a(f"""
        s_waitcnt vmcnt(0)
        s_memtime s[48:49]
        s_memrealtime s[50:51]
        s_waitcnt lgkmcnt(0)
        s_sub_u32 s44, s44, s40
        s_sub_u32 s46, s46, s40
        s_sub_u32 s48, s48, s40
        s_sub_u32 s50, s50, s42
        v_mov_b32 v8, s44
        v_mov_b32 v9, s46
        v_mov_b32 v10, s48
        v_mov_b32 v11, s50
        v_mov_b32 v12, s42
        v_mov_b32 v13, s43
        v_mov_b32 v14, 0
        v_mov_b32 v15, 0
        s_lshl_b32 s52, s2, 3
        s_add_u32 s52, s52, s{sW}
        s_lshl_b32 s52, s52, 5
        s_add_u32 s52, s52, {WS_USED}
        v_mov_b32 v7, s52
        s_mov_b32 exec_lo, 1
        global_store_dwordx4 v7, v[8:11], s[4:5]
        global_store_dwordx4 v7, v[12:15], s[4:5] offset:16
        """)
    a.label(f"L_{name}_end")
    a("s_endpgm")
    a.label(f"L_{name}_w1")
    a(f"""
    s_waitcnt vmcnt(0)
    s_barrier
    s_mov_b32 s{sB1}, 16
    s_branch L_{name}_loop
    """)
    kernel_desc(a, name, nv, 64)
    return nv

if __name__ == "__main__":
    import sys
    a = Asm()
    a.raw('.amdgcn_target "amdgcn-amd-amdhsa--gfx950"')
    nv = gen_attn(a)
    nv = gen_attn(a, "attnfb_kernel", force_fallback=True)
    nv = gen_attn(a, "attnst_kernel", stamp=True)
    open("attn.s", "w").write(a.text())
    print("vgprs", nv)
```

```python
class Asm:
    def __init__(self):
        self.lines = []
        self.uid = 0
    def __call__(self, s):
        for l in s.strip("\n").split("\n"):
            if not l.strip(): continue
            self.lines.append("    " + l.strip() if not l.strip().endswith(":") else l.strip())
    def label(self, name):
        self.lines.append(name + ":")
    def c(self, s):
        self.lines.append("    ; " + s)
    def raw(self, s):
        self.lines.append(s)
    def text(self):
        return "\n".join(self.lines) + "\n"

def vr(b, n=1):
    return f"v{b}" if n == 1 else f"v[{b}:{b+n-1}]"
def sr(b, n=1):
    return f"s{b}" if n == 1 else f"s[{b}:{b+n-1}]"

class RegAlloc:
    def __init__(self, start=0):
        self.n = start
        self.names = {}
    def alloc(self, name, n=1, align=1):
        self.n = (self.n + align - 1) // align * align
        b = self.n
        self.n += n
        self.names[name] = (b, n)
        return b

Q_OFF = 0
Q_HEAD = 81920
Q_SIZE = 64 * Q_HEAD
KV_OFF = Q_OFF + Q_SIZE
KV_SET = 163840
KV_SIZE = 33 * KV_SET
O_OFF = KV_OFF + KV_SIZE
O_BR = 80 * 32768
O_SIZE = 2 * O_BR
WS_USED = O_OFF + O_SIZE

def kernel_header(a, name):
    a.raw(".text")
    a.raw(f".globl {name}")
    a.raw(".p2align 8")
    a.raw(f".type {name},@function")
    a.label(name)

def kernel_desc(a, name, vgpr, sgpr=102, accum=None):
    if accum is None:
        accum = (vgpr + 3) // 4 * 4
    a.raw('.section .rodata,"a"')
    a.raw(".p2align 6")
    a.raw(f".amdhsa_kernel {name}")
    a.raw(f"  .amdhsa_next_free_vgpr {vgpr}")
    a.raw(f"  .amdhsa_next_free_sgpr {sgpr}")
    a.raw(f"  .amdhsa_accum_offset {accum}")
    a.raw("  .amdhsa_group_segment_fixed_size 0")
    a.raw("  .amdhsa_kernarg_size 88")
    a.raw("  .amdhsa_user_sgpr_count 2")
    a.raw("  .amdhsa_user_sgpr_kernarg_segment_ptr 1")
    a.raw("  .amdhsa_system_sgpr_workgroup_id_x 1")
    a.raw(".end_amdhsa_kernel")
```

```python
from common import *

QSCALE = 0x3ea52b5f
import struct
def f32bits(x): return struct.unpack("<I", struct.pack("<f", x))[0]
QSCALE = f32bits((20 ** -0.5) * 1.4426950408889634)

def interleave(a, mf, rd):
    rd = list(rd)
    n = len(mf)
    for i, m in enumerate(mf):
        a(m)
        k = 1
        if len(rd) > (n - i - 3): k = 2
        for _ in range(k):
            if rd: a(rd.pop(0))
    for r in rd: a(r)

def div10(a, vq, vr_, vn, tmp_s):
    a(f"v_mul_u32_u24 v{vq}, 6554, v{vn}")
    a(f"v_lshrrev_b32 v{vq}, 16, v{vq}")
    a(f"v_mul_u32_u24 v{vr_}, 10, v{vq}")
    a(f"v_sub_u32 v{vr_}, v{vn}, v{vr_}")

def gen_proj(a, name="proj_kernel"):
    ST = 39424; NST = 4; WOFF = 16384; EOFF = 36864
    R = RegAlloc(1)
    vL = R.alloc("lane")
    T = [R.alloc(f"t{i}") for i in range(8)]
    bX = [R.alloc(f"bX{k}") for k in range(2)]; bW = R.alloc("bW"); bE = R.alloc("bE"); bXe = [R.alloc(f"bXe{k}") for k in range(2)]
    aX = [R.alloc(f"aX{k}") for k in range(2)]; aW = R.alloc("aW"); aE = R.alloc("aE"); aXe = [R.alloc(f"aXe{k}") for k in range(2)]
    A0 = [R.alloc(f"A0{i}") for i in range(5)]; A1 = [R.alloc(f"A1{i}") for i in range(5)]
    AE = [R.alloc(f"AE{i}") for i in range(2)]
    FX = [[R.alloc(f"FX{b}{i}", 4, 4) for i in range(4)] for b in range(2)]
    FW = [[R.alloc(f"FW{b}{i}", 4, 4) for i in range(5)] for b in range(2)]
    FXe = [R.alloc(f"FXe{b}", 4, 4) for b in range(2)]
    FE = [[R.alloc(f"FE{b}{i}", 4, 4) for i in range(2)] for b in range(2)]
    ACC = [[R.alloc(f"C{m}{n}", 4, 4) for n in range(5)] for m in range(4)]
    ACE = [R.alloc(f"CE{n}", 4, 4) for n in range(2)]
    nv = R.n
    LX = [FX[0][0] + i for i in range(4)]; LW = [FX[0][1] + i for i in range(5)]; LE = FX[0][3]
    sW, sMt, sGrp, sJ4, sT0, sT1, sT2, sLd, sC, sSt, sHS, sScale = 20, 21, 22, 23, 24, 25, 26, 27, 28, 29, 30, 31
    sOx, sOw, sOe, sM, sLd64 = 32, 33, 34, 35, 36
    sWm, sWn = 37, 38
    kernel_header(a, name)
    a(f"""
    s_cmp_ge_u32 s2, 256
    s_cbranch_scc1 L_{name}_end
    s_load_dwordx4 s[40:43], s[0:1], 0
    s_load_dwordx8 s[44:51], s[0:1], 24
    s_load_dwordx2 s[4:5], s[0:1], 80
    v_lshrrev_b32 v{T[0]}, 6, v0
    v_and_b32 v{vL}, 63, v0
    s_and_b32 s{sT0}, s2, 7
    v_readfirstlane_b32 s{sW}, v{T[0]}
    s_lshr_b32 s{sT1}, s2, 3
    s_lshr_b32 s{sGrp}, s{sT0}, 1
    s_and_b32 s{sMt}, s{sT0}, 1
    s_lshl_b32 s{sMt}, s{sMt}, 3
    s_and_b32 s{sT2}, s{sT1}, 7
    s_add_u32 s{sMt}, s{sMt}, s{sT2}
    s_lshr_b32 s{sJ4}, s{sT1}, 3
    s_cmp_ge_u32 s{sW}, 4
    s_cbranch_scc0 L_{name}_comp
    """)
    a.c("loader waves")
    a(f"""
    s_sub_u32 s{sW}, s{sW}, 4
    s_cmp_eq_u32 s{sGrp}, 3
    s_mov_b32 s{sLd}, 3840
    s_cmov_b32 s{sLd}, 1280
    """)
    a(f"""
    v_lshrrev_b32 v{T[0]}, 3, v{vL}
    s_lshl_b32 s{sT0}, s{sW}, 5
    v_add_u32 v{T[0]}, s{sT0}, v{T[0]}
    v_mul_u32_u24 v{T[0]}, 1280, v{T[0]}
    v_and_b32 v{T[1]}, 7, v{vL}
    v_lshrrev_b32 v{T[2]}, 4, v{vL}
    v_xor_b32 v{T[1]}, v{T[1]}, v{T[2]}
    v_xor_b32 v{T[2]}, 4, v{T[1]}
    v_lshl_add_u32 v{LX[0]}, v{T[1]}, 4, v{T[0]}
    v_lshl_add_u32 v{LX[1]}, v{T[2]}, 4, v{T[0]}
    v_add_u32 v{LX[1]}, 10240, v{LX[1]}
    v_add_u32 v{LX[2]}, 20480, v{LX[0]}
    v_add_u32 v{LX[3]}, 20480, v{LX[1]}
    """)
    for q in range(5):
        a(f"""
        s_mul_i32 s{sT0}, s{sW}, 320
        s_add_u32 s{sT0}, s{sT0}, {q*64}
        v_add_u32 v{T[0]}, s{sT0}, v{vL}
        """)
        div10(a, T[1], T[2], T[0], sT0)
        a(f"""
        v_lshrrev_b32 v{T[3]}, 6, v{T[1]}
        v_mul_u32_u24 v{T[3]}, 160, v{T[3]}
        v_lshl_add_u32 v{T[3]}, v{T[2]}, 4, v{T[3]}
        v_and_b32 v{T[4]}, 35, v{T[1]}
        v_and_b32 v{T[5]}, 12, v{T[1]}
        v_lshl_add_u32 v{T[4]}, v{T[5]}, 1, v{T[4]}
        v_and_b32 v{T[5]}, 16, v{T[1]}
        v_lshrrev_b32 v{T[5]}, 2, v{T[5]}
        v_add_u32 v{T[4]}, v{T[4]}, v{T[5]}
        v_mul_lo_u32 v{T[4]}, v{T[4]}, s{sLd}
        v_add_u32 v{LW[q]}, v{T[4]}, v{T[3]}
        """)
    a(f"""
    s_mul_i32 s{sT0}, s{sW}, 640
    v_lshlrev_b32 v{LE}, 4, v{vL}
    v_add_u32 v{LE}, s{sT0}, v{LE}
    s_waitcnt lgkmcnt(0)
    s_cmp_eq_u32 s{sGrp}, 3
    s_cselect_b32 s8, s44, s40
    s_cselect_b32 s9, s45, s41
    s_cselect_b32 s12, s46, s42
    s_cselect_b32 s13, s47, s43
    s_cselect_b32 s{sT1}, 0, s{sGrp}
    s_mov_b32 s14, {640*3840}
    s_cmov_b32 s14, {640*1280}
    s_mul_i32 s{sT0}, s{sMt}, 163840
    s_add_u32 s8, s8, s{sT0}
    s_addc_u32 s9, s9, 0
    s_mov_b32 s10, 163840
    s_mov_b32 s11, 0x00020000
    s_mul_i32 s{sT1}, s{sT1}, 1280
    s_mul_i32 s{sT0}, s{sJ4}, 320
    s_add_u32 s{sT0}, s{sT0}, s{sT1}
    s_add_u32 s12, s12, s{sT0}
    s_addc_u32 s13, s13, 0
    s_sub_u32 s14, s14, s{sT0}
    s_mov_b32 s15, 0x00020000
    s_cmp_lt_u32 s{sJ4}, 2
    s_cselect_b32 s16, s48, s50
    s_cselect_b32 s17, s49, s51
    s_mov_b32 s18, 25600
    s_mov_b32 s19, 0x00020000
    s_lshl_b32 s{sLd64}, s{sLd}, 6
    s_mov_b32 s{sOx}, 0
    s_mov_b32 s{sOw}, 0
    s_mov_b32 s{sOe}, 0
    s_lshl_b32 s{sT0}, s{sW}, 12
    s_mul_i32 s{sT1}, s{sW}, 5120
    s_add_u32 s{sT1}, s{sT1}, {WOFF}
    s_mul_i32 s{sT2}, s{sW}, 640
    s_add_u32 s{sT2}, s{sT2}, {EOFF}
    s_cmp_eq_u32 s{sGrp}, 3
    s_cbranch_scc1 L_{name}_ldB
    """)
    def issue(c, ext):
        st = (c % NST) * ST
        for q in range(4):
            a(f"s_add_u32 m0, s{sT0}, {st + q*1024}")
            a("s_nop 0")
            a(f"buffer_load_dwordx4 v{LX[q]}, s[8:11], s{sOx} offen lds")
        for q in range(5):
            a(f"s_add_u32 m0, s{sT1}, {st + q*1024}")
            a("s_nop 0")
            a(f"buffer_load_dwordx4 v{LW[q]}, s[12:15], s{sOw} offen lds")
        if ext:
            a(f"s_add_u32 m0, s{sT2}, {st}")
            a("s_mov_b32 exec_hi, 0xff")
            a(f"buffer_load_dwordx4 v{LE}, s[16:19], s{sOe} offen lds")
            a("s_mov_b32 exec_hi, -1")
            a(f"s_add_u32 s{sOe}, s{sOe}, 2560")
        a(f"s_add_u32 s{sOx}, s{sOx}, 128")
        a(f"s_add_u32 s{sOw}, s{sOw}, s{sLd64}")
    for ext in (False, True):
        if ext: a.label(f"L_{name}_ldB")
        n = 10 if ext else 9
        for c in range(NST): issue(c, ext)
        for c in range(10):
            issued = min(10, max(NST, c + NST - 1 + 0)) if c > 0 else NST
            issued = min(10, NST if c == 0 else c + NST - 1)
            a(f"s_waitcnt vmcnt({(issued - c - 1) * n})")
            a("s_barrier")
            if c >= 1 and c + NST - 1 < 10:
                issue(c + NST - 1, ext)
        a("s_endpgm")

    a.label(f"L_{name}_comp")
    a(f"""
    s_lshr_b32 s{sWm}, s{sW}, 1
    s_and_b32 s{sWn}, s{sW}, 1
    v_and_b32 v{T[0]}, 15, v{vL}
    v_lshrrev_b32 v{T[1]}, 4, v{vL}
    v_lshrrev_b32 v{T[2]}, 1, v{T[0]}
    v_xor_b32 v{T[2]}, v{T[2]}, v{T[1]}
    v_xor_b32 v{T[3]}, 4, v{T[2]}
    v_lshlrev_b32 v{T[4]}, 7, v{T[0]}
    v_lshl_add_u32 v{T[2]}, v{T[2]}, 4, v{T[4]}
    v_lshl_add_u32 v{T[3]}, v{T[3]}, 4, v{T[4]}
    s_lshl_b32 s{sT0}, s{sWm}, 13
    v_add_u32 v{bX[0]}, s{sT0}, v{T[2]}
    v_add_u32 v{bX[1]}, s{sT0}, v{T[3]}
    s_and_b32 s{sT1}, s{sJ4}, 1
    s_lshl_b32 s{sT1}, s{sT1}, 1
    s_add_u32 s{sT1}, s{sT1}, s{sWn}
    s_lshl_b32 s{sT2}, s{sT1}, 11
    v_add_u32 v{bXe[0]}, s{sT2}, v{bX[0]}
    v_add_u32 v{bXe[1]}, s{sT2}, v{bX[1]}
    v_lshrrev_b32 v{T[2]}, 2, v{vL}
    v_mul_u32_u24 v{T[2]}, 160, v{T[2]}
    v_and_b32 v{T[3]}, 3, v{vL}
    v_lshl_add_u32 v{T[2]}, v{T[3]}, 3, v{T[2]}
    s_mul_i32 s{sT0}, s{sWn}, 10240
    v_add_u32 v{bW}, s{sT0}, v{T[2]}
    v_lshrrev_b32 v{T[2]}, 2, v{T[0]}
    v_lshl_add_u32 v{T[2]}, v{T[1]}, 3, v{T[2]}
    v_mul_u32_u24 v{T[2]}, 40, v{T[2]}
    v_lshl_add_u32 v{bE}, v{T[3]}, 3, v{T[2]}
    """)
    a(f"s_mov_b32 s{sM}, s{sT1}")
    for m in range(4):
        for n in range(5):
            for r in range(4): a(f"v_mov_b32 v{ACC[m][n]+r}, 0")
    for n in range(2):
        for r in range(4): a(f"v_mov_b32 v{ACE[n]+r}, 0")
    a.c("output SRDs")
    a(f"""
    s_waitcnt lgkmcnt(0)
    s_cmp_eq_u32 s{sGrp}, 0
    s_cselect_b32 s{sT0}, 1, 0
    s_cmp_eq_u32 s{sGrp}, 3
    s_cselect_b32 s{sT0}, 1, s{sT0}
    s_cselect_b32 s{sT1}, 32, 0
    s_cmp_eq_u32 s{sT0}, 1
    s_mov_b32 s{sHS}, {KV_SET}
    s_cmov_b32 s{sHS}, {Q_HEAD}
    s_mov_b32 s{sT2}, 10240
    s_cmov_b32 s{sT2}, 5120
    s_cselect_b32 s{sT0}, {Q_OFF}, {KV_OFF}
    s_cselect_b32 s{sScale}, 0x{QSCALE:x}, 1.0
    s_mul_i32 s{sT2}, s{sT2}, s{sMt}
    s_add_u32 s{sT0}, s{sT0}, s{sT2}
    s_lshl_b32 s{sT2}, s{sJ4}, 3
    s_add_u32 s{sT1}, s{sT1}, s{sT2}
    s_lshl_b32 s{sT2}, s{sWn}, 2
    s_add_u32 s{sT1}, s{sT1}, s{sT2}
    s_mul_i32 s{sT1}, s{sT1}, s{sHS}
    s_add_u32 s{sT0}, s{sT0}, s{sT1}
    s_add_u32 s8, s4, s{sT0}
    s_addc_u32 s9, s5, 0
    s_sub_u32 s10, {O_OFF}, s{sT0}
    s_mov_b32 s11, 0x00020000
    s_mul_i32 s{sT0}, s{sMt}, 10240
    s_add_u32 s{sT0}, s{sT0}, {KV_OFF + 32*KV_SET}
    s_add_u32 s12, s4, s{sT0}
    s_addc_u32 s13, s5, 0
    s_mov_b32 s14, 10240
    s_mov_b32 s15, 0x00020000
    s_mov_b32 s{sSt}, 0
    s_mov_b32 s{sC}, 0
    s_cmp_eq_u32 s{sGrp}, 2
    s_cbranch_scc1 L_{name}_F
    """)
    def addr_T():
        for tn in range(5):
            a(f"""
            v_add_u32 v{T[2]}, {4*tn}, v{T[1]}
            v_mul_u32_u24 v{T[3]}, 52, v{T[2]}
            v_lshrrev_b32 v{T[3]}, 8, v{T[3]}
            v_mul_u32_u24 v{T[4]}, 5, v{T[3]}
            v_sub_u32 v{T[4]}, v{T[2]}, v{T[4]}
            v_mul_lo_u32 v{T[3]}, v{T[3]}, s{sHS}
            v_lshl_add_u32 v{T[3]}, v{T[0]}, 4, v{T[3]}
            v_lshrrev_b32 v{T[5]}, 1, v{T[4]}
            v_lshlrev_b32 v{T[5]}, 9, v{T[5]}
            v_and_b32 v{T[6]}, 1, v{T[4]}
            v_lshl_add_u32 v{T[5]}, v{T[6]}, 3, v{T[5]}
            s_lshl_b32 s{sT0}, s{sWm}, 11
            v_add_u32 v{T[5]}, s{sT0}, v{T[5]}
            s_lshl_b32 s{sT0}, s{sWm}, 3
            s_add_u32 s{sT0}, s{sT0}, 4096
            v_mov_b32 v{T[6]}, s{sT0}
            v_cmp_eq_u32 vcc, 4, v{T[4]}
            v_mov_b32 v{T[7]}, 1024
            v_mov_b32 v{T[2]}, 512
            v_cndmask_b32 v{T[5]}, v{T[5]}, v{T[6]}, vcc
            v_cndmask_b32 v{T[7]}, v{T[7]}, v{T[2]}, vcc
            v_add_u32 v{A0[tn]}, v{T[3]}, v{T[5]}
            v_add_u32 v{A1[tn]}, v{A0[tn]}, v{T[7]}
            """)
    def addr_F():
        for tn in range(5):
            a(f"""
            v_add_u32 v{T[2]}, {16*tn}, v{T[0]}
            v_mul_u32_u24 v{T[3]}, 205, v{T[2]}
            v_lshrrev_b32 v{T[3]}, 12, v{T[3]}
            v_mul_u32_u24 v{T[4]}, 20, v{T[3]}
            v_sub_u32 v{T[4]}, v{T[2]}, v{T[4]}
            v_mul_lo_u32 v{T[3]}, v{T[3]}, s{sHS}
            v_lshl_add_u32 v{T[3]}, v{T[4]}, 4, v{T[3]}
            v_lshrrev_b32 v{T[5]}, 1, v{T[1]}
            v_mul_u32_u24 v{T[5]}, 320, v{T[5]}
            v_and_b32 v{T[6]}, 1, v{T[1]}
            v_lshl_add_u32 v{T[5]}, v{T[6]}, 3, v{T[5]}
            s_mul_i32 s{sT0}, s{sWm}, 2560
            s_add_u32 s{sT0}, s{sT0}, 5120
            v_add3_u32 v{A0[tn]}, v{T[3]}, v{T[5]}, s{sT0}
            """)
    def addr_EK():
        a(f"""
        s_lshl_b32 s{sT0}, s{sWm}, 11
        s_lshr_b32 s{sT1}, s{sM}, 1
        s_lshl_b32 s{sT1}, s{sT1}, 10
        s_add_u32 s{sT0}, s{sT0}, s{sT1}
        s_and_b32 s{sT1}, s{sM}, 1
        s_lshl_b32 s{sT1}, s{sT1}, 8
        s_add_u32 s{sT0}, s{sT0}, s{sT1}
        v_lshrrev_b32 v{T[5]}, 1, v{T[1]}
        v_lshlrev_b32 v{T[5]}, 9, v{T[5]}
        v_and_b32 v{T[6]}, 1, v{T[1]}
        v_lshl_add_u32 v{T[5]}, v{T[6]}, 3, v{T[5]}
        v_lshl_add_u32 v{T[5]}, v{T[0]}, 4, v{T[5]}
        v_add_u32 v{AE[0]}, s{sT0}, v{T[5]}
        s_lshl_b32 s{sT0}, s{sM}, 8
        s_lshl_b32 s{sT1}, s{sWm}, 3
        s_add_u32 s{sT0}, s{sT0}, s{sT1}
        s_add_u32 s{sT0}, s{sT0}, 4096
        v_lshlrev_b32 v{T[5]}, 4, v{T[0]}
        v_lshl_add_u32 v{T[5]}, v{T[1]}, 20, v{T[5]}
        v_add_u32 v{AE[1]}, s{sT0}, v{T[5]}
        """)
    def addr_EV():
        a(f"""
        s_mul_i32 s{sT0}, s{sWm}, 2560
        s_mul_i32 s{sT1}, s{sM}, 640
        s_add_u32 s{sT0}, s{sT0}, s{sT1}
        s_add_u32 s{sT0}, s{sT0}, 5120
        v_lshrrev_b32 v{T[5]}, 1, v{T[1]}
        v_mul_u32_u24 v{T[5]}, 320, v{T[5]}
        v_and_b32 v{T[6]}, 1, v{T[1]}
        v_lshl_add_u32 v{T[5]}, v{T[6]}, 3, v{T[5]}
        v_lshl_add_u32 v{T[5]}, v{T[0]}, 4, v{T[5]}
        v_add_u32 v{AE[0]}, s{sT0}, v{T[5]}
        v_lshrrev_b32 v{T[6]}, 2, v{T[0]}
        v_lshl_add_u32 v{T[5]}, v{T[6]}, 20, v{AE[0]}
        v_add_u32 v{AE[1]}, 256, v{T[5]}
        """)
    def reads(b, ks, ext):
        r = []
        r.append(f"ds_read_b128 {vr(FX[b][0],4)}, v{aX[ks]}")
        for tn in range(5):
            for hr in range(2):
                r.append(f"ds_read_b64_tr_b16 {vr(FW[b][tn]+2*hr,2)}, v{aW} offset:{WOFF + ks*5120 + hr*2560 + tn*32}")
        for tm in range(1, 4):
            r.append(f"ds_read_b128 {vr(FX[b][tm],4)}, v{aX[ks]} offset:{tm*2048}")
        if ext:
            r.append(f"ds_read_b128 {vr(FXe[b],4)}, v{aXe[ks]}")
            for tn in range(2):
                for hr in range(2):
                    r.append(f"ds_read_b64_tr_b16 {vr(FE[b][tn]+2*hr,2)}, v{aE} offset:{EOFF + ks*1280 + hr*160 + tn*32}")
        return r
    def mf(d, x, w, orient):
        A, B = (w, x) if orient == "T" else (x, w)
        return f"v_mfma_f32_16x16x32_bf16 {vr(d,4)}, {vr(A,4)}, {vr(B,4)}, {vr(d,4)}"
    def mfmas(b, orient, ext):
        m = [mf(ACC[tm][tn], FX[b][tm], FW[b][tn], orient) for tm in range(4) for tn in range(5)]
        if ext:
            m += [mf(ACE[tn], FXe[b], FE[b][tn], "T" if ext == "K" else "F") for tn in range(2)]
        return m
    def setaddr(ext):
        a(f"v_add_u32 v{aX[0]}, s{sSt}, v{bX[0]}")
        a(f"v_add_u32 v{aW}, s{sSt}, v{bW}")
        a(f"v_add_u32 v{aX[1]}, s{sSt}, v{bX[1]}")
        if ext:
            a(f"v_add_u32 v{aXe[0]}, s{sSt}, v{bXe[0]}")
            a(f"v_add_u32 v{aXe[1]}, s{sSt}, v{bXe[1]}")
            a(f"v_add_u32 v{aE}, s{sSt}, v{bE}")
        a(f"s_add_u32 s{sSt}, s{sSt}, {ST}")
        a(f"s_cmp_eq_u32 s{sSt}, {ST*NST}")
        a(f"s_cselect_b32 s{sSt}, 0, s{sSt}")
    def variant(tag, orient, ext):
        L = f"L_{name}_{tag}"
        setaddr(ext)
        a("s_barrier")
        for r in reads(0, 0, ext): a(r)
        a(f"s_branch {L}_mid")
        a.raw(".p2align 6")
        a.label(f"{L}_loop")
        a("s_barrier")
        interleave(a, mfmas(1, orient, ext), reads(0, 0, ext))
        a.label(f"{L}_mid")
        a("s_waitcnt lgkmcnt(0)")
        interleave(a, mfmas(0, orient, ext), reads(1, 1, ext))
        setaddr(ext)
        a(f"s_add_u32 s{sC}, s{sC}, 1")
        a(f"s_cmp_lt_u32 s{sC}, 10")
        a("s_waitcnt lgkmcnt(0)")
        a(f"s_cbranch_scc1 {L}_loop")
        for m in mfmas(1, orient, ext): a(m)
        P = FX[0][0]
        k = 0
        for tm in range(4):
            for tn in range(5):
                c = ACC[tm][tn]; p = P + 2 * (k % 16); k += 1
                if orient == "T":
                    for r in range(4): a(f"v_mul_f32 v{c+r}, s{sScale}, v{c+r}")
                a(f"v_cvt_pk_bf16_f32 v{p}, v{c}, v{c+1}")
                a(f"v_cvt_pk_bf16_f32 v{p+1}, v{c+2}, v{c+3}")
                if orient == "T":
                    ad = (A0 if tm < 2 else A1)[tn]
                    a(f"buffer_store_dwordx2 {vr(p,2)}, v{ad}, s[8:11], 0 offen offset:{(tm&1)*256}")
                else:
                    a(f"buffer_store_dwordx2 {vr(p,2)}, v{A0[tn]}, s[8:11], 0 offen offset:{tm*640}")
        if ext:
            for tn in range(2):
                c = ACE[tn]; p = P + 2 * (k % 16); k += 1
                a(f"v_cvt_pk_bf16_f32 v{p}, v{c}, v{c+1}")
                a(f"v_cvt_pk_bf16_f32 v{p+1}, v{c+2}, v{c+3}")
                a(f"buffer_store_dwordx2 {vr(p,2)}, v{AE[tn]}, s[12:15], 0 offen")
        a("s_endpgm")
    addr_T()
    a(f"""
    s_cmp_eq_u32 s{sGrp}, 3
    s_cbranch_scc1 L_{name}_B
    """)
    variant("T", "T", None)
    a.label(f"L_{name}_B")
    a(f"""
    s_cmp_lt_u32 s{sJ4}, 2
    s_cbranch_scc0 L_{name}_BV
    """)
    addr_EK()
    variant("TK", "T", "K")
    a.label(f"L_{name}_BV")
    addr_EV()
    variant("TV", "T", "V")
    a.label(f"L_{name}_F")
    addr_F()
    variant("F", "F", None)
    a.label(f"L_{name}_end")
    a("s_endpgm")
    kernel_desc(a, name, nv, 64)
    return nv, ST * NST + 64

def gen_outp(a, name="outp_kernel"):
    ST = 26624; NST = 6; WOFF = 16384
    R = RegAlloc(1)
    vL = R.alloc("lane")
    T = [R.alloc(f"t{i}") for i in range(8)]
    bX = R.alloc("bX"); bW = R.alloc("bW"); aX = R.alloc("aX"); aW = R.alloc("aW")
    vWr = R.alloc("wr"); vRd = R.alloc("rd")
    AO = [R.alloc(f"AO{i}") for i in range(5)]
    FX = [[R.alloc(f"FX{b}{i}", 4, 4) for i in range(2)] for b in range(2)]
    FW = [[R.alloc(f"FW{b}{i}", 4, 4) for i in range(5)] for b in range(2)]
    ACC = [[R.alloc(f"C{m}{n}", 4, 4) for n in range(5)] for m in range(2)]
    nv = R.n
    LO = FX[0][0]; LW = [[FX[0][1] + 3 * p + i for i in range(3)] for p in range(2)]
    sW, sMt, sBr, sNt, sT0, sT1, sT2, sC, sSt, sOx, sOw = 20, 21, 22, 23, 24, 25, 26, 28, 29, 32, 33
    kernel_header(a, name)
    a(f"""
    s_cmp_ge_u32 s2, 256
    s_cbranch_scc1 L_{name}_end
    s_load_dwordx2 s[40:41], s[0:1], 16
    s_load_dwordx4 s[44:47], s[0:1], 56
    s_load_dwordx2 s[4:5], s[0:1], 80
    v_lshrrev_b32 v{T[0]}, 6, v0
    v_and_b32 v{vL}, 63, v0
    s_and_b32 s{sT0}, s2, 7
    v_readfirstlane_b32 s{sW}, v{T[0]}
    s_lshr_b32 s{sT1}, s2, 3
    s_lshr_b32 s{sBr}, s{sT0}, 2
    s_and_b32 s{sMt}, s{sT0}, 3
    s_lshl_b32 s{sMt}, s{sMt}, 2
    s_and_b32 s{sT2}, s{sT1}, 3
    s_add_u32 s{sMt}, s{sMt}, s{sT2}
    s_lshr_b32 s{sNt}, s{sT1}, 2
    s_cmp_ge_u32 s{sW}, 4
    s_cbranch_scc0 L_{name}_comp
    """)
    a(f"""
    s_sub_u32 s{sW}, s{sW}, 4
    v_lshlrev_b32 v{LO}, 4, v{vL}
    """)
    for q in range(3):
        a(f"""
        s_mul_i32 s{sT0}, s{sW}, 160
        s_add_u32 s{sT0}, s{sT0}, {q*64}
        v_add_u32 v{T[0]}, s{sT0}, v{vL}
        """)
        div10(a, T[1], T[2], T[0], sT0)
        a(f"""
        v_lshrrev_b32 v{T[3]}, 5, v{T[1]}
        v_bfe_u32 v{T[4]}, v{T[1]}, 2, 2
        v_lshl_add_u32 v{T[3]}, v{T[3]}, 2, v{T[4]}
        v_bfe_u32 v{T[4]}, v{T[1]}, 4, 1
        v_and_b32 v{T[5]}, 3, v{T[1]}
        v_lshrrev_b32 v{T[6]}, 1, v{T[3]}
        v_mul_u32_u24 v{T[6]}, 20, v{T[6]}
        v_and_b32 v{T[7]}, 1, v{T[3]}
        v_lshl_add_u32 v{T[6]}, v{T[7]}, 2, v{T[6]}
        v_lshl_add_u32 v{T[6]}, v{T[4]}, 3, v{T[6]}
        v_add_u32 v{T[6]}, v{T[6]}, v{T[5]}
        v_mul_u32_u24 v{T[6]}, 1280, v{T[6]}
        v_lshl_add_u32 v{LW[0][q]}, v{T[2]}, 4, v{T[6]}
        v_lshl_add_u32 v{T[6]}, v{T[3]}, 1, v{T[4]}
        v_mul_u32_u24 v{T[6]}, 20, v{T[6]}
        v_add3_u32 v{T[6]}, v{T[6]}, v{T[5]}, 16
        v_mul_u32_u24 v{T[6]}, 1280, v{T[6]}
        v_lshl_add_u32 v{LW[1][q]}, v{T[2]}, 4, v{T[6]}
        """)
    a(f"""
    s_waitcnt lgkmcnt(0)
    s_mul_i32 s{sT0}, s{sBr}, {O_BR}
    s_add_u32 s{sT0}, s{sT0}, {O_OFF}
    s_add_u32 s8, s4, s{sT0}
    s_addc_u32 s9, s5, 0
    s_mov_b32 s10, {O_BR}
    s_mov_b32 s11, 0x00020000
    s_cmp_eq_u32 s{sBr}, 0
    s_cselect_b32 s12, s40, s44
    s_cselect_b32 s13, s41, s45
    s_mul_i32 s{sT0}, s{sNt}, 160
    s_add_u32 s12, s12, s{sT0}
    s_addc_u32 s13, s13, 0
    s_sub_u32 s14, {640*1280}, s{sT0}
    s_mov_b32 s15, 0x00020000
    s_lshl_b32 s{sOx}, s{sW}, 16
    s_lshl_b32 s{sT0}, s{sMt}, 11
    s_add_u32 s{sOx}, s{sOx}, s{sT0}
    s_lshl_b32 s{sT0}, s{sW}, 12
    s_mul_i32 s{sT1}, s{sW}, 2560
    s_add_u32 s{sT1}, s{sT1}, {WOFF}
    """)
    def issue(c):
        st = (c % NST) * ST
        for q in range(4):
            a(f"s_add_u32 m0, s{sT0}, {st + q*1024}")
            a(f"s_add_u32 s{sT2}, s{sOx}, {c*8*32768 + (q//2)*32768 + (q%2)*1024}")
            a(f"buffer_load_dwordx4 v{LO}, s[8:11], s{sT2} offen lds")
        so = c * 80 * 1280 if c < 8 else (c - 8) * 320 * 1280
        a(f"s_mov_b32 s{sOw}, {so}")
        for q in range(3):
            a(f"s_add_u32 m0, s{sT1}, {st + q*1024}")
            a("s_mov_b32 exec_hi, 0" if q == 2 else "s_nop 0")
            a(f"buffer_load_dwordx4 v{LW[0 if c < 8 else 1][q]}, s[12:15], s{sOw} offen lds")
        a("s_mov_b32 exec_hi, -1")
    n = 7
    for c in range(NST): issue(c)
    for c in range(10):
        issued = min(10, NST if c == 0 else c + NST - 1)
        a(f"s_waitcnt vmcnt({(issued - c - 1) * n})")
        a("s_barrier")
        if c >= 1 and c + NST - 1 < 10:
            issue(c + NST - 1)
    a("s_endpgm")

    a.label(f"L_{name}_comp")
    TR = 4 * ST
    a(f"""
    v_and_b32 v{T[0]}, 15, v{vL}
    v_lshrrev_b32 v{T[1]}, 4, v{vL}
    v_lshlrev_b32 v{T[2]}, 11, v{T[1]}
    v_lshl_add_u32 v{T[2]}, v{T[0]}, 4, v{T[2]}
    s_lshl_b32 s{sT0}, s{sW}, 9
    v_add_u32 v{bX}, s{sT0}, v{T[2]}
    v_lshrrev_b32 v{T[2]}, 2, v{vL}
    v_mul_u32_u24 v{T[2]}, 160, v{T[2]}
    v_and_b32 v{T[3]}, 3, v{vL}
    v_lshl_add_u32 v{bW}, v{T[3]}, 3, v{T[2]}
    s_mul_i32 s{sT0}, s{sW}, 5120
    s_add_u32 s{sT0}, s{sT0}, {TR}
    v_mul_u32_u24 v{T[2]}, 160, v{T[0]}
    v_lshl_add_u32 v{T[2]}, v{T[1]}, 3, v{T[2]}
    v_add_u32 v{vWr}, s{sT0}, v{T[2]}
    v_lshlrev_b32 v{T[2]}, 4, v{vL}
    v_add_u32 v{vRd}, s{sT0}, v{T[2]}
    """)
    for q in range(5):
        a(f"v_add_u32 v{T[2]}, {64*q}, v{vL}")
        div10(a, T[3], T[4], T[2], sT0)
        a(f"v_mul_u32_u24 v{T[3]}, 2560, v{T[3]}")
        a(f"v_lshl_add_u32 v{AO[q]}, v{T[4]}, 4, v{T[3]}")
    for m in range(2):
        for n_ in range(5):
            for r in range(4): a(f"v_mov_b32 v{ACC[m][n_]+r}, 0")
    a(f"""
    s_waitcnt lgkmcnt(0)
    s_lshl_b32 s{sT0}, s{sMt}, 7
    s_lshl_b32 s{sT1}, s{sW}, 5
    s_add_u32 s{sT0}, s{sT0}, s{sT1}
    s_mul_i32 s{sT0}, s{sT0}, 2560
    s_mul_i32 s{sT1}, s{sBr}, 1280
    s_add_u32 s{sT0}, s{sT0}, s{sT1}
    s_mul_i32 s{sT1}, s{sNt}, 160
    s_add_u32 s{sT0}, s{sT0}, s{sT1}
    s_add_u32 s8, s46, s{sT0}
    s_addc_u32 s9, s47, 0
    s_sub_u32 s10, {2048*2560}, s{sT0}
    s_mov_b32 s11, 0x00020000
    s_mov_b32 s{sSt}, 0
    s_mov_b32 s{sC}, 0
    """)
    def reads(b, ks):
        r = [f"ds_read_b128 {vr(FX[b][0],4)}, v{aX} offset:{ks*8192}"]
        for tn in range(5):
            for hr in range(2):
                r.append(f"ds_read_b64_tr_b16 {vr(FW[b][tn]+2*hr,2)}, v{aW} offset:{WOFF + ks*5120 + hr*2560 + tn*32}")
        r.append(f"ds_read_b128 {vr(FX[b][1],4)}, v{aX} offset:{ks*8192+256}")
        return r
    def mfmas(b):
        return [f"v_mfma_f32_16x16x32_bf16 {vr(ACC[tm][tn],4)}, {vr(FW[b][tn],4)}, {vr(FX[b][tm],4)}, {vr(ACC[tm][tn],4)}" for tm in range(2) for tn in range(5)]
    def setaddr():
        a(f"v_add_u32 v{aX}, s{sSt}, v{bX}")
        a(f"v_add_u32 v{aW}, s{sSt}, v{bW}")
        a(f"s_add_u32 s{sSt}, s{sSt}, {ST}")
        a(f"s_cmp_eq_u32 s{sSt}, {ST*NST}")
        a(f"s_cselect_b32 s{sSt}, 0, s{sSt}")
    L = f"L_{name}"
    setaddr()
    a("s_barrier")
    for r in reads(0, 0): a(r)
    a(f"s_branch {L}_mid")
    a.raw(".p2align 6")
    a.label(f"{L}_loop")
    a("s_barrier")
    interleave(a, mfmas(1), reads(0, 0))
    a.label(f"{L}_mid")
    a("s_waitcnt lgkmcnt(0)")
    interleave(a, mfmas(0), reads(1, 1))
    setaddr()
    a(f"s_add_u32 s{sC}, s{sC}, 1")
    a(f"s_cmp_lt_u32 s{sC}, 10")
    a("s_waitcnt lgkmcnt(0)")
    a(f"s_cbranch_scc1 {L}_loop")
    for m in mfmas(1): a(m)
    P = FX[0][0]
    k = 0
    for tm in range(2):
        for tn in range(5):
            c = ACC[tm][tn]; p = P + 2 * k; k += 1
            a(f"v_cvt_pk_bf16_f32 v{p}, v{c}, v{c+1}")
            a(f"v_cvt_pk_bf16_f32 v{p+1}, v{c+2}, v{c+3}")
            a(f"ds_write_b64 v{vWr}, {vr(p,2)} offset:{tm*2560 + tn*32}")
    a("s_waitcnt lgkmcnt(0)")
    for q in range(5):
        a(f"ds_read_b128 {vr(ACC[0][q],4)}, v{vRd} offset:{q*1024}")
    for q in range(5):
        a(f"s_waitcnt lgkmcnt({4-q})")
        a(f"buffer_store_dwordx4 {vr(ACC[0][q],4)}, v{AO[q]}, s[8:11], 0 offen")
    a.label(f"L_{name}_end")
    a("s_endpgm")
    kernel_desc(a, name, nv, 64)
    return nv, ST * NST
```

```python
import sys
from common import *
from attn import gen_attn
from gemm import gen_proj, gen_outp
NAME = "concat_heads__mha_block__grouped_kv_mqa__prompt"
ref = open(f"cdna_kernels/{NAME}.s.ref").read().split("\n")
hdr = [l for l in ref if l.startswith(";") and "@launch" not in l and "Override" not in l and "grid=ceil" not in l]
a = Asm()
body = Asm()
body.raw('.amdgcn_target "amdgcn-amd-amdhsa--gfx950"')
v1, l1 = gen_proj(body, "proj_kernel")
v2 = gen_attn(body, NAME + "_kernel")
v3, l3 = gen_outp(body, "outp_kernel")
print("vgprs", v1, v2, v3, "lds", l1, l3)
out = "\n".join(hdr) + "\n"
out += f"; @launch kernel=proj_kernel grid=(256,1,1) block=(512,1,1) lds={l1}\n"
out += f"; @launch kernel={NAME}_kernel grid=(256,1,1) block=(512,1,1) lds=163840\n"
out += f"; @launch kernel=outp_kernel grid=(256,1,1) block=(512,1,1) lds={l3}\n"
out += body.text()
dst = sys.argv[1] if len(sys.argv) > 1 else f"cdna_kernels/{NAME}.s"
open(dst, "w").write(out)
```

```python
class Asm:
    def __init__(self):
        self.lines = []
        self.uid = 0
    def __call__(self, s):
        for l in s.strip("\n").split("\n"):
            if not l.strip(): continue
            self.lines.append("    " + l.strip() if not l.strip().endswith(":") else l.strip())
    def label(self, name):
        self.lines.append(name + ":")
    def c(self, s):
        self.lines.append("    ; " + s)
    def raw(self, s):
        self.lines.append(s)
    def text(self):
        return "\n".join(self.lines) + "\n"

def vr(b, n=1):
    return f"v{b}" if n == 1 else f"v[{b}:{b+n-1}]"
def sr(b, n=1):
    return f"s{b}" if n == 1 else f"s[{b}:{b+n-1}]"

class RegAlloc:
    def __init__(self, start=0):
        self.n = start
        self.names = {}
    def alloc(self, name, n=1, align=1):
        self.n = (self.n + align - 1) // align * align
        b = self.n
        self.n += n
        self.names[name] = (b, n)
        return b

Q_OFF = 0
Q_HEAD = 81920
Q_SIZE = 64 * Q_HEAD
KV_OFF = Q_OFF + Q_SIZE
KV_SET = 163840
KV_SIZE = 33 * KV_SET
O_OFF = KV_OFF + KV_SIZE
O_BR = 80 * 32768
O_SIZE = 2 * O_BR
WS_USED = O_OFF + O_SIZE

def kernel_header(a, name):
    a.raw(".text")
    a.raw(f".globl {name}")
    a.raw(".p2align 8")
    a.raw(f".type {name},@function")
    a.label(name)

def kernel_desc(a, name, vgpr, sgpr=102, accum=None):
    if accum is None:
        accum = (vgpr + 3) // 4 * 4
    a.raw('.section .rodata,"a"')
    a.raw(".p2align 6")
    a.raw(f".amdhsa_kernel {name}")
    a.raw(f"  .amdhsa_next_free_vgpr {vgpr}")
    a.raw(f"  .amdhsa_next_free_sgpr {sgpr}")
    a.raw(f"  .amdhsa_accum_offset {accum}")
    a.raw("  .amdhsa_group_segment_fixed_size 0")
    a.raw("  .amdhsa_kernarg_size 88")
    a.raw("  .amdhsa_user_sgpr_count 2")
    a.raw("  .amdhsa_user_sgpr_kernarg_segment_ptr 1")
    a.raw("  .amdhsa_system_sgpr_workgroup_id_x 1")
    a.raw(".end_amdhsa_kernel")

def stamp_begin(a, on):
    if on:
        a("s_memrealtime s[60:61]\ns_memtime s[62:63]")
def stamp_mid(a, on, idx):
    if on:
        a(f"s_memtime s[{64+2*idx}:{65+2*idx}]\ns_waitcnt lgkmcnt(0)")
def stamp_end(a, on, kidx, sW, wadd=0):
    if on:
        a(f"""
        s_waitcnt vmcnt(0) lgkmcnt(0)
        s_memrealtime s[72:73]
        s_memtime s[74:75]
        s_waitcnt lgkmcnt(0)
        s_sub_u32 s64, s64, s62
        s_sub_u32 s66, s66, s62
        s_sub_u32 s68, s68, s62
        s_sub_u32 s70, s70, s62
        s_sub_u32 s74, s74, s62
        v_mov_b32 v8, s60
        v_mov_b32 v9, s72
        v_mov_b32 v10, s74
        v_mov_b32 v11, s64
        v_mov_b32 v12, s66
        v_mov_b32 v13, s68
        v_mov_b32 v14, s70
        v_mov_b32 v15, 0
        s_lshl_b32 s76, s2, 3
        s_add_u32 s76, s76, s{sW}
        s_add_u32 s76, s76, {wadd}
        s_lshl_b32 s76, s76, 5
        s_add_u32 s76, s76, {WS_USED + kidx*65536}
        v_mov_b32 v7, s76
        s_mov_b32 exec_lo, 1
        s_mov_b32 exec_hi, 0
        global_store_dwordx4 v7, v[8:11], s[4:5]
        global_store_dwordx4 v7, v[12:15], s[4:5] offset:16
        """)
```

```python
import struct
from common import Asm, vr, sr, RegAlloc, kernel_header, kernel_desc

def f32bits(x): return struct.unpack("<I", struct.pack("<f", x))[0]
QSCALE = f32bits((20 ** -0.5) * 1.4426950408889634)

TILE = 2624; GROUP = 4 * TILE; KV_SET = 16 * GROUP
KV_OFF = 0
QA_OFF = KV_OFF + 33 * KV_SET
O_OFF = QA_OFF + 32 * 64 * 1280
O_TAIL = 64 * 32768
O_BR = O_TAIL + 32 * 16384
FL_OFF = O_OFF + 2 * O_BR
F1 = FL_OFF; F2 = F1 + 2048; F3 = F2 + 16 * 128; F4 = F3 + 32 * 128
WS_USED = F4 + 8 * 256
ST_OFF = (WS_USED + 4095) // 4096 * 4096
LDS = 81920
BIG = 0x100000
SPIN = 30000

kAx, kAw, kAo, kBx, kBq, kBk, kBv, kBo, kOut, kDbg, kWs = 64, 66, 68, 70, 72, 74, 76, 78, 80, 82, 84

def gen(a, name, stamp=False, force_fallback=False, ASW=2, SC="sc1", GATE=True, DBG=""):
    L = lambda s: f"L_{s}"
    R = RegAlloc(1)
    vL = R.alloc("lane")
    T = [R.alloc(f"t{i}") for i in range(8)]
    vN = R.alloc("nonce", 2, 2)
    vF = R.alloc("flag", 8, 4)
    vK = R.alloc("aK"); vK1 = R.alloc("aK1"); vV = R.alloc("aV"); vIdx = R.alloc("idx")
    vD = [R.alloc(f"dma{q}") for q in range(3)]
    vM = [R.alloc("Ma"), R.alloc("Mb")]
    vOst = R.alloc("ost"); vOst2 = R.alloc("ost2")
    Q0 = [R.alloc(f"Q0{s}", 4, 4) for s in range(2)]
    Q1 = [R.alloc(f"Q1{s}", 2, 2) for s in range(2)]
    OVL = (R.n + 3) // 4 * 4
    K0 = [R.alloc(f"K0{i}", 4, 4) for i in range(2)]
    K1 = [R.alloc(f"K1{i}", 2, 2) for i in range(2)]
    V = [[R.alloc(f"V{i}{j}", 4, 4) for j in range(2)] for i in range(2)]
    S = [[R.alloc(f"S{s}{p}", 16, 4) for p in range(2)] for s in range(2)]
    O = [R.alloc(f"O{s}", 16, 4) for s in range(2)]
    nvmax = [R.n]

    sW, sI, sRole, sT0, sT1, sT2, sT3, sC, sSt, sOx, sOw, sRot = 20, 21, 22, 23, 24, 25, 26, 27, 28, 29, 30, 31
    sP0, sP1 = 32, 33
    sD = [34, 35, 36]; sGo, sSw, sFl, sHead, sTok, sBr, sSpin = 37, 38, 39, 40, 41, 42, 43
    sM0, sM1 = 44, 45

    nst = [0]
    def mark(i):
        if stamp:
            a(f"s_memtime s[{88+2*0}:{89}]\ns_waitcnt lgkmcnt(0)\ns_sub_u32 s{50+i}, s88, s48")
    def stamp_end():
        if not stamp: return
        a(f"""
        s_waitcnt vmcnt(0) lgkmcnt(0)
        s_memrealtime s[90:91]
        s_memtime s[88:89]
        s_waitcnt lgkmcnt(0)
        s_sub_u32 s88, s88, s48
        v_mov_b32 v{OVL}, s46
        v_mov_b32 v{OVL+1}, s90
        v_mov_b32 v{OVL+2}, s88
        """)
        for i in range(13):
            a(f"v_mov_b32 v{OVL+3+i}, s{50+i}")
        a(f"""
        s_lshl_b32 s88, s2, 2
        s_add_u32 s88, s88, s{sW}
        s_lshl_b32 s88, s88, 6
        s_add_u32 s88, s88, {ST_OFF}
        v_mov_b32 v{T[0]}, s88
        s_mov_b32 exec_lo, 1
        s_mov_b32 exec_hi, 0
        """)
        for i in range(4):
            a(f"global_store_dwordx4 v{T[0]}, {vr(OVL+4*i,4)}, s[{kWs}:{kWs+1}] offset:{16*i}")

    def srd(d, base, off, size):
        a(f"""
        s_add_u32 s{d}, s{base}, {off}
        s_addc_u32 s{d+1}, s{base+1}, 0
        s_mov_b32 s{d+2}, {size}
        s_mov_b32 s{d+3}, 0x00020000
        """)
    uid = [0]
    def divc(vq, vrem, vn, d, mul, sh):
        a(f"v_mul_u32_u24 v{vq}, {mul}, v{vn}")
        a(f"v_lshrrev_b32 v{vq}, {sh}, v{vq}")
        a(f"v_mul_u32_u24 v{vrem}, {d}, v{vq}")
        a(f"v_sub_u32 v{vrem}, v{vn}, v{vrem}")

    def publish(flag_sgpr):
        uid[0] += 1; u = uid[0]
        a(f"""
        s_cmp_lg_u32 s{sW}, 0
        s_cbranch_scc1 L_pubw{u}
        v_mov_b32 v{T[0]}, 0
        s_mov_b32 s{sSpin}, {SPIN}
        L_pubn{u}:
        global_load_dwordx2 {vr(vN,2)}, v{T[0]}, s[{kDbg}:{kDbg+1}] sc1
        s_waitcnt vmcnt(0)
        v_cmp_eq_u32 vcc, 0, v{vN}
        s_sub_u32 s{sSpin}, s{sSpin}, 1
        s_cbranch_scc1 L_pubw{u}
        s_cbranch_vccnz L_pubn{u}
        L_pubw{u}:
        s_waitcnt vmcnt(0)
        s_barrier
        s_cmp_lg_u32 s{sW}, 0
        s_cbranch_scc1 L_pubd{u}
        v_mov_b32 v{T[0]}, s{flag_sgpr}
        s_mov_b64 exec, 1
        global_store_dwordx2 v{T[0]}, {vr(vN,2)}, s[{kWs}:{kWs+1}] sc1
        s_mov_b64 exec, -1
        L_pubd{u}:
        """)
    def wait_flags(base_sgpr, mask, wide=False, sleep=1):
        uid[0] += 1; u = uid[0]
        a(f"""
        s_cmp_lg_u32 s{sW}, 0
        s_cbranch_scc1 L_wfd{u}
        v_and_b32 v{T[1]}, {mask}, v{vL}
        v_lshlrev_b32 v{T[1]}, {4 if wide else 3}, v{T[1]}
        v_add_u32 v{T[1]}, s{base_sgpr}, v{T[1]}
        v_mov_b32 v{T[0]}, 0
        s_mov_b32 s{sSpin}, {SPIN}
        L_wfl{u}:
        global_load_dwordx2 {vr(vN,2)}, v{T[0]}, s[{kDbg}:{kDbg+1}] sc1
        global_load_dwordx{4 if wide else 2} {vr(vF,4 if wide else 2)}, v{T[1]}, s[{kWs}:{kWs+1}] sc1
        {f"global_load_dwordx4 {vr(vF+4,4)}, v{T[1]}, s[{kWs}:{kWs+1}] offset:1024 sc1" if wide else ""}
        s_waitcnt vmcnt(0)
        v_cmp_eq_u32 s[{sM0}:{sM1}], 0, v{vN}
        """)
        for i in range(4 if wide else 1):
            a(f"""
            v_cmp_ne_u64 vcc, {vr(vN,2)}, {vr(vF+2*i,2)}
            s_or_b64 s[{sM0}:{sM1}], s[{sM0}:{sM1}], vcc
            """)
        a(f"""
        s_cbranch_scc0 L_wfd{u}
        s_sub_u32 s{sSpin}, s{sSpin}, 1
        s_cbranch_scc1 L_wfd{u}
        s_sleep {sleep}
        s_branch L_wfl{u}
        L_wfd{u}:
        s_barrier
        """)

    kernel_header(a, name)
    a(f"""
    s_cmp_ge_u32 s2, 512
    s_cbranch_scc1 L_end
    s_load_dwordx16 s[64:79], s[0:1], 0
    s_load_dwordx4 s[80:83], s[0:1], 64
    s_load_dwordx2 s[84:85], s[0:1], 80
    s_memrealtime s[46:47]
    {"s_memtime s[48:49]" if stamp else ""}
    s_setprio 3
    v_lshrrev_b32 v{T[0]}, 6, v0
    v_and_b32 v{vL}, 63, v0
    s_and_b32 s{sI}, s2, 255
    v_readfirstlane_b32 s{sW}, v{T[0]}
    s_and_b32 s{sT0}, s2, 7
    s_lshr_b32 s{sT1}, s{sI}, 3
    s_cmp_ge_u32 s2, 256
    s_cbranch_scc1 L_A
    """)
    R2 = RegAlloc(OVL)
    LX = [R2.alloc(f"LX{q}") for q in range(4)]; LW = [R2.alloc(f"LW{q}") for q in range(4)]
    bX = [R2.alloc(f"bX{k}") for k in range(4)]; bW = [R2.alloc(f"bW{k}") for k in range(2)]
    aX = [R2.alloc(f"aX{k}") for k in range(4)]; aW = [R2.alloc(f"aW{k}") for k in range(2)]
    FX = [[R2.alloc(f"FX{k}{s}", 4, 4) for s in range(2)] for k in range(4)]
    FW = [[R2.alloc(f"FW{k}{t}", 4, 4) for t in range(2)] for k in range(4)]
    AC = [[R2.alloc(f"AC{s}{t}", 16, 4) for t in range(2)] for s in range(2)]
    PK = R2.alloc("PK", 24, 4)
    nvmax.append(R2.n)

    def xfrag_bases(rowbase_sgpr):
        a(f"""
        v_and_b32 v{T[0]}, 31, v{vL}
        v_lshrrev_b32 v{T[1]}, 5, v{vL}
        v_bfe_u32 v{T[2]}, v{vL}, 1, 3
        v_xor_b32 v{T[2]}, v{T[2]}, v{T[1]}
        v_lshlrev_b32 v{T[3]}, 7, v{T[0]}
        """)
        if rowbase_sgpr is not None:
            a(f"v_add_u32 v{T[3]}, s{rowbase_sgpr}, v{T[3]}")
        for ks in range(4):
            a(f"v_xor_b32 v{T[4]}, {2*ks}, v{T[2]}")
            a(f"v_lshl_add_u32 v{bX[ks]}, v{T[4]}, 4, v{T[3]}")
    def xload_offsets(nq):
        a(f"""
        v_lshrrev_b32 v{T[0]}, 3, v{vL}
        s_mul_i32 s{sT2}, s{sW}, {8*nq}
        v_add_u32 v{T[0]}, s{sT2}, v{T[0]}
        v_mul_u32_u24 v{T[0]}, 1280, v{T[0]}
        v_and_b32 v{T[1]}, 7, v{vL}
        v_lshrrev_b32 v{T[2]}, 4, v{vL}
        v_xor_b32 v{T[1]}, v{T[1]}, v{T[2]}
        v_xor_b32 v{T[2]}, 4, v{T[1]}
        v_lshl_add_u32 v{LX[0]}, v{T[1]}, 4, v{T[0]}
        v_lshl_add_u32 v{LX[1]}, v{T[2]}, 4, v{T[0]}
        v_add_u32 v{LX[1]}, 10240, v{LX[1]}
        """)
        if nq == 4:
            a(f"v_add_u32 v{LX[2]}, 20480, v{LX[0]}")
            a(f"v_add_u32 v{LX[3]}, 20480, v{LX[1]}")

    def gemm_loop(tag, nX, nW, lastmask, XB, WBYTES, ST, NST, ld64, ntile, wrow, pi, pc):
        n = nX + nW
        AH = NST - 1
        a(f"""
        s_mul_i32 s{sM0}, s{sW}, {nX*1024}
        s_mul_i32 s{sM1}, s{sW}, {WBYTES//4}
        s_add_u32 s{sM1}, s{sM1}, {XB}
        s_mov_b32 s{sT3}, 0
        s_mov_b32 s{sC}, 0
        s_mov_b32 s{sSt}, 0
        s_setprio {pi}
        """)
        def dmas():
            d = []
            for q in range(nX):
                d.append(f"s_add_u32 m0, s{sM0}, {q*1024}\ns_nop 0\nbuffer_load_dwordx4 v{LX[q]}, s[8:11], s{sOx} offen lds")
            for q in range(nW):
                if q == nW - 1:
                    d.append(f"s_add_u32 m0, s{sM1}, {q*1024}\ns_mov_b32 exec_hi, {lastmask}\nbuffer_load_dwordx4 v{LW[q]}, s[12:15], s{sOw} offen lds\ns_mov_b32 exec_hi, -1")
                else:
                    d.append(f"s_add_u32 m0, s{sM1}, {q*1024}\ns_nop 0\nbuffer_load_dwordx4 v{LW[q]}, s[12:15], s{sOw} offen lds")
            if pi != pc:
                d = [f"s_setprio {pi}\n{x}\ns_setprio {pc}" for x in d]
            return d
        adv = f"""
        s_add_u32 s{sOx}, s{sOx}, 128
        s_add_u32 s{sOw}, s{sOw}, {ld64}
        s_cmp_eq_u32 s{sOx}, 1280
        s_cselect_b32 s{sOx}, 0, s{sOx}
        s_cselect_b32 s{sOw}, 0, s{sOw}
        s_add_u32 s{sT3}, s{sT3}, 1
        s_mov_b32 s{sT2}, {ST}
        s_cmp_eq_u32 s{sT3}, {NST}
        s_cmov_b32 s{sT2}, {(-(NST-1)*ST) & 0xffffffff}
        s_cmov_b32 s{sT3}, 0
        s_add_u32 s{sM0}, s{sM0}, s{sT2}
        s_add_u32 s{sM1}, s{sM1}, s{sT2}
        """
        a.label(f"L_{tag}_pre")
        for x in dmas(): a(x)
        a(adv)
        a(f"""
        s_cmp_lg_u32 s{sT3}, {AH}
        s_cbranch_scc1 L_{tag}_pre
        """)
        a.label(f"L_{tag}_loop")
        for ks in range(4): a(f"v_add_u32 v{aX[ks]}, s{sSt}, v{bX[ks]}")
        for t in range(ntile): a(f"v_add_u32 v{aW[t]}, s{sSt}, v{bW[t]}")
        a(f"""
        s_cmp_ge_u32 s{sC}, {10-AH}
        s_cselect_b32 s10, 0, s10
        s_cselect_b32 s14, 0, s14
        s_waitcnt vmcnt({(AH-1)*n})
        s_barrier
        """)
        if stamp and "qonly" in DBG:
            a(f"s_memtime s[88:89]\ns_mov_b32 m0, s{sC}\ns_waitcnt lgkmcnt(0)\ns_sub_u32 s88, s88, s48\nv_writelane_b32 v{vF}, s88, m0")
        per = 2 + 2 * ntile
        def rd(ks):
            for t in range(ntile):
                for hr in range(2):
                    a(f"ds_read_b64_tr_b16 {vr(FW[ks][t]+2*hr,2)}, v{aW[t]} offset:{XB + (16*ks+4*hr)*wrow}")
            for s in range(2):
                a(f"ds_read_b128 {vr(FX[ks][s],4)}, v{aX[ks]} offset:{s*4096}")
        d = dmas()
        rd(0); rd(1)
        a(d.pop(0))
        for ks in range(4):
            a(f"s_waitcnt lgkmcnt({per if ks < 3 else 0})")
            ms = [f"v_mfma_f32_32x32x16_bf16 {vr(AC[s][t],16)}, {vr(FW[ks][t],4)}, {vr(FX[ks][s],4)}, {vr(AC[s][t],16)}" for s in range(2) for t in range(ntile)]
            for i, m in enumerate(ms):
                a(m)
                if i == 0 and ks + 2 < 4: rd(ks + 2)
                elif d and (i > 0 or ks >= 2): a(d.pop(0))
        assert not d, d
        a(adv)
        a(f"""
        s_add_u32 s{sSt}, s{sSt}, {ST}
        s_cmp_eq_u32 s{sSt}, {ST*NST}
        s_cselect_b32 s{sSt}, 0, s{sSt}
        s_add_u32 s{sC}, s{sC}, 1
        s_cmp_lt_u32 s{sC}, 10
        s_cbranch_scc1 L_{tag}_loop
        s_waitcnt vmcnt(0)
        """)

    def q_pack(s, q0, q1):
        c = AC[s][0]
        for r in range(12): a(f"v_mul_f32 v{c+r}, 0x{QSCALE:x}, v{c+r}")
        for r in range(4): a(f"v_cvt_pk_bf16_f32 v{q0+r}, v{c+2*r}, v{c+2*r+1}")
        a(f"v_cvt_pk_bf16_f32 v{T[2]}, v{c+8}, v{c+9}")
        a(f"v_cvt_pk_bf16_f32 v{T[3]}, v{c+10}, v{c+11}")
        a(f"v_cndmask_b32 v{q1}, v{T[3]}, v{T[2]}, vcc")

    a(f"""
    s_lshr_b32 s{sP0}, s{sT0}, 1
    s_lshl_b32 s{sP0}, s{sP0}, 3
    s_and_b32 s{sT2}, s{sT1}, 7
    s_add_u32 s{sP0}, s{sP0}, s{sT2}
    s_and_b32 s{sP1}, s{sT0}, 1
    s_lshl_b32 s{sP1}, s{sP1}, 2
    s_lshr_b32 s{sT3}, s{sT1}, 3
    s_add_u32 s{sP1}, s{sP1}, s{sT3}
    s_mul_i32 s{sRot}, s{sT3}, 3
    s_add_u32 s{sRot}, s{sRot}, s{sT2}
    s_cmp_ge_u32 s{sRot}, 10
    s_cselect_b32 s{sT2}, 10, 0
    s_sub_u32 s{sRot}, s{sRot}, s{sT2}
    s_lshl_b32 s{sOx}, s{sRot}, 7
    s_mul_i32 s{sOw}, s{sRot}, {64*1280}
    """)
    xload_offsets(2)
    a(f"s_mul_i32 s{sT2}, s{sW}, {16*1280}")
    for q in range(3):
        a(f"v_add_u32 v{T[0]}, {64*q}, v{vL}")
        divc(T[1], T[2], T[0], 10, 6554, 16)
        a(f"v_mul_u32_u24 v{T[1]}, 1280, v{T[1]}")
        a(f"v_lshl_add_u32 v{T[1]}, v{T[2]}, 4, v{T[1]}")
        a(f"v_add_u32 v{LW[q]}, s{sT2}, v{T[1]}")
    a(f"""
    s_mul_i32 s{sT2}, s{sP0}, {64*1280}
    s_mul_i32 s{sT3}, s{sP1}, 160
    s_sub_u32 s{sT1}, {640*1280}, s{sT3}
    s_waitcnt lgkmcnt(0)
    """)
    srd(8, kBx, f"s{sT2}", 64*1280)
    srd(12, kBq, f"s{sT3}", f"s{sT1}")
    if "noW" in DBG: a("s_mov_b32 s14, 0")
    if "noX" in DBG: a("s_mov_b32 s10, 0")
    if "norot" in DBG: a(f"s_mov_b32 s{sOx}, 0\ns_mov_b32 s{sOw}, 0")
    a.c("nonce by WG 0 wave 0")
    a(f"""
    s_add_u32 s{sT1}, s2, s{sW}
    s_cmp_lg_u32 s{sT1}, 0
    s_cbranch_scc1 L_nononce
    s_or_b32 s{sT1}, s46, 1
    v_mov_b32 v{vN}, s{sT1}
    v_mov_b32 v{vN+1}, s47
    v_mov_b32 v{T[0]}, 0
    s_mov_b64 exec, 1
    global_store_dwordx2 v{T[0]}, {vr(vN,2)}, s[{kDbg}:{kDbg+1}] sc1
    s_mov_b64 exec, -1
    L_nononce:
    """)
    xfrag_bases(None)
    a(f"""
    v_bfe_u32 v{T[2]}, v{vL}, 4, 1
    v_and_b32 v{T[3]}, 3, v{vL}
    v_lshl_add_u32 v{T[2]}, v{T[2]}, 2, v{T[3]}
    v_min_u32 v{T[2]}, 4, v{T[2]}
    v_bfe_u32 v{T[3]}, v{vL}, 2, 2
    v_lshl_add_u32 v{T[3]}, v{T[1]}, 3, v{T[3]}
    v_mul_u32_u24 v{T[3]}, 160, v{T[3]}
    v_lshl_add_u32 v{T[3]}, v{T[2]}, 3, v{T[3]}
    s_mul_i32 s{sT2}, s{sW}, 40
    v_add_u32 v{bW[0]}, s{sT2}, v{T[3]}
    """)
    for s in range(2):
        for r in range(16): a(f"v_mov_b32 v{AC[s][0]+r}, 0")
    mark(0)
    gemm_loop("qb", 2, 3, "0", 8192, 10240, 18432, 4, 64*1280, 1, 160, 2, 2)
    mark(1)
    if "qonly" in DBG: a("s_branch L_fin")
    a(f"v_cmp_gt_u32 vcc, 32, v{vL}")
    for s in range(2): q_pack(s, Q0[s], Q1[s])
    a(f"""
    s_lshl_b32 s{sHead}, s{sP1}, 2
    s_add_u32 s{sHead}, s{sHead}, s{sW}
    s_lshl_b32 s{sTok}, s{sP0}, 6
    s_mov_b32 s{sBr}, 1
    s_and_b32 s{sRot}, s{sI}, 15
    s_mov_b32 s{sSw}, 100
    s_lshl_b32 s{sFl}, s{sP0}, 7
    s_lshl_b32 s{sT2}, s{sP1}, 3
    s_add_u32 s{sFl}, s{sFl}, s{sT2}
    s_add_u32 s{sFl}, s{sFl}, {F3}
    s_mov_b32 s{sT3}, {F1}
    """)
    srd(8, kWs, KV_OFF + 32 * KV_SET, KV_SET)
    wait_flags(sT3, 63, wide=True)
    a("s_setprio 2")
    mark(2)
    a("s_branch L_attn")

    a.label("L_A")
    if "noA" in DBG: a("s_waitcnt lgkmcnt(0)\ns_branch L_fin")
    R3 = RegAlloc(OVL)
    SX = [R3.alloc(f"SX{q}") for q in range(5)]; SWv = R3.alloc("SW")
    sa = [R3.alloc(f"sa{k}") for k in range(4)]; sw = R3.alloc("sw"); so = R3.alloc("so")
    GX = [R3.alloc(f"GX{k}", 4, 4) for k in range(4)]; GW = [R3.alloc(f"GW{k}", 4, 4) for k in range(4)]
    GC = R3.alloc("GC", 4, 4)
    a(f"""
    s_lshr_b32 s{sP0}, s{sT0}, 1
    s_lshl_b32 s{sP0}, s{sP0}, 5
    s_add_u32 s{sP0}, s{sP0}, s{sT1}
    s_and_b32 s{sP1}, s{sT0}, 1
    v_lshlrev_b32 v{SWv}, 4, v{vL}
    s_mul_i32 s{sOw}, s{sW}, 6144
    s_mul_i32 s{sT2}, s{sW}, 320
    """)
    for q in range(5):
        a(f"v_add_u32 v{T[0]}, {64*q}, v{vL}")
        a(f"v_add_u32 v{T[0]}, s{sT2}, v{T[0]}")
        divc(T[1], T[2], T[0], 80, 13108, 20)
        a(f"v_xor_b32 v{T[2]}, v{T[2]}, v{T[1]}")
        a(f"v_mul_u32_u24 v{T[1]}, 1280, v{T[1]}")
        a(f"v_lshl_add_u32 v{SX[q]}, v{T[2]}, 4, v{T[1]}")
    a(f"""
    s_mul_i32 s{sT2}, s{sP0}, 20480
    s_mov_b32 s14, 25600
    s_mov_b32 s15, 0x00020000
    s_mul_i32 s{sM0}, s{sW}, 5120
    s_cmp_eq_u32 s{sP1}, 0
    s_waitcnt lgkmcnt(0)
    s_cselect_b32 s12, s{kBk}, s{kBv}
    s_cselect_b32 s13, s{kBk+1}, s{kBv+1}
    """)
    srd(8, kBx, f"s{sT2}", 20480)
    for q in range(7):
        a(f"s_add_u32 m0, s{sOw}, {20480 + q*1024}")
        a(f"s_add_u32 s{sOx}, s{sOw}, {q*1024}")
        a(f"buffer_load_dwordx4 v{SWv}, s[12:15], s{sOx} offen lds")
    for q in range(5):
        a(f"s_add_u32 m0, s{sM0}, {q*1024}")
        a("s_nop 0")
        a(f"buffer_load_dwordx4 v{SX[q]}, s[8:11], 0 offen lds")
    a(f"""
    v_and_b32 v{T[0]}, 15, v{vL}
    v_lshrrev_b32 v{T[1]}, 4, v{vL}
    v_xor_b32 v{T[2]}, v{T[0]}, v{T[1]}
    v_mul_u32_u24 v{T[3]}, 1280, v{T[0]}
    """)
    for k in range(4):
        a(f"v_xor_b32 v{T[4]}, {4*k}, v{T[2]}")
        a(f"v_lshl_add_u32 v{sa[k]}, v{T[4]}, 4, v{T[3]}")
    a(f"""
    s_and_b32 s{sT2}, s{sW}, 1
    v_lshrrev_b32 v{T[2]}, 2, v{T[0]}
    v_lshl_add_u32 v{T[2]}, v{T[1]}, 3, v{T[2]}
    v_mul_u32_u24 v{T[2]}, 40, v{T[2]}
    v_and_b32 v{T[3]}, 3, v{vL}
    s_cmp_eq_u32 s{sT2}, 0
    s_cselect_b32 s{sT1}, 8, 0
    v_mad_u32_u24 v{T[2]}, v{T[3]}, s{sT1}, v{T[2]}
    s_lshl_b32 s{sT1}, s{sT2}, 5
    s_add_u32 s{sT1}, s{sT1}, 20480
    v_add_u32 v{sw}, s{sT1}, v{T[2]}
    """)
    a.c("store offsets ; role r = 2*kv + (w&1) in sC")
    a(f"""
    s_lshl_b32 s{sC}, s{sP1}, 1
    s_add_u32 s{sC}, s{sC}, s{sT2}
    s_lshr_b32 s{sT1}, s{sP0}, 1
    s_mul_i32 s{sT1}, s{sT1}, {TILE}
    s_and_b32 s{sT3}, s{sP0}, 1
    v_and_b32 v{T[4]}, 1, v{T[1]}
    v_lshrrev_b32 v{T[5]}, 1, v{T[1]}
    s_cmp_eq_u32 s{sC}, 1
    s_cbranch_scc1 L_so1
    s_cmp_ge_u32 s{sC}, 2
    s_cbranch_scc1 L_so2
    s_lshl_b32 s{sT3}, s{sT3}, 8
    s_add_u32 s{sT1}, s{sT1}, s{sT3}
    v_lshlrev_b32 v{so}, 9, v{T[4]}
    v_lshl_add_u32 v{so}, v{T[5]}, 3, v{so}
    v_lshl_add_u32 v{so}, v{T[0]}, 4, v{so}
    s_branch L_so3
    L_so1:
    s_lshl_b32 s{sT3}, s{sT3}, 7
    s_add_u32 s{sT1}, s{sT1}, s{sT3}
    s_add_u32 s{sT1}, s{sT1}, 1024
    v_lshlrev_b32 v{so}, 20, v{T[1]}
    v_lshl_add_u32 v{so}, v{T[0]}, 3, v{so}
    s_branch L_so3
    L_so2:
    s_mul_i32 s{sT3}, s{sT3}, 672
    s_add_u32 s{sT1}, s{sT1}, s{sT3}
    s_add_u32 s{sT1}, s{sT1}, 1280
    s_lshl_b32 s{sT3}, s{sT2}, 8
    s_add_u32 s{sT1}, s{sT1}, s{sT3}
    v_mul_u32_u24 v{so}, 336, v{T[5]}
    v_lshl_add_u32 v{so}, v{T[4]}, 3, v{so}
    v_lshl_add_u32 v{so}, v{T[0]}, 4, v{so}
    s_cmp_eq_u32 s{sC}, 2
    s_cbranch_scc1 L_so3
    v_cmp_lt_u32 vcc, 4, v{T[0]}
    v_mov_b32 v{T[6]}, {BIG}
    s_nop 0
    v_cndmask_b32 v{so}, v{so}, v{T[6]}, vcc
    L_so3:
    v_add_u32 v{so}, s{sT1}, v{so}
    v_mov_b32 v{GC}, 0
    v_mov_b32 v{GC+1}, 0
    v_mov_b32 v{GC+2}, 0
    v_mov_b32 v{GC+3}, 0
    s_lshl_b32 s{sFl}, s{sI}, 3
    s_add_u32 s{sFl}, s{sFl}, {F1}
    """)
    srd(16, kWs, KV_OFF + 32 * KV_SET, KV_SET)
    a("s_waitcnt vmcnt(0)\ns_barrier")
    mark(0)
    a.c("waves 2,3 compute (wave 0 fetches the nonce meanwhile)")
    a(f"s_cmp_lt_u32 s{sW}, 2\ns_cbranch_scc1 L_slP")
    a(f"s_cmp_eq_u32 s{sP1}, 1\ns_cbranch_scc1 L_slV")
    for orient in ("T", "F"):
        if orient == "F": a.label("L_slV")
        def rd(ks):
            b = ks % 4
            a(f"ds_read_b128 {vr(GX[b],4)}, v{sa[ks%4]} offset:{(ks//4)*256}")
            for hr in range(2):
                a(f"ds_read_b64_tr_b16 {vr(GW[b]+2*hr,2)}, v{sw} offset:{ks*1280+hr*160}")
        for ks in range(3): rd(ks)
        for ks in range(20):
            if ks + 3 < 20: rd(ks + 3)
            a(f"s_waitcnt lgkmcnt({3*min(3, 19-ks)})")
            b = ks % 4
            A_, B_ = (GW[b], GX[b]) if orient == "T" else (GX[b], GW[b])
            a(f"v_mfma_f32_16x16x32_bf16 {vr(GC,4)}, {vr(A_,4)}, {vr(B_,4)}, {vr(GC,4)}")
        if orient == "T": a("s_branch L_slS")
    a.label("L_slS")
    a(f"""
    s_cmp_eq_u32 s{sC}, 3
    s_cselect_b32 s{sT1}, 4, 64
    v_cmp_eq_u32 vcc, s{sT1}, v{T[0]}
    v_mov_b32 v{T[6]}, 0x3f803f80
    s_nop 4
    v_cvt_pk_bf16_f32 v{GX[0]}, v{GC}, v{GC+1}
    v_cvt_pk_bf16_f32 v{GX[0]+1}, v{GC+2}, v{GC+3}
    v_cndmask_b32 v{GX[0]}, v{GX[0]}, v{T[6]}, vcc
    v_cndmask_b32 v{GX[0]+1}, v{GX[0]+1}, v{T[6]}, vcc
    buffer_store_dwordx2 {vr(GX[0],2)}, v{so}, s[16:19], 0 offen {SC}
    L_slP:
    """)
    publish(sFl)
    mark(1)
    if "qonly" in DBG: a("s_branch L_fin")
    a.label("L_Aproj")
    a(f"""
    s_setprio 1
    s_and_b32 s{sT0}, s{sI}, 7
    s_lshr_b32 s{sT1}, s{sI}, 3
    s_lshl_b32 s{sP0}, s{sT0}, 1
    s_and_b32 s{sT2}, s{sT1}, 1
    s_add_u32 s{sP0}, s{sP0}, s{sT2}
    s_lshr_b32 s{sP1}, s{sT1}, 1
    s_mul_i32 s{sRot}, s{sT2}, 5
    s_add_u32 s{sRot}, s{sRot}, s{sP1}
    s_cmp_ge_u32 s{sRot}, 10
    s_cselect_b32 s{sT2}, 10, 0
    s_sub_u32 s{sRot}, s{sRot}, s{sT2}
    s_cmp_ge_u32 s{sRot}, 10
    s_cselect_b32 s{sT2}, 10, 0
    s_sub_u32 s{sRot}, s{sRot}, s{sT2}
    s_lshl_b32 s{sOx}, s{sRot}, 7
    s_mul_i32 s{sOw}, s{sRot}, {64*3840}
    """)
    xload_offsets(4)
    a(f"s_mul_i32 s{sT2}, s{sW}, {16*3840}")
    for q in range(4):
        a(f"v_add_u32 v{T[0]}, {64*q}, v{vL}")
        divc(T[1], T[2], T[0], 15, 4370, 16)
        divc(T[3], T[4], T[2], 5, 52, 8)
        a(f"""
        v_mul_u32_u24 v{T[1]}, 3840, v{T[1]}
        v_mul_u32_u24 v{T[3]}, 1280, v{T[3]}
        v_lshl_add_u32 v{T[1]}, v{T[4]}, 4, v{T[1]}
        v_add3_u32 v{LW[q]}, v{T[1]}, v{T[3]}, s{sT2}
        """)
    a(f"""
    s_mul_i32 s{sT2}, s{sP1}, {128*1280}
    s_mul_i32 s{sT3}, s{sP0}, 80
    s_sub_u32 s{sT1}, {640*3840}, s{sT3}
    s_waitcnt lgkmcnt(0)
    """)
    srd(8, kAx, f"s{sT2}", 128*1280)
    srd(12, kAw, f"s{sT3}", f"s{sT1}")
    a(f"""
    s_and_b32 s{sT2}, s{sW}, 1
    s_lshl_b32 s{sT2}, s{sT2}, 13
    """)
    xfrag_bases(sT2)
    a(f"""
    v_bfe_u32 v{T[2]}, v{vL}, 4, 1
    v_and_b32 v{T[3]}, 3, v{vL}
    v_lshl_add_u32 v{T[2]}, v{T[2]}, 2, v{T[3]}
    v_bfe_u32 v{T[3]}, v{vL}, 2, 2
    v_lshl_add_u32 v{T[3]}, v{T[1]}, 3, v{T[3]}
    v_mul_u32_u24 v{T[3]}, 240, v{T[3]}
    s_lshr_b32 s{sT2}, s{sW}, 1
    s_mul_i32 s{sT2}, s{sT2}, 40
    v_add_u32 v{T[3]}, s{sT2}, v{T[3]}
    v_min_u32 v{T[4]}, 4, v{T[2]}
    v_add_u32 v{T[5]}, 4, v{T[2]}
    v_cmp_lt_u32 vcc, 5, v{T[2]}
    v_add_u32 v{T[6]}, 12, v{T[2]}
    v_add_u32 v{T[7]}, 17, v{T[2]}
    v_cndmask_b32 v{T[4]}, v{T[4]}, v{T[5]}, vcc
    v_cmp_lt_u32 vcc, 2, v{T[2]}
    v_lshl_add_u32 v{bW[0]}, v{T[4]}, 3, v{T[3]}
    s_nop 0
    v_cndmask_b32 v{T[6]}, v{T[6]}, v{T[7]}, vcc
    v_lshl_add_u32 v{bW[1]}, v{T[6]}, 3, v{T[3]}
    """)
    for s in range(2):
        for t in range(2):
            for r in range(16): a(f"v_mov_b32 v{AC[s][t]+r}, 0")
    if GATE:
        a(f"s_mov_b32 s{sT3}, {F1}")
        wait_flags(sT3, 63, wide=True, sleep=8)
    mark(2)
    gemm_loop("qa", 4, 4, "0xffff", 16384, 15360, 31744, 2, 64*3840, 2, 240, 0, 3)
    mark(3)
    a.c("A-proj epilogue: head = 2hp + w/2 ; tile0 = 4mt + 2(w&1)")
    VT = 63488
    a(f"""
    s_lshr_b32 s{sT0}, s{sW}, 1
    s_lshl_b32 s{sT1}, s{sP0}, 1
    s_add_u32 s{sT0}, s{sT0}, s{sT1}
    s_and_b32 s{sT1}, s{sW}, 1
    s_lshl_b32 s{sT1}, s{sT1}, 1
    s_lshl_b32 s{sT2}, s{sP1}, 2
    s_add_u32 s{sT1}, s{sT1}, s{sT2}
    s_mul_i32 s{sT2}, s{sT0}, {64*1280}
    s_mul_i32 s{sT3}, s{sT1}, 1280
    s_add_u32 s{sT2}, s{sT2}, s{sT3}
    s_add_u32 s{sT2}, s{sT2}, {QA_OFF}
    """)
    srd(8, kWs, f"s{sT2}", 2560)
    a(f"""
    s_mul_i32 s{sT2}, s{sT0}, {KV_SET}
    s_mul_i32 s{sT3}, s{sT1}, {TILE}
    s_add_u32 s{sT2}, s{sT2}, s{sT3}
    """)
    srd(12, kWs, f"s{sT2}", 2 * TILE)
    e16, e4, e8, ew, er, es = LX[0], LX[1], LX[2], LX[3], LW[0], LW[1]
    a(f"""
    v_lshlrev_b32 v{e16}, 4, v{vL}
    v_lshlrev_b32 v{e4}, 2, v{vL}
    v_lshrrev_b32 v{T[1]}, 5, v{vL}
    v_lshlrev_b32 v{e8}, 3, v{vL}
    v_lshl_add_u32 v{e8}, v{T[1]}, 20, v{e8}
    s_mul_i32 s{sT0}, s{sW}, 3072
    s_add_u32 s{sT0}, s{sT0}, {VT}
    v_bfe_u32 v{T[2]}, v{vL}, 3, 2
    v_mul_u32_u24 v{T[2]}, 336, v{T[2]}
    v_and_b32 v{T[3]}, 7, v{vL}
    v_lshl_add_u32 v{T[2]}, v{T[3]}, 1, v{T[2]}
    v_lshl_add_u32 v{T[2]}, v{T[1]}, 6, v{T[2]}
    v_add_u32 v{ew}, s{sT0}, v{T[2]}
    v_add_u32 v{er}, s{sT0}, v{e16}
    v_cmp_gt_u32 vcc, 32, v{vL}
    """)
    for s in range(2):
        q_pack(s, PK, PK + 4)
        a(f"buffer_store_dwordx4 {vr(PK,4)}, v{e16}, s[8:11], 0 offen offset:{1280*s} {SC}")
        a(f"buffer_store_dword v{PK+4}, v{e4}, s[8:11], 0 offen offset:{1280*s+1024} {SC}")
        c0, c1 = AC[s][0], AC[s][1]
        p = PK + 8 + 8 * s
        a(f"""
        v_cvt_pk_bf16_f32 v{p}, v{c0+12}, v{c0+13}
        v_cvt_pk_bf16_f32 v{p+1}, v{c0+14}, v{c0+15}
        v_cvt_pk_bf16_f32 v{p+2}, v{c1}, v{c1+1}
        v_cvt_pk_bf16_f32 v{p+3}, v{c1+2}, v{c1+3}
        buffer_store_dwordx4 {vr(p,4)}, v{e16}, s[12:15], 0 offen offset:{TILE*s} {SC}
        v_cvt_pk_bf16_f32 v{p+4}, v{c1+4}, v{c1+5}
        v_cvt_pk_bf16_f32 v{p+5}, v{c1+6}, v{c1+7}
        buffer_store_dwordx2 {vr(p+4,2)}, v{e8}, s[12:15], 0 offen offset:{TILE*s+1024} {SC}
        v_cvt_pk_bf16_f32 v{c1+8}, v{c1+8}, v{c1+9}
        v_cvt_pk_bf16_f32 v{c1+9}, v{c1+10}, v{c1+11}
        v_cvt_pk_bf16_f32 v{c1+10}, v{c1+12}, v{c1+13}
        v_cvt_pk_bf16_f32 v{c1+11}, v{c1+14}, v{c1+15}
        """)
        o = 64 + 1344 * s
        for rq, base in ((2, c1 + 8), (3, c1 + 10)):
            d0 = 4 if rq == 2 else 12
            for i in range(4):
                op = "ds_write_b16" if i % 2 == 0 else "ds_write_b16_d16_hi"
                a(f"{op} v{ew}, v{base + i//2} offset:{o + (d0 + i) * 16}")
        a("s_mov_b32 exec_lo, 0")
        for i in range(4):
            op = "ds_write_b16" if i % 2 == 0 else "ds_write_b16_d16_hi"
            a(f"{op} v{ew}, v{p + 4 + i//2} offset:{o - 64 + i * 16}")
        a(f"v_mov_b32 v{T[4]}, 0x3f80")
        a(f"ds_write_b16 v{ew}, v{T[4]} offset:{o - 64 + 320}")
        a("s_mov_b32 exec_lo, -1")
    a("s_waitcnt lgkmcnt(0)")
    for q in range(3):
        a(f"ds_read_b128 {vr(AC[0][0]+4*q,4)}, v{er} offset:{64 + 1024*q}")
    for q in range(3):
        a(f"""
        v_add_u32 v{T[0]}, {64*q}, v{vL}
        v_cmp_le_u32 vcc, 84, v{T[0]}
        v_lshlrev_b32 v{T[1]}, 4, v{T[0]}
        v_add_u32 v{T[2]}, 1280, v{T[1]}
        v_cndmask_b32 v{T[1]}, v{T[1]}, v{T[2]}, vcc
        s_waitcnt lgkmcnt({2-q})
        buffer_store_dwordx4 {vr(AC[0][0]+4*q,4)}, v{T[1]}, s[12:15], 0 offen offset:1280 {SC}
        """)
    a(f"""
    s_lshl_b32 s{sT3}, s{sP0}, 7
    s_add_u32 s{sT3}, s{sT3}, {F2}
    s_lshl_b32 s{sFl}, s{sP1}, 3
    s_add_u32 s{sFl}, s{sFl}, s{sT3}
    """)
    publish(sFl)
    mark(4)
    a.c("attention unit: head = 2hp + (mt&1), tq = mt/2")
    a(f"""
    s_lshl_b32 s{sHead}, s{sP0}, 1
    s_and_b32 s{sT0}, s{sP1}, 1
    s_add_u32 s{sHead}, s{sHead}, s{sT0}
    s_lshr_b32 s{sT1}, s{sP1}, 1
    s_lshl_b32 s{sTok}, s{sT1}, 8
    s_lshl_b32 s{sT0}, s{sW}, 6
    s_add_u32 s{sTok}, s{sTok}, s{sT0}
    s_mov_b32 s{sBr}, 0
    s_lshl_b32 s{sRot}, s{sT1}, 1
    s_mov_b32 s{sSw}, {ASW}
    s_lshl_b32 s{sFl}, s{sT1}, 8
    s_lshl_b32 s{sT2}, s{sHead}, 3
    s_add_u32 s{sFl}, s{sFl}, s{sT2}
    s_add_u32 s{sFl}, s{sFl}, {F4}
    s_mul_i32 s{sT2}, s{sHead}, {64*1280}
    s_mul_i32 s{sT0}, s{sTok}, 40
    s_add_u32 s{sT2}, s{sT2}, s{sT0}
    s_add_u32 s{sT2}, s{sT2}, {QA_OFF}
    """)
    srd(12, kWs, f"s{sT2}", 2560)
    a(f"s_mul_i32 s{sT2}, s{sHead}, {KV_SET}")
    srd(8, kWs, f"s{sT2}", KV_SET)
    wait_flags(sT3, 15, sleep=4)
    for s in range(2):
        a(f"buffer_load_dwordx4 {vr(Q0[s],4)}, v{e16}, s[12:15], 0 offen offset:{1280*s} {SC}")
        a(f"buffer_load_dword v{Q1[s]}, v{e4}, s[12:15], 0 offen offset:{1280*s+1024} {SC}")
    mark(5)

    a.label("L_attn")
    a(f"""
    v_lshlrev_b32 v{vK}, 4, v{vL}
    s_mul_i32 s{sGo}, s{sRot}, {GROUP}
    s_mul_i32 s{sT0}, s{sW}, 3072
    """)
    for q in range(3):
        a(f"s_add_u32 s{sD[q]}, s{sT0}, {q*1024}")
        a(f"s_min_u32 s{sD[q]}, s{sD[q]}, {GROUP-1024}")
        a(f"v_add_u32 v{vD[q]}, s{sD[q]}, v{vK}")
    def go_next():
        return [f"s_add_u32 s{sGo}, s{sGo}, {GROUP}", f"s_cmp_eq_u32 s{sGo}, {KV_SET}", f"s_cselect_b32 s{sGo}, 0, s{sGo}"]
    for g in range(3):
        for q in range(3):
            a(f"s_add_u32 m0, s{sD[q]}, {g*GROUP}")
            a("s_nop 0")
            a(f"buffer_load_dwordx4 v{vD[q]}, s[8:11], s{sGo} offen {SC} lds")
        for x in go_next(): a(x)
    a(f"""
    v_and_b32 v{T[0]}, 31, v{vL}
    v_lshrrev_b32 v{T[1]}, 5, v{vL}
    v_lshlrev_b32 v{vK1}, 3, v{T[0]}
    v_lshl_add_u32 v{vK1}, v{T[1]}, 2, v{vK1}
    v_and_b32 v{T[2]}, 27, v{vL}
    v_cmp_eq_u32 vcc, 24, v{T[2]}
    v_mov_b32 v{T[3]}, 20
    v_mov_b32 v{T[4]}, {BIG}
    v_cndmask_b32 v{T[2]}, v{T[0]}, v{T[3]}, vcc
    v_mul_u32_u24 v{vV}, 336, v{T[1]}
    v_lshl_add_u32 v{vV}, v{T[2]}, 4, v{vV}
    v_cmp_lt_u32 vcc, 20, v{T[2]}
    v_mov_b32 v{vIdx}, 0xdddddddd
    v_mov_b32 v{K1[0]+1}, 0x3f80
    v_cndmask_b32 v{vV}, v{vV}, v{T[4]}, vcc
    v_cmp_eq_u32 vcc, 20, v{T[0]}
    v_mov_b32 v{K1[1]+1}, 0x3f80
    v_mov_b32 v{Q1[0]+1}, 0
    v_cndmask_b32 v{vV}, v{vV}, v{T[4]}, vcc
    v_mov_b32 v{Q1[1]+1}, 0
    s_mul_i32 s{sT0}, s{sBr}, {O_BR}
    s_add_u32 s{sT0}, s{sT0}, {O_OFF}
    """)
    srd(16, kWs, f"s{sT0}", O_BR)
    a(f"""
    s_lshl_b32 s{sT0}, s{sHead}, 16
    s_lshl_b32 s{sT1}, s{sTok}, 4
    s_add_u32 s{sT0}, s{sT0}, s{sT1}
    v_lshlrev_b32 v{vOst}, 15, v{T[1]}
    v_lshl_add_u32 v{vOst}, v{T[0]}, 4, v{vOst}
    v_add_u32 v{vOst}, s{sT0}, v{vOst}
    s_lshl_b32 s{sT0}, s{sHead}, 14
    s_lshl_b32 s{sT1}, s{sTok}, 3
    s_add_u32 s{sT0}, s{sT0}, s{sT1}
    s_add_u32 s{sT0}, s{sT0}, {O_TAIL}
    v_lshlrev_b32 v{vOst2}, 3, v{T[0]}
    v_lshl_add_u32 v{vOst2}, v{T[1]}, 24, v{vOst2}
    v_add_u32 v{vOst2}, s{sT0}, v{vOst2}
    """)
    for s in range(2):
        for r in range(16): a(f"v_mov_b32 v{O[s]+r}, 0")
    for r in range(8, 16): a(f"v_mov_b32 v{S[1][1]+r}, 0")
    for r in range(4): a(f"v_mov_b32 v{V[1][1]+r}, 0")
    def qk1(s, Tt, dst=None):
        p = Tt % 2
        return f"v_mfma_f32_32x32x16_bf16 {vr(S[s][p],16)}, {vr(K0[p],4)}, {vr(Q0[s],4)}, 0"
    def qk2(s, Tt):
        p = Tt % 2
        return f"v_mfma_f32_32x32x8_bf16 {vr(S[s][p],16)}, {vr(K1[p],2)}, {vr(Q1[s],2)}, {vr(S[s][p],16)}"
    def pv(s, Tt, h):
        p = Tt % 2
        return f"v_smfmac_f32_32x32x32_bf16 {vr(O[s],16)}, {vr(V[p][h],4)}, {vr(S[s][p]+8*h,8)}, v{vIdx}"
    def toff(Tt): return (Tt % 16) * TILE
    def rowmax(first):
        for s in range(2):
            x = S[s][0]
            if first:
                a(f"v_max3_f32 v{vM[s]}, v{x}, v{x+1}, v{x+2}")
                for r in range(3, 15, 2): a(f"v_max3_f32 v{vM[s]}, v{x+r}, v{x+r+1}, v{vM[s]}")
                a(f"v_max_f32 v{vM[s]}, v{x+15}, v{vM[s]}")
            else:
                for r in range(0, 16, 2): a(f"v_max3_f32 v{vM[s]}, v{x+r}, v{x+r+1}, v{vM[s]}")
    def crossmax():
        a(f"""
        v_mov_b32 v{T[0]}, v{vM[0]}
        v_mov_b32 v{T[1]}, v{vM[1]}
        s_nop 1
        v_permlane32_swap_b32 v{T[0]}, v{vM[0]}
        v_permlane32_swap_b32 v{T[1]}, v{vM[1]}
        s_nop 1
        v_max_f32 v{vM[0]}, v{vM[0]}, v{T[0]}
        v_max_f32 v{vM[1]}, v{vM[1]}, v{T[1]}
        """)
    a(f"""
    s_waitcnt vmcnt(6)
    s_barrier
    """)
    mark(6)
    a(f"""
    ds_read_b128 {vr(K0[0],4)}, v{vK}
    ds_read_b32 v{K1[0]}, v{vK1} offset:1024
    ds_read_b128 {vr(K0[1],4)}, v{vK} offset:{TILE}
    ds_read_b32 v{K1[1]}, v{vK1} offset:{TILE+1024}
    ds_read_b128 {vr(V[0][0],4)}, v{vV} offset:1280
    ds_read_b128 {vr(V[0][1],4)}, v{vV} offset:{1280+672}
    s_waitcnt lgkmcnt(4)
    {qk1(0,0)}
    {qk2(0,0)}
    {qk1(1,0)}
    {qk2(1,0)}
    v_cmp_gt_u32 vcc, 32, v{vL}
    s_nop 8
    """)
    rowmax(True)
    crossmax()
    for s in range(2):
        a(f"""
        v_sub_f32 v{T[2]}, 0, v{vM[s]}
        v_and_b32 v{T[3]}, 0xffff0000, v{T[2]}
        v_sub_f32 v{T[4]}, v{T[2]}, v{T[3]}
        v_and_b32 v{T[4]}, 0xffff0000, v{T[4]}
        v_cndmask_b32 v{T[5]}, v{T[4]}, v{T[3]}, vcc
        v_lshrrev_b32 v{Q1[s]+1}, 16, v{T[5]}
        v_add_f32 v{T[6+s]}, v{T[3]}, v{T[4]}
        """)
    for s in range(2):
        for r in range(16): a(f"v_add_f32 v{S[s][0]+r}, v{S[s][0]+r}, v{T[6+s]}")
    a(f"""
    s_mov_b32 s{sC}, 0
    s_waitcnt lgkmcnt(0)
    """)
    mark(7)
    a.raw(".p2align 6")
    a.label("L_loop")
    for u in range(4):
        free = {}
        tgt = ((u + 3) % 4) * GROUP
        dma = lambda q: f"buffer_load_dwordx4 v{vD[q]}, s[8:11], s{sGo} offen {SC} lds"
        m0 = lambda q: f"s_add_u32 m0, s{sD[q]}, {tgt}"
        free[(1, 2)] = "s_waitcnt vmcnt(3)"; free[(1, 3)] = "s_barrier"
        free[(1, 4)] = m0(0); free[(1, 5)] = dma(0)
        free[(2, 1)] = m0(1); free[(2, 2)] = dma(1); free[(2, 3)] = m0(2); free[(2, 4)] = dma(2)
        gn = go_next()
        free[(2, 5)] = gn[0]; free[(3, 1)] = gn[1]; free[(3, 2)] = gn[2]
        if u == 0:
            free[(3, 3)] = f"s_cmp_eq_u32 s{sC}, 3"; free[(3, 4)] = "s_cselect_b32 s10, 0, s10"
        if u == 3:
            free[(3, 3)] = f"s_add_u32 s{sC}, s{sC}, 1"; free[(3, 4)] = f"s_cmp_eq_u32 s{sC}, s{sSw}"; free[(3, 5)] = "s_cbranch_scc1 L_prio\nL_prio_ret:"
        if stamp:
            free[(0, 2)] = "s_memtime s[88:89]"
            free[(0, 3)] = f"s_lshl_b32 s90, s{sC}, 2"
            free[(0, 4)] = f"s_add_u32 m0, s90, {u}"
            free[(0, 5)] = f"s_sub_u32 s88, s88, s48\nv_writelane_b32 v{vF}, s88, m0"
        def fr(tt, k):
            if (tt, k) in free: a(free[(tt, k)])
        for tt in range(4):
            Tt = 16 + 4 * u + tt
            for s in range(2):
                X = S[s][Tt % 2]
                e = lambda i: a(f"v_exp_f32 v{X+i}, v{X+i}")
                e(0); e(1)
                if s == 0:
                    a(pv(1, Tt - 1, 1))
                    a(f"ds_read_b128 {vr(V[(Tt+1)%2][0],4)}, v{vV} offset:{toff(Tt+1)+1280}")
                    a(f"ds_read_b128 {vr(V[(Tt+1)%2][1],4)}, v{vV} offset:{toff(Tt+1)+1280+672}")
                else:
                    a(pv(0, Tt, 1)); fr(tt, 2); fr(tt, 3)
                e(2); e(3); e(4); e(5)
                a(qk1(s, Tt + 1))
                if s == 0: a(f"ds_read_b128 {vr(K0[Tt%2],4)}, v{vK} offset:{toff(Tt+2)}")
                else: fr(tt, 4)
                e(6); e(7); e(8); e(9)
                a(pv(s, Tt, 0))
                if s == 0:
                    a(f"ds_read_b32 v{K1[Tt%2]}, v{vK1} offset:{toff(Tt+2)+1024}"); fr(tt, 1)
                else:
                    a("s_waitcnt lgkmcnt(0)"); fr(tt, 5)
                e(10); e(11); e(12); e(13)
                a(qk2(s, Tt + 1))
                e(14); e(15)
    a(f"""
    s_cmp_lt_u32 s{sC}, 4
    s_cbranch_scc1 L_loop
    s_nop 0
    {pv(1, 31, 1)}
    s_setprio 3
    s_nop 14
    """)
    mark(8)
    a(f"v_mov_b32 v{T[0]}, v{O[0]+12}")
    a(f"v_mov_b32 v{T[1]}, v{O[1]+12}")
    for r in range(12):
        for s in range(2):
            a(f"v_fma_f32 v{T[s]}, v{O[s]+r}, 0, v{T[s]}")
    lo, hi = 0x2b800000, 0x5d800000
    if force_fallback: lo = 0x7f000000
    a(f"""
    v_cmp_le_f32 vcc, 0x{lo:x}, v{T[0]}
    s_mov_b64 s[{sM0}:{sM1}], vcc
    v_cmp_le_f32 vcc, 0x{lo:x}, v{T[1]}
    s_and_b64 s[{sM0}:{sM1}], s[{sM0}:{sM1}], vcc
    v_cmp_ge_f32 vcc, 0x{hi:x}, v{T[0]}
    s_and_b64 s[{sM0}:{sM1}], s[{sM0}:{sM1}], vcc
    v_cmp_ge_f32 vcc, 0x{hi:x}, v{T[1]}
    s_and_b64 s[{sM0}:{sM1}], s[{sM0}:{sM1}], vcc
    s_cmp_eq_u64 s[{sM0}:{sM1}], -1
    s_cbranch_scc0 L_fallback
    L_store:
    v_rcp_f32 v{T[2]}, v{O[0]+12}
    v_rcp_f32 v{T[3]}, v{O[1]+12}
    s_nop 0
    """)
    for s in range(2):
        for r in range(12): a(f"v_mul_f32 v{O[s]+r}, v{O[s]+r}, v{T[2+s]}")
        for r in range(6): a(f"v_cvt_pk_bf16_f32 v{S[s][0]+r}, v{O[s]+2*r}, v{O[s]+2*r+1}")
        a(f"buffer_store_dwordx4 {vr(S[s][0],4)}, v{vOst}, s[16:19], 0 offen offset:{512*s} {SC}")
        a(f"buffer_store_dwordx2 {vr(S[s][0]+4,2)}, v{vOst2}, s[16:19], 0 offen offset:{256*s} {SC}")
    if stamp:
        a(f"""
        s_lshl_b32 s88, s2, 2
        s_add_u32 s88, s88, s{sW}
        s_lshl_b32 s88, s88, 6
        s_add_u32 s88, s88, {ST_OFF + 131072}
        v_lshl_add_u32 v{T[0]}, v{vL}, 2, s88
        s_mov_b64 exec, 0xffff
        global_store_dword v{T[0]}, v{vF}, s[{kWs}:{kWs+1}]
        s_mov_b64 exec, -1
        """)
    publish(sFl)
    mark(9)
    a(f"""
    s_cmp_eq_u32 s{sBr}, 0
    s_cbranch_scc1 L_fin
    """)

    R4 = RegAlloc(vK)
    OW = [[R4.alloc(f"OW{p}{q}") for q in range(5)] for p in range(2)]
    oM = R4.alloc("oM"); oT = R4.alloc("oT"); oW = R4.alloc("oW"); oW2 = R4.alloc("oW2"); oS = R4.alloc("oS")
    OF = [R4.alloc(f"OF{k}", 4, 4) for k in range(20)]
    WR = [[R4.alloc(f"WR{k}{t}", 4, 4) for t in range(5)] for k in range(4)]
    WB = [[R4.alloc(f"WB{b}{t}", 4, 4) for t in range(5)] for b in range(2)]
    OC = [R4.alloc(f"OC{t}", 4, 4) for t in range(5)]
    nvmax.append(R4.n)
    for q in range(5):
        a(f"v_add_u32 v{T[0]}, {64*q}, v{vL}")
        divc(T[1], T[2], T[0], 10, 6554, 16)
        a(f"""
        v_lshrrev_b32 v{T[4]}, 4, v{T[1]}
        v_and_b32 v{T[5]}, 3, v{T[1]}
        v_bfe_u32 v{T[6]}, v{T[1]}, 3, 1
        v_mul_u32_u24 v{T[6]}, 20, v{T[6]}
        v_and_b32 v{T[7]}, 4, v{T[1]}
        v_add3_u32 v{T[6]}, v{T[6]}, v{T[7]}, v{T[5]}
        v_lshl_add_u32 v{T[6]}, v{T[4]}, 3, v{T[6]}
        v_mul_u32_u24 v{T[6]}, 1280, v{T[6]}
        v_lshl_add_u32 v{OW[0][q]}, v{T[2]}, 4, v{T[6]}
        v_bfe_u32 v{T[6]}, v{T[1]}, 2, 2
        v_lshl_add_u32 v{T[6]}, v{T[6]}, 1, v{T[4]}
        v_mul_u32_u24 v{T[6]}, 20, v{T[6]}
        v_add3_u32 v{T[6]}, v{T[6]}, v{T[5]}, 16
        v_mul_u32_u24 v{T[6]}, 1280, v{T[6]}
        v_lshl_add_u32 v{OW[1][q]}, v{T[2]}, 4, v{T[6]}
        """)
    a(f"""
    v_and_b32 v{T[0]}, 15, v{vL}
    v_lshrrev_b32 v{T[1]}, 4, v{vL}
    s_lshl_b32 s{sTok}, s{sP0}, 6
    s_lshl_b32 s{sT0}, s{sW}, 4
    s_add_u32 s{sTok}, s{sTok}, s{sT0}
    v_add_u32 v{T[2]}, s{sTok}, v{T[0]}
    v_lshlrev_b32 v{oM}, 15, v{T[1]}
    v_lshl_add_u32 v{oT}, v{T[2]}, 3, v{oM}
    v_lshl_add_u32 v{oM}, v{T[2]}, 4, v{oM}
    v_lshrrev_b32 v{T[3]}, 2, v{vL}
    v_mul_u32_u24 v{T[3]}, 160, v{T[3]}
    v_and_b32 v{T[4]}, 3, v{vL}
    v_lshl_add_u32 v{oW}, v{T[4]}, 3, v{T[3]}
    v_add_u32 v{oW2}, 40960, v{oW}
    v_mul_u32_u24 v{oS}, 2560, v{T[0]}
    v_lshl_add_u32 v{oS}, v{T[1]}, 3, v{oS}
    s_mul_i32 s{sM0}, s{sW}, 5120
    """)
    a.label("L_op")
    a.c("sBr = 1 then 0")
    a(f"""
    s_setprio 0
    s_cmp_eq_u32 s{sBr}, 0
    s_cselect_b32 s{sT0}, s{kAo}, s{kBo}
    s_cselect_b32 s{sT1}, s{kAo+1}, s{kBo+1}
    s_mul_i32 s{sT2}, s{sP1}, 160
    s_add_u32 s12, s{sT0}, s{sT2}
    s_addc_u32 s13, s{sT1}, 0
    s_sub_u32 s14, {640*1280}, s{sT2}
    s_mov_b32 s15, 0x00020000
    s_mul_i32 s{sD[0]}, s{sW}, 5120
    s_mul_i32 s{sOw}, s{sW}, {160*1280}
    """)
    a.c("tail k-step w -> LDS slot w")
    for q in range(5):
        a(f"s_add_u32 m0, s{sD[0]}, {q*1024}")
        a("s_nop 0")
        a(f"buffer_load_dwordx4 v{OW[1][q]}, s[12:15], s{sOw} offen lds")
    a.c("main k-steps 4..15 -> slots 4..15 (3 per wave)")
    a(f"s_mul_i32 s{sOw}, s{sW}, {40*1280}")
    for j in range(1, 4):
        a(f"s_add_u32 s{sOx}, s{sOw}, {4*j*40*1280}")
        for q in range(5):
            a(f"s_add_u32 m0, s{sD[0]}, {4*j*5120 + q*1024}")
            a("s_nop 0")
            a(f"buffer_load_dwordx4 v{OW[0][q]}, s[12:15], s{sOx} offen lds")
    a("s_setprio 3\ns_waitcnt vmcnt(15)\ns_barrier")
    for k in range(4):
        for t in range(5):
            for hr in range(2):
                a(f"ds_read_b64_tr_b16 {vr(WR[k][t]+2*hr,2)}, v{oW} offset:{k*5120 + hr*2560 + t*32}")
        a("s_waitcnt lgkmcnt(0)")
    a("s_barrier\ns_setprio 0")
    for q in range(5):
        a(f"s_add_u32 m0, s{sD[0]}, {q*1024}")
        a("s_nop 0")
        a(f"buffer_load_dwordx4 v{OW[0][q]}, s[12:15], s{sOw} offen lds")
    a("s_setprio 3")
    a(f"""
    s_mul_i32 s{sT0}, s{sBr}, {O_BR}
    s_add_u32 s{sT0}, s{sT0}, {O_OFF}
    """)
    srd(8, kWs, f"s{sT0}", O_BR)
    a(f"""
    s_mul_i32 s{sT0}, s{sTok}, 2560
    s_mul_i32 s{sT1}, s{sBr}, 1280
    s_add_u32 s{sT0}, s{sT0}, s{sT1}
    s_add_u32 s{sT0}, s{sT0}, s{sT2}
    s_sub_u32 s{sT1}, {2048*2560}, s{sT0}
    """)
    srd(16, kOut, f"s{sT0}", f"s{sT1}")
    a(f"""
    s_lshl_b32 s{sT0}, s{sP0}, 7
    s_add_u32 s{sT0}, s{sT0}, {F3}
    s_lshr_b32 s{sT1}, s{sP0}, 2
    s_lshl_b32 s{sT1}, s{sT1}, 8
    s_add_u32 s{sT1}, s{sT1}, {F4}
    s_cmp_eq_u32 s{sBr}, 0
    s_cselect_b32 s{sT3}, s{sT1}, s{sT0}
    s_cselect_b32 s{sT2}, 31, 7
    s_waitcnt vmcnt(0)
    """)
    for t in range(5):
        for r in range(4): a(f"v_mov_b32 v{OC[t]+r}, 0")
    wait_flags(sT3, f"s{sT2}", sleep=2)
    mark(10)
    a("s_setprio 0")
    a.c("O fragments: tails first (W resident), then main")
    for k in range(4):
        for hh in range(2):
            a(f"s_mov_b32 s{sT0}, {O_TAIL + (8*k + hh) * 16384}")
            a(f"buffer_load_dwordx2 {vr(OF[16+k]+2*hh,2)}, v{oT}, s[8:11], s{sT0} offen {SC}")
    for k in range(16):
        a(f"s_mov_b32 s{sT0}, {4*k*32768}")
        a(f"buffer_load_dwordx4 {vr(OF[k],4)}, v{oM}, s[8:11], s{sT0} offen {SC}")
    a("s_setprio 3")
    def wrd(k):
        ad, off = (oW, k * 5120) if k < 8 else (oW2, (k - 8) * 5120)
        return [f"ds_read_b64_tr_b16 {vr(WB[k%2][t]+2*hr,2)}, v{ad} offset:{off + hr*2560 + t*32}" for t in range(5) for hr in range(2)]
    for x in wrd(0): a(x)
    for k in range(4):
        a(f"s_waitcnt vmcnt({16 + 2*(3-k)})")
        for t in range(5):
            a(f"v_mfma_f32_16x16x32_bf16 {vr(OC[t],4)}, {vr(WR[k][t],4)}, {vr(OF[16+k],4)}, {vr(OC[t],4)}")
    for k in range(16):
        a(f"s_waitcnt vmcnt({15-k}) lgkmcnt(0)")
        nx = wrd(k + 1) if k < 15 else []
        for t in range(5):
            a(f"v_mfma_f32_16x16x32_bf16 {vr(OC[t],4)}, {vr(WB[k%2][t],4)}, {vr(OF[k],4)}, {vr(OC[t],4)}")
            for x in nx[2*t:2*t+2]: a(x)
    a("s_nop 3")
    for t in range(5):
        p = OF[0] + 2 * t
        a(f"v_cvt_pk_bf16_f32 v{p}, v{OC[t]}, v{OC[t]+1}")
        a(f"v_cvt_pk_bf16_f32 v{p+1}, v{OC[t]+2}, v{OC[t]+3}")
        a(f"buffer_store_dwordx2 {vr(p,2)}, v{oS}, s[16:19], 0 offen offset:{32*t}")
    a(f"""
    s_cmp_eq_u32 s{sBr}, 0
    s_cbranch_scc1 L_fin
    s_mov_b32 s{sBr}, 0
    """)
    mark(11)
    a("s_barrier\ns_branch L_op")
    a.label("L_fin")
    if stamp and "qonly" in DBG:
        a(f"""
        s_lshl_b32 s88, s2, 2
        s_add_u32 s88, s88, s{sW}
        s_lshl_b32 s88, s88, 6
        s_add_u32 s88, s88, {ST_OFF + 131072}
        v_lshl_add_u32 v{T[0]}, v{vL}, 2, s88
        s_mov_b64 exec, 0xffff
        global_store_dword v{T[0]}, v{vF}, s[{kWs}:{kWs+1}]
        s_mov_b64 exec, -1
        """)
    stamp_end()
    a.label("L_end")
    a("s_endpgm")
    a.label("L_prio")
    a("s_setprio 1\ns_branch L_prio_ret")

    a.label("L_fallback")
    a(f"""
    s_mov_b32 s10, {KV_SET}
    v_mov_b32 v{Q1[0]+1}, 0
    v_mov_b32 v{Q1[1]+1}, 0
    v_mov_b32 v{vM[0]}, 0xff800000
    v_mov_b32 v{vM[1]}, 0xff800000
    s_mov_b32 s{sGo}, 0
    s_waitcnt lgkmcnt(0)
    L_fb1:
    buffer_load_dwordx4 {vr(K0[0],4)}, v{vK}, s[8:11], s{sGo} offen {SC}
    buffer_load_dword v{K1[0]}, v{vK1}, s[8:11], s{sGo} offen offset:1024 {SC}
    s_waitcnt vmcnt(0)
    {qk1(0,0)}
    {qk2(0,0)}
    {qk1(1,0)}
    {qk2(1,0)}
    s_add_u32 s{sGo}, s{sGo}, {TILE}
    s_nop 8
    """)
    rowmax(False)
    a(f"""
    s_cmp_lt_u32 s{sGo}, {KV_SET}
    s_cbranch_scc1 L_fb1
    """)
    crossmax()
    for s in range(2):
        for r in range(16): a(f"v_mov_b32 v{O[s]+r}, 0")
    a(f"""
    s_mov_b32 s{sGo}, 0
    L_fb2:
    buffer_load_dwordx4 {vr(K0[0],4)}, v{vK}, s[8:11], s{sGo} offen {SC}
    buffer_load_dword v{K1[0]}, v{vK1}, s[8:11], s{sGo} offen offset:1024 {SC}
    buffer_load_dwordx4 {vr(V[0][0],4)}, v{vV}, s[8:11], s{sGo} offen offset:1280 {SC}
    buffer_load_dwordx4 {vr(V[0][1],4)}, v{vV}, s[8:11], s{sGo} offen offset:{1280+672} {SC}
    s_waitcnt vmcnt(0)
    {qk1(0,0)}
    {qk2(0,0)}
    {qk1(1,0)}
    {qk2(1,0)}
    s_add_u32 s{sGo}, s{sGo}, {TILE}
    s_nop 8
    """)
    for s in range(2):
        for r in range(16): a(f"v_sub_f32 v{S[s][0]+r}, v{S[s][0]+r}, v{vM[s]}")
        for r in range(16): a(f"v_exp_f32 v{S[s][0]+r}, v{S[s][0]+r}")
    a(f"""
    s_nop 1
    {pv(0,0,0)}
    {pv(0,0,1)}
    {pv(1,0,0)}
    {pv(1,0,1)}
    s_cmp_lt_u32 s{sGo}, {KV_SET}
    s_cbranch_scc1 L_fb2
    s_nop 15
    s_branch L_store
    """)
    nv = max(nvmax)
    kernel_desc(a, name, nv, 96)
    return nv

if __name__ == "__main__":
    import sys
    NAME = "concat_heads__mha_block__grouped_kv_mqa__prompt"
    ref = open(f"cdna_kernels/{NAME}.s.ref").read().split("\n")
    hdr = [l for l in ref if l.startswith(";") and "@launch" not in l]
    opts = eval("dict(" + (sys.argv[2] if len(sys.argv) > 2 else "") + ")")
    a = Asm()
    a.raw('.amdgcn_target "amdgcn-amd-amdhsa--gfx950"')
    nv = gen(a, NAME + "_kernel", **opts)
    out = "\n".join(hdr) + f"\n; @launch grid=(512,1,1) block=(256,1,1) lds={LDS}\n" + a.text()
    dst = sys.argv[1] if len(sys.argv) > 1 else f"cdna_kernels/{NAME}.s"
    open(dst, "w").write(out)
    print("vgprs", nv, "ws", WS_USED, "ST_OFF", ST_OFF)
```

```python
import struct
from common import Asm, vr, RegAlloc, kernel_header, kernel_desc

def f32bits(x): return struct.unpack("<I", struct.pack("<f", x))[0]
QSCALE = f32bits((20 ** -0.5) * 1.4426950408889634)

TILE = 2624; GROUP = 4 * TILE; KV_SET = 16 * GROUP
KV_OFF = 0
Q_OFF = KV_OFF + 33 * KV_SET
Q_HEAD = 64 * 1280
O_OFF = Q_OFF + 64 * Q_HEAD
O_TAIL = 64 * 32768
O_BR = O_TAIL + 32 * 16384
F1 = O_OFF + 2 * O_BR
F3 = F1 + 8 * 2048
WS_USED = F3 + 8 * 16384
ST_OFF = 16 << 20
assert WS_USED <= ST_OFF
LDS = 163840
BIG = 0x100000
SPIN = 30000
kAx, kAw, kAo, kBx, kBq, kBk, kBv, kBo, kOut, kDbg, kWs = 64, 66, 68, 70, 72, 74, 76, 78, 80, 82, 84
sN = 86

def interleave(a, mf, rd):
    rd = list(rd); n = len(mf)
    for i, m in enumerate(mf):
        a(m)
        k = 2 if len(rd) > (n - i - 3) else 1
        for _ in range(k):
            if rd: a(rd.pop(0))
    for r in rd: a(r)

def gen(a, name, stamp=False, force_fallback=False, SC="sc1", DBG="", AHEAD=1, ROT=True, LPF=0, SL1=4, SL3=8, SL4=1, BAL=11, CPF=True, UPR=2):
    vL = 1
    T = list(range(2, 10))
    vF = 10
    BASE = 12
    sW, sI, sT0, sT1, sT2, sT3, sC = 20, 21, 23, 24, 25, 26, 27
    sW4, sHi, sSpin, sFl, sM0, sM1 = 22, 38, 43, 39, 44, 45
    nvmax = []
    uid = [0]
    def mark(i):
        if stamp: a(f"s_memtime s[88:89]\ns_waitcnt lgkmcnt(0)\ns_sub_u32 s{50+i}, s88, s48")
    def lstamp(tag):
        if stamp and tag in DBG:
            a(f"s_memtime s[88:89]\ns_waitcnt lgkmcnt(0)\ns_sub_u32 s88, s88, s48\ns_mov_b32 m0, s63\ns_add_u32 s63, s63, 1\ns_min_u32 s63, s63, 15\nv_writelane_b32 v255, s88, m0")
    def stamp_end():
        if not stamp: return
        Z = 64
        a(f"""
        s_waitcnt vmcnt(0) lgkmcnt(0)
        s_memrealtime s[90:91]
        s_memtime s[88:89]
        s_waitcnt lgkmcnt(0)
        s_sub_u32 s88, s88, s48
        v_mov_b32 v{Z}, s46
        v_mov_b32 v{Z+1}, s90
        v_mov_b32 v{Z+2}, s88
        """)
        for i in range(13): a(f"v_mov_b32 v{Z+3+i}, s{50+i}")
        a(f"""
        s_lshl_b32 s88, s2, 3
        s_add_u32 s88, s88, s{sW}
        s_lshl_b32 s88, s88, 6
        s_add_u32 s88, s88, {ST_OFF}
        v_mov_b32 v{T[0]}, s88
        s_add_u32 s88, s88, 262144
        v_lshl_add_u32 v{T[1]}, v{vL}, 2, s88
        s_mov_b64 exec, 0xffff
        global_store_dword v{T[1]}, v255, s[{kWs}:{kWs+1}]
        s_mov_b64 exec, 1
        """)
        for i in range(4): a(f"global_store_dwordx4 v{T[0]}, {vr(Z+4*i,4)}, s[{kWs}:{kWs+1}] offset:{16*i}")
    def srd(d, base, off, size):
        a(f"""
        s_add_u32 s{d}, s{base}, {off}
        s_addc_u32 s{d+1}, s{base+1}, 0
        s_mov_b32 s{d+2}, {size}
        s_mov_b32 s{d+3}, 0x00020000
        """)
    def divc(vq, vrem, vn, d, mul, sh):
        a(f"v_mul_u32_u24 v{vq}, {mul}, v{vn}")
        a(f"v_lshrrev_b32 v{vq}, {sh}, v{vq}")
        a(f"v_mul_u32_u24 v{vrem}, {d}, v{vq}")
        a(f"v_sub_u32 v{vrem}, v{vn}, v{vrem}")
    def get_nonce():
        uid[0] += 1; u = uid[0]
        a(f"""
        v_mov_b32 v{T[0]}, 0
        s_mov_b32 s{sSpin}, {SPIN}
        L_gn{u}:
        global_load_dwordx2 {vr(vF,2)}, v{T[0]}, s[{kDbg}:{kDbg+1}] sc1
        s_waitcnt vmcnt(0)
        v_readfirstlane_b32 s{sN}, v{vF}
        v_readfirstlane_b32 s{sN+1}, v{vF+1}
        s_sub_u32 s{sSpin}, s{sSpin}, 1
        s_cbranch_scc1 L_gd{u}
        s_cmp_eq_u32 s{sN}, 0
        s_cbranch_scc1 L_gn{u}
        L_gd{u}:
        """)
    def put_flag(flag_sgpr, shift):
        a(f"""
        v_lshl_add_u32 v{T[0]}, v{vL}, {shift}, s{flag_sgpr}
        v_mov_b32 v{T[2]}, s{sN}
        v_mov_b32 v{T[3]}, s{sN+1}
        s_mov_b64 exec, 0xff
        global_store_dwordx2 v{T[0]}, {vr(T[2],2)}, s[{kWs}:{kWs+1}] sc1
        s_mov_b64 exec, -1
        """)

    kernel_header(a, name)
    sMt, sGrp, sJ4, sLd, sSt, sHS, sScale = 28, 29, 30, 31, 32, 33, 34
    sOx, sOw, sOe, sM, sLd64, sWm, sWn, sRot, sTS, sCT = 35, 36, 37, 40, 41, 42, 92, 93, 94, 95
    a(f"""
    s_getpc_b64 s[96:97]
    s_cmp_ge_u32 s2, 256
    s_cbranch_scc1 L_end
    s_load_dwordx16 s[64:79], s[0:1], 0
    s_load_dwordx4 s[80:83], s[0:1], 64
    s_load_dwordx2 s[84:85], s[0:1], 80
    s_memrealtime s[46:47]
    {"s_memtime s[48:49]" if stamp else ""}
    {"s_mov_b32 s63, 0" if stamp else ""}
    v_lshrrev_b32 v{T[0]}, 6, v0
    v_and_b32 v{vL}, 63, v0
    s_and_b32 s{sT0}, s2, 7
    v_readfirstlane_b32 s{sW}, v{T[0]}
    s_lshr_b32 s{sT1}, s2, 3
    s_lshr_b32 s{sGrp}, s{sT0}, 1
    s_and_b32 s{sMt}, s{sT0}, 1
    s_lshl_b32 s{sMt}, s{sMt}, 3
    s_and_b32 s{sT2}, s{sT1}, 7
    s_add_u32 s{sMt}, s{sMt}, s{sT2}
    s_lshr_b32 s{sJ4}, s{sT1}, 3
    s_and_b32 s{sW4}, s{sW}, 3
    s_lshr_b32 s{sHi}, s{sW}, 2
    s_cmp_ge_u32 s{sW}, 4
    s_cbranch_scc0 L_comp
    """)
    ST = 39424; NST = 4; WOFF = 16384; EOFF = 36864
    IMG = 2 * ST; IH = 5376
    R = RegAlloc(BASE)
    bX = [R.alloc(f"bX{k}") for k in range(2)]; bW = R.alloc("bW"); bE = R.alloc("bE"); bXe = [R.alloc(f"bXe{k}") for k in range(2)]
    aX = [R.alloc(f"aX{k}") for k in range(2)]; aW = R.alloc("aW"); aE = R.alloc("aE"); aXe = [R.alloc(f"aXe{k}") for k in range(2)]
    A0 = [R.alloc(f"A0{i}") for i in range(5)]; A1 = [R.alloc(f"A1{i}") for i in range(5)]
    AE = [R.alloc(f"AE{i}") for i in range(2)]
    FX = [[R.alloc(f"FX{b}{i}", 4, 4) for i in range(4)] for b in range(2)]
    FW = [[R.alloc(f"FW{b}{i}", 4, 4) for i in range(5)] for b in range(2)]
    FXe = [R.alloc(f"FXe{b}", 4, 4) for b in range(2)]
    FE = [[R.alloc(f"FE{b}{i}", 4, 4) for i in range(2)] for b in range(2)]
    ACC = [[R.alloc(f"C{m}{n}", 4, 4) for n in range(5)] for m in range(4)]
    ACE = [R.alloc(f"CE{n}", 4, 4) for n in range(2)]
    SO = [R.alloc(f"SO{q}") for q in range(6)]
    nvmax.append(R.n)
    LX = [FX[0][0] + i for i in range(4)]; LW = [FX[0][1] + i for i in range(5)]; LE = FX[0][3]
    a(f"""
    s_setprio 2
    s_cmp_eq_u32 s{sGrp}, 3
    s_mov_b32 s{sLd}, 3840
    s_cmov_b32 s{sLd}, 1280
    s_mul_i32 s{sRot}, s{sJ4}, 3
    s_add_u32 s{sRot}, s{sRot}, s{sT2}
    s_cmp_ge_u32 s{sRot}, 10
    s_cselect_b32 s{sT0}, 10, 0
    s_sub_u32 s{sRot}, s{sRot}, s{sT0}
    {"" if ROT else f"s_mov_b32 s{sRot}, 0"}
    v_lshrrev_b32 v{T[0]}, 3, v{vL}
    s_lshl_b32 s{sT0}, s{sW4}, 5
    v_add_u32 v{T[0]}, s{sT0}, v{T[0]}
    v_mul_u32_u24 v{T[0]}, 1280, v{T[0]}
    v_and_b32 v{T[1]}, 7, v{vL}
    v_lshrrev_b32 v{T[2]}, 4, v{vL}
    v_xor_b32 v{T[1]}, v{T[1]}, v{T[2]}
    v_xor_b32 v{T[2]}, 4, v{T[1]}
    v_lshl_add_u32 v{LX[0]}, v{T[1]}, 4, v{T[0]}
    v_lshl_add_u32 v{LX[1]}, v{T[2]}, 4, v{T[0]}
    v_add_u32 v{LX[1]}, 10240, v{LX[1]}
    v_add_u32 v{LX[2]}, 20480, v{LX[0]}
    v_add_u32 v{LX[3]}, 20480, v{LX[1]}
    s_lshl_b32 s{sLd64}, s{sLd}, 6
    s_lshr_b32 s{sT0}, s{sW4}, 1
    s_mul_i32 s{sT0}, s{sT0}, 160
    s_and_b32 s{sT1}, s{sW4}, 1
    s_mul_i32 s{sT1}, s{sT1}, s{sLd}
    s_lshl_b32 s{sT1}, s{sT1}, 5
    s_add_u32 s{sM}, s{sT0}, s{sT1}
    v_mov_b32 v{T[7]}, s{sLd}
    """)
    for q in range(5):
        a(f"v_add_u32 v{T[0]}, {q*64}, v{vL}")
        divc(T[1], T[2], T[0], 10, 6554, 16)
        a(f"""
        v_lshl_add_u32 v{T[3]}, v{T[2]}, 4, s{sM}
        v_and_b32 v{T[4]}, 3, v{T[1]}
        v_and_b32 v{T[5]}, 12, v{T[1]}
        v_lshl_add_u32 v{T[4]}, v{T[5]}, 1, v{T[4]}
        v_lshrrev_b32 v{T[5]}, 4, v{T[1]}
        v_lshl_add_u32 v{T[4]}, v{T[5]}, 2, v{T[4]}
        v_mad_u32_u24 v{LW[q]}, v{T[4]}, v{T[7]}, v{T[3]}
        """)
    a(f"""
    s_mul_i32 s{sT0}, s{sW4}, 640
    v_lshlrev_b32 v{LE}, 4, v{vL}
    v_add_u32 v{LE}, s{sT0}, v{LE}
    s_lshl_b32 s{sOx}, s{sRot}, 7
    s_mul_i32 s{sOw}, s{sRot}, s{sLd64}
    s_mul_i32 s{sOe}, s{sRot}, 2560
    s_mul_i32 s{sT0}, s{sMt}, 163840
    s_mov_b32 s10, 163840
    s_mov_b32 s11, 0x00020000
    s_mov_b32 s15, 0x00020000
    s_mov_b32 s18, 25600
    s_mov_b32 s19, 0x00020000
    s_cmp_eq_u32 s{sGrp}, 3
    s_cselect_b32 s{sT1}, 0, s{sGrp}
    s_mov_b32 s14, {640*3840}
    s_cmov_b32 s14, {640*1280}
    s_waitcnt lgkmcnt(0)
    s_cselect_b32 s8, s{kBx}, s{kAx}
    s_cselect_b32 s9, s{kBx+1}, s{kAx+1}
    s_cselect_b32 s12, s{kBq}, s{kAw}
    s_cselect_b32 s13, s{kBq+1}, s{kAw+1}
    s_add_u32 s8, s8, s{sT0}
    s_addc_u32 s9, s9, 0
    s_mul_i32 s{sT1}, s{sT1}, 1280
    s_mul_i32 s{sT0}, s{sJ4}, 320
    s_add_u32 s{sT0}, s{sT0}, s{sT1}
    s_add_u32 s12, s12, s{sT0}
    s_addc_u32 s13, s13, 0
    s_sub_u32 s14, s14, s{sT0}
    s_cmp_lt_u32 s{sJ4}, 2
    s_cselect_b32 s16, s{kBk}, s{kBv}
    s_cselect_b32 s17, s{kBk+1}, s{kBv+1}
    s_lshl_b32 s{sT0}, s{sW4}, 12
    s_mul_i32 s{sT1}, s{sW4}, 5120
    s_add_u32 s{sT1}, s{sT1}, {WOFF}
    s_mul_i32 s{sT2}, s{sW4}, 640
    s_add_u32 s{sT2}, s{sT2}, {EOFF}
    s_mov_b32 s{sSt}, 0
    s_mov_b32 s{sC}, 0
    s_cmp_eq_u32 s{sGrp}, 3
    s_cbranch_scc1 L_llB
    """)
    def issue(ext):
        for q in range(4):
            a(f"s_add_u32 m0, s{sT0}, {q*1024}\ns_nop 0\nbuffer_load_dwordx4 v{LX[q]}, s[8:11], s{sOx} offen lds")
        for q in range(5):
            a(f"s_add_u32 m0, s{sT1}, {q*1024}\ns_nop 0\nbuffer_load_dwordx4 v{LW[q]}, s[12:15], s{sOw} offen lds")
        if ext:
            a(f"""
            s_mov_b32 m0, s{sT2}
            s_mov_b32 exec_hi, 0xff
            buffer_load_dwordx4 v{LE}, s[16:19], s{sOe} offen lds
            s_mov_b32 exec_hi, -1
            s_add_u32 s{sOe}, s{sOe}, 2560
            """)
        a(f"""
        s_add_u32 s{sOx}, s{sOx}, 128
        s_add_u32 s{sOw}, s{sOw}, s{sLd64}
        s_cmp_eq_u32 s{sOx}, 1280
        s_cselect_b32 s{sOx}, 0, s{sOx}
        s_cselect_b32 s{sOw}, 0, s{sOw}
        s_cselect_b32 s{sOe}, 0, s{sOe}
        s_add_u32 s{sSt}, s{sSt}, 1
        s_and_b32 s{sSt}, s{sSt}, 3
        s_mov_b32 s{sM}, {ST}
        s_cmp_eq_u32 s{sSt}, 0
        s_cmov_b32 s{sM}, {(-3*ST) & 0xffffffff}
        s_add_u32 s{sT0}, s{sT0}, s{sM}
        s_add_u32 s{sT1}, s{sT1}, s{sM}
        s_add_u32 s{sT2}, s{sT2}, s{sM}
        """)
    for ext in (False, True):
        tag = "B" if ext else "A"
        n = 10 if ext else 9
        a.label(f"L_ll{tag}")
        issue(ext)
        a(f"""
        s_add_u32 s{sC}, s{sC}, 1
        s_cmp_lt_u32 s{sC}, {AHEAD+1}
        s_cbranch_scc1 L_ll{tag}
        s_waitcnt vmcnt({AHEAD*n})
        s_barrier
        s_cmp_lt_u32 s{sC}, 10
        s_cbranch_scc1 L_ll{tag}
        """)
        for c in range(AHEAD):
            a(f"s_waitcnt vmcnt({(AHEAD-1-c)*n})\ns_barrier")
        if not ext: a("s_branch L_ldone")
    a.label("L_ldone")
    a.c("loader waves: ones rows of the V image (2 heads per wave x 16 blocks), then common store setup")
    a(f"""
    s_cmp_lg_u32 s{sGrp}, 2
    s_cbranch_scc1 L_stset
    v_and_b32 v{T[0]}, 31, v{vL}
    v_mul_u32_u24 v{T[0]}, 336, v{T[0]}
    s_mul_i32 s{sT0}, s{sW4}, {2*IH}
    s_add_u32 s{sT0}, s{sT0}, {IMG + 320}
    v_add_u32 v{T[0]}, s{sT0}, v{T[0]}
    v_mov_b32 v{T[2]}, 0x3f803f80
    v_mov_b32 v{T[3]}, 0x3f803f80
    v_mov_b32 v{T[4]}, 0x3f803f80
    v_mov_b32 v{T[5]}, 0x3f803f80
    ds_write_b128 v{T[0]}, {vr(T[2],4)}
    s_branch L_stset
    """)
    assert T[2] % 2 == 0

    a.label("L_comp")
    if CPF:
        a(f"""
        v_lshlrev_b32 v{T[0]}, 7, v0
        v_min_u32 v{T[0]}, L_codeend - {name} - 8, v{T[0]}
        global_load_dword v252, v{T[0]}, s[96:97]
        """)
    a(f"""
    s_lshr_b32 s{sWm}, s{sW}, 1
    s_and_b32 s{sWn}, s{sW}, 1
    v_and_b32 v{T[0]}, 15, v{vL}
    v_lshrrev_b32 v{T[1]}, 4, v{vL}
    v_lshrrev_b32 v{T[2]}, 1, v{T[0]}
    v_xor_b32 v{T[2]}, v{T[2]}, v{T[1]}
    v_xor_b32 v{T[3]}, 4, v{T[2]}
    v_lshlrev_b32 v{T[4]}, 7, v{T[0]}
    v_lshl_add_u32 v{T[2]}, v{T[2]}, 4, v{T[4]}
    v_lshl_add_u32 v{T[3]}, v{T[3]}, 4, v{T[4]}
    s_lshl_b32 s{sT0}, s{sWm}, 13
    v_add_u32 v{bX[0]}, s{sT0}, v{T[2]}
    v_add_u32 v{bX[1]}, s{sT0}, v{T[3]}
    s_and_b32 s{sM}, s{sJ4}, 1
    s_lshl_b32 s{sM}, s{sM}, 1
    s_add_u32 s{sM}, s{sM}, s{sWn}
    s_lshl_b32 s{sT2}, s{sM}, 11
    v_add_u32 v{bXe[0]}, s{sT2}, v{bX[0]}
    v_add_u32 v{bXe[1]}, s{sT2}, v{bX[1]}
    v_lshrrev_b32 v{T[2]}, 2, v{vL}
    v_mul_u32_u24 v{T[2]}, 160, v{T[2]}
    v_and_b32 v{T[3]}, 3, v{vL}
    v_lshl_add_u32 v{T[2]}, v{T[3]}, 3, v{T[2]}
    s_mul_i32 s{sT0}, s{sWn}, 10240
    v_add_u32 v{bW}, s{sT0}, v{T[2]}
    v_lshrrev_b32 v{T[2]}, 2, v{T[0]}
    v_lshl_add_u32 v{T[2]}, v{T[1]}, 3, v{T[2]}
    v_mul_u32_u24 v{T[2]}, 40, v{T[2]}
    v_lshl_add_u32 v{bE}, v{T[3]}, 3, v{T[2]}
    s_waitcnt lgkmcnt(0)
    s_add_u32 s{sT1}, s2, s{sW}
    s_cmp_lg_u32 s{sT1}, 0
    s_cbranch_scc1 L_nononce
    s_or_b32 s{sT1}, s46, 1
    v_mov_b32 v{vF}, s{sT1}
    v_mov_b32 v{vF+1}, s47
    v_mov_b32 v{T[2]}, 0
    s_mov_b64 exec, 1
    global_store_dwordx2 v{T[2]}, {vr(vF,2)}, s[{kDbg}:{kDbg+1}] sc1
    s_mov_b64 exec, -1
    L_nononce:
    """)
    if LPF:
        a.c("linear touch of this wave's 1/1024 share of both Wo matrices")
        a(f"""
        s_lshl_b32 s{sT0}, s2, 2
        s_add_u32 s{sT0}, s{sT0}, s{sW}
        s_mul_i32 s{sT3}, s{sT0}, 800
        v_min_u32 v{T[2]}, 6, v{vL}
        v_lshl_add_u32 v{T[3]}, v{T[2]}, 7, s{sT3}
        global_load_dword v250, v{T[3]}, s[{kAo}:{kAo+1}]
        global_load_dword v251, v{T[3]}, s[{kBo}:{kBo+1}]
        """)
    for m in range(4):
        for n in range(5):
            for r in range(4): a(f"v_mov_b32 v{ACC[m][n]+r}, 0")
    for n in range(2):
        for r in range(4): a(f"v_mov_b32 v{ACE[n]+r}, 0")
    a(f"""
    s_cmp_eq_u32 s{sGrp}, 1
    s_mov_b32 s{sScale}, 0x{QSCALE:x}
    s_cmov_b32 s{sScale}, 1.0
    s_mul_i32 s{sT0}, s{sMt}, {GROUP}
    s_add_u32 s{sT0}, s{sT0}, {KV_OFF + 32*KV_SET}
    """)
    srd(12, kWs, f"s{sT0}", GROUP)
    a(f"""
    s_mov_b32 s{sSt}, 0
    s_mov_b32 s{sC}, 0
    s_cmp_eq_u32 s{sGrp}, 2
    s_cbranch_scc1 L_F
    """)
    def addr_T():
        a(f"""
        s_mul_i32 s{sT0}, s{sWn}, {4*IH}
        s_mul_i32 s{sT1}, s{sWm}, 2560
        s_add_u32 s{sT0}, s{sT0}, s{sT1}
        s_add_u32 s{sT0}, s{sT0}, {IMG}
        """)
        for tn in range(5):
            a(f"v_add_u32 v{T[2]}, {4*tn}, v{T[1]}")
            divc(T[3], T[4], T[2], 5, 52, 8)
            a(f"""
            v_mul_u32_u24 v{T[3]}, {IH}, v{T[3]}
            v_and_b32 v{T[5]}, 1, v{T[4]}
            v_lshlrev_b32 v{T[5]}, 9, v{T[5]}
            v_lshrrev_b32 v{T[6]}, 1, v{T[4]}
            v_lshl_add_u32 v{T[5]}, v{T[6]}, 3, v{T[5]}
            v_lshl_add_u32 v{T[5]}, v{T[0]}, 4, v{T[5]}
            v_lshlrev_b32 v{T[6]}, 3, v{T[0]}
            v_add_u32 v{T[6]}, 1024, v{T[6]}
            v_cmp_eq_u32 vcc, 4, v{T[4]}
            v_mov_b32 v{T[7]}, 256
            v_mov_b32 v{T[2]}, 128
            v_cndmask_b32 v{T[5]}, v{T[5]}, v{T[6]}, vcc
            v_cndmask_b32 v{T[7]}, v{T[7]}, v{T[2]}, vcc
            v_add3_u32 v{A0[tn]}, v{T[3]}, v{T[5]}, s{sT0}
            v_add_u32 v{A1[tn]}, v{A0[tn]}, v{T[7]}
            """)
    def addr_F():
        a(f"""
        s_mul_i32 s{sT0}, s{sWn}, {4*IH}
        s_mul_i32 s{sT1}, s{sWm}, 2688
        s_add_u32 s{sT0}, s{sT0}, s{sT1}
        s_add_u32 s{sT0}, s{sT0}, {IMG}
        v_lshrrev_b32 v{T[5]}, 1, v{T[1]}
        v_mul_u32_u24 v{T[5]}, 336, v{T[5]}
        v_and_b32 v{T[6]}, 1, v{T[1]}
        v_lshl_add_u32 v{T[5]}, v{T[6]}, 3, v{T[5]}
        """)
        for tn in range(5):
            a(f"v_add_u32 v{T[2]}, {16*tn}, v{T[0]}")
            divc(T[3], T[4], T[2], 20, 205, 12)
            a(f"""
            v_mul_u32_u24 v{T[3]}, {IH}, v{T[3]}
            v_lshl_add_u32 v{T[3]}, v{T[4]}, 4, v{T[3]}
            v_add3_u32 v{A0[tn]}, v{T[3]}, v{T[5]}, s{sT0}
            """)
    def addr_E(kind):
        a(f"""
        s_lshl_b32 s{sT0}, s{sWm}, 1
        s_lshr_b32 s{sT1}, s{sM}, 1
        s_add_u32 s{sT0}, s{sT0}, s{sT1}
        s_mul_i32 s{sT0}, s{sT0}, {TILE}
        s_and_b32 s{sT1}, s{sM}, 1
        v_and_b32 v{T[4]}, 1, v{T[1]}
        v_lshrrev_b32 v{T[5]}, 1, v{T[1]}
        """)
        if kind == "K":
            a(f"""
            s_lshl_b32 s{sT2}, s{sT1}, 8
            s_add_u32 s{sT2}, s{sT2}, s{sT0}
            v_lshlrev_b32 v{T[6]}, 9, v{T[4]}
            v_lshl_add_u32 v{T[6]}, v{T[5]}, 3, v{T[6]}
            v_lshl_add_u32 v{T[6]}, v{T[0]}, 4, v{T[6]}
            v_add_u32 v{AE[0]}, s{sT2}, v{T[6]}
            s_lshl_b32 s{sT2}, s{sT1}, 7
            s_add_u32 s{sT2}, s{sT2}, s{sT0}
            s_add_u32 s{sT2}, s{sT2}, 1024
            v_lshlrev_b32 v{T[6]}, 20, v{T[1]}
            v_lshl_add_u32 v{T[6]}, v{T[0]}, 3, v{T[6]}
            v_add_u32 v{AE[1]}, s{sT2}, v{T[6]}
            """)
        else:
            a(f"""
            s_mul_i32 s{sT2}, s{sT1}, 672
            s_add_u32 s{sT2}, s{sT2}, s{sT0}
            s_add_u32 s{sT2}, s{sT2}, 1280
            v_mul_u32_u24 v{T[6]}, 336, v{T[5]}
            v_lshl_add_u32 v{T[6]}, v{T[4]}, 3, v{T[6]}
            v_lshl_add_u32 v{T[6]}, v{T[0]}, 4, v{T[6]}
            v_add_u32 v{AE[0]}, s{sT2}, v{T[6]}
            v_cmp_lt_u32 vcc, 4, v{T[0]}
            v_add_u32 v{T[6]}, 256, v{AE[0]}
            v_mov_b32 v{T[7]}, {BIG}
            v_cndmask_b32 v{AE[1]}, v{T[6]}, v{T[7]}, vcc
            """)
    def reads(b, ks, ext):
        r = [f"ds_read_b128 {vr(FX[b][0],4)}, v{aX[ks]}"]
        for tn in range(5):
            for hr in range(2):
                r.append(f"ds_read_b64_tr_b16 {vr(FW[b][tn]+2*hr,2)}, v{aW} offset:{WOFF + ks*5120 + hr*2560 + tn*32}")
        for tm in range(1, 4):
            r.append(f"ds_read_b128 {vr(FX[b][tm],4)}, v{aX[ks]} offset:{tm*2048}")
        if ext:
            r.append(f"ds_read_b128 {vr(FXe[b],4)}, v{aXe[ks]}")
            for tn in range(2):
                for hr in range(2):
                    r.append(f"ds_read_b64_tr_b16 {vr(FE[b][tn]+2*hr,2)}, v{aE} offset:{EOFF + ks*1280 + hr*160 + tn*32}")
        return r
    def mf(d, x, w, orient):
        A_, B_ = (w, x) if orient == "T" else (x, w)
        return f"v_mfma_f32_16x16x32_bf16 {vr(d,4)}, {vr(A_,4)}, {vr(B_,4)}, {vr(d,4)}"
    def mfmas(b, orient, ext):
        m = [mf(ACC[tm][tn], FX[b][tm], FW[b][tn], orient) for tm in range(4) for tn in range(5)]
        if ext: m += [mf(ACE[tn], FXe[b], FE[b][tn], "T" if ext == "K" else "F") for tn in range(2)]
        return m
    def setaddr(ext):
        a(f"v_add_u32 v{aX[0]}, s{sSt}, v{bX[0]}")
        a(f"v_add_u32 v{aW}, s{sSt}, v{bW}")
        a(f"v_add_u32 v{aX[1]}, s{sSt}, v{bX[1]}")
        if ext:
            a(f"v_add_u32 v{aXe[0]}, s{sSt}, v{bXe[0]}")
            a(f"v_add_u32 v{aXe[1]}, s{sSt}, v{bXe[1]}")
            a(f"v_add_u32 v{aE}, s{sSt}, v{bE}")
        a(f"s_add_u32 s{sSt}, s{sSt}, {ST}\ns_cmp_eq_u32 s{sSt}, {ST*NST}\ns_cselect_b32 s{sSt}, 0, s{sSt}")
    def variant(tag, orient, ext):
        L = f"L_{tag}"
        setaddr(ext)
        mark(0)
        a("s_barrier")
        mark(1)
        for r in reads(0, 0, ext): a(r)
        a(f"s_branch {L}_mid")
        a.raw(".p2align 6")
        a.label(f"{L}_loop")
        a("s_barrier")
        lstamp("gs")
        interleave(a, mfmas(1, orient, ext), reads(0, 0, ext))
        a.label(f"{L}_mid")
        a("s_waitcnt lgkmcnt(0)")
        interleave(a, mfmas(0, orient, ext), reads(1, 1, ext))
        setaddr(ext)
        a(f"s_add_u32 s{sC}, s{sC}, 1\ns_cmp_lt_u32 s{sC}, 10\ns_waitcnt lgkmcnt(0)\ns_cbranch_scc1 {L}_loop")
        for m in mfmas(1, orient, ext): a(m)
        mark(2)
        P = FX[0][0]; k = 0
        for tm in range(4):
            for tn in range(5):
                c = ACC[tm][tn]; p = P + 2 * (k % 8); k += 1
                if orient == "T":
                    for r in range(4): a(f"v_mul_f32 v{c+r}, s{sScale}, v{c+r}")
                a(f"v_cvt_pk_bf16_f32 v{c}, v{c}, v{c+1}")
                a(f"v_cvt_pk_bf16_f32 v{c+1}, v{c+2}, v{c+3}")
                if orient == "T":
                    a(f"ds_write_b64 v{(A0 if tm % 2 == 0 else A1)[tn]}, {vr(c,2)} offset:{(tm>>1)*1280}")
                else:
                    a(f"ds_write_b64 v{A0[tn]}, {vr(c,2)} offset:{tm*672}")
        if ext:
            if ext == "V":
                a(f"v_and_b32 v{T[0]}, 15, v{vL}\nv_cmp_eq_u32 vcc, 4, v{T[0]}\nv_mov_b32 v{T[6]}, 0x3f803f80")
            for tn in range(2):
                c = ACE[tn]
                a(f"v_cvt_pk_bf16_f32 v{c}, v{c}, v{c+1}")
                a(f"v_cvt_pk_bf16_f32 v{c+1}, v{c+2}, v{c+3}")
                if ext == "V" and tn == 1:
                    a(f"v_cndmask_b32 v{c}, v{c}, v{T[6]}, vcc\nv_cndmask_b32 v{c+1}, v{c+1}, v{T[6]}, vcc")
                a(f"buffer_store_dwordx2 {vr(c,2)}, v{AE[tn]}, s[12:15], 0 offen {SC}")
        a("s_branch L_stgo")
    def store_setup():
        a(f"""
        s_cmp_eq_u32 s{sGrp}, 2
        s_cselect_b32 s{sCT}, 1, 0
        s_cselect_b32 s{sT3}, 1280, 0
        s_cmp_eq_u32 s{sGrp}, 1
        s_cselect_b32 s{sT0}, 1, s{sCT}
        s_cmp_eq_u32 s{sT0}, 1
        s_mov_b32 s{sHS}, {Q_HEAD}
        s_cmov_b32 s{sHS}, {KV_SET}
        s_mov_b32 s{sTS}, 1280
        s_cmov_b32 s{sTS}, {TILE}
        s_mov_b32 s{sT0}, {Q_OFF}
        s_cmov_b32 s{sT0}, {KV_OFF}
        s_add_u32 s{sT0}, s{sT0}, s{sT3}
        s_cmp_eq_u32 s{sGrp}, 3
        s_cselect_b32 s{sT1}, 32, 0
        s_lshl_b32 s{sT2}, s{sJ4}, 3
        s_add_u32 s{sT1}, s{sT1}, s{sT2}
        s_add_u32 s{sT1}, s{sT1}, s{sW}
        s_mul_i32 s{sT1}, s{sT1}, s{sHS}
        s_add_u32 s{sT0}, s{sT0}, s{sT1}
        s_lshl_b32 s{sT1}, s{sTS}, 2
        s_mul_i32 s{sT2}, s{sT1}, s{sMt}
        s_add_u32 s{sT0}, s{sT0}, s{sT2}
        s_sub_u32 s{sT1}, s{sT1}, s{sT3}
        """)
        srd(8, kWs, f"s{sT0}", f"s{sT1}")
        a(f"""
        s_cmp_eq_u32 s{sCT}, 1
        s_mov_b32 s{sCT}, 80
        s_cmov_b32 s{sCT}, 84
        s_mov_b32 s{sT0}, 820
        s_cmov_b32 s{sT0}, 781
        s_lshl_b32 s{sT2}, s{sCT}, 4
        s_sub_u32 s{sT2}, s{sTS}, s{sT2}
        """)
        for q in range(6):
            a(f"""
            v_add_u32 v{T[0]}, {64*q}, v{vL}
            v_mul_u32_u24 v{T[1]}, s{sT0}, v{T[0]}
            v_lshrrev_b32 v{T[1]}, 16, v{T[1]}
            v_lshlrev_b32 v{T[0]}, 4, v{T[0]}
            v_mad_u32_u24 v{SO[q]}, v{T[1]}, s{sT2}, v{T[0]}
            """)
        a(f"""
        s_lshl_b32 s{sFl}, s{sGrp}, 2
        s_add_u32 s{sFl}, s{sFl}, s{sJ4}
        s_lshl_b32 s{sFl}, s{sFl}, 4
        s_add_u32 s{sFl}, s{sFl}, s{sMt}
        s_lshl_b32 s{sFl}, s{sFl}, 3
        s_add_u32 s{sFl}, s{sFl}, {F1}
        """)
    def pre():
        store_setup()
        a(f"v_and_b32 v{T[0]}, 15, v{vL}\nv_lshrrev_b32 v{T[1]}, 4, v{vL}")
    pre(); addr_T()
    a(f"s_cmp_eq_u32 s{sGrp}, 3\ns_cbranch_scc1 L_B")
    variant("T", "T", None)
    a.label("L_B")
    a(f"s_cmp_lt_u32 s{sJ4}, 2\ns_cbranch_scc0 L_BV")
    addr_E("K"); variant("TK", "T", "K")
    a.label("L_BV")
    addr_E("V"); variant("TV", "T", "V")
    a.label("L_F")
    pre(); addr_F(); variant("F", "F", None)
    a.label("L_stset")
    store_setup()
    a.label("L_stgo")
    SD = FX[0][0]
    a(f"""
    s_mul_i32 s{sT0}, s{sW}, {IH}
    s_add_u32 s{sT0}, s{sT0}, {IMG}
    v_lshl_add_u32 v{T[0]}, v{vL}, 4, s{sT0}
    s_waitcnt lgkmcnt(0)
    s_barrier
    """)
    for q in range(6): a(f"ds_read_b128 {vr(SD+4*q,4)}, v{T[0]} offset:{q*1024}")
    for q in range(5):
        a(f"s_waitcnt lgkmcnt({5-q})\nbuffer_store_dwordx4 {vr(SD+4*q,4)}, v{SO[q]}, s[8:11], 0 offen {SC}")
    a(f"""
    s_cmp_lg_u32 s{sGrp}, 2
    s_waitcnt lgkmcnt(0)
    s_cbranch_scc1 L_no6
    buffer_store_dwordx4 {vr(SD+20,4)}, v{SO[5]}, s[8:11], 0 offen {SC}
    L_no6:
    """)
    mark(3)

    R = RegAlloc(BASE)
    vK = [R.alloc("aK0"), R.alloc("aK1")]; vK1 = [R.alloc("aKa"), R.alloc("aKb")]; vV = [R.alloc("aV0"), R.alloc("aV1")]
    vIdx = R.alloc("idx"); vD = R.alloc("dma"); vM = [R.alloc("Ma"), R.alloc("Mb")]
    vOst = R.alloc("ost"); vOst2 = R.alloc("ost2"); vP = R.alloc("pk", 4, 2)
    R.n = max(R.n, SD + 24)
    Q0 = [R.alloc(f"Q0{s}", 4, 4) for s in range(2)]
    Q1 = [R.alloc(f"Q1{s}", 2, 2) for s in range(2)]
    K0 = [R.alloc(f"K0{i}", 4, 4) for i in range(2)]
    K1 = [R.alloc(f"K1{i}", 2, 2) for i in range(2)]
    V = [[R.alloc(f"V{i}{j}", 4, 4) for j in range(2)] for i in range(2)]
    S = [[R.alloc(f"S{s}{p}", 16, 4) for p in range(2)] for s in range(2)]
    O = [R.alloc(f"O{s}", 16, 4) for s in range(2)]
    assert R.n <= SO[0]
    nvmax.append(R.n)
    sHead, sTok, sBr, sOff, sF3, sGo = 28, 29, 30, 31, 32, 33
    a(f"""
    s_and_b32 s{sT0}, s2, 7
    s_lshr_b32 s{sT1}, s2, 3
    s_lshr_b32 s{sBr}, s{sT1}, 4
    s_bfe_u32 s{sT2}, s{sT1}, 0x20002
    s_lshl_b32 s{sHead}, s{sT0}, 2
    s_add_u32 s{sHead}, s{sHead}, s{sT2}
    s_and_b32 s{sT3}, s{sT1}, 3
    s_lshl_b32 s{sTok}, s{sT3}, 9
    s_lshl_b32 s{sT1}, s{sW}, 6
    s_add_u32 s{sTok}, s{sTok}, s{sT1}
    v_and_b32 v{T[0]}, 31, v{vL}
    v_lshrrev_b32 v{T[1]}, 5, v{vL}
    v_lshlrev_b32 v{vK[0]}, 4, v{vL}
    v_lshlrev_b32 v{vD}, 4, v{vL}
    v_lshlrev_b32 v{vK1[0]}, 3, v{T[0]}
    v_lshl_add_u32 v{vK1[0]}, v{T[1]}, 2, v{vK1[0]}
    v_cmp_eq_u32 vcc, 24, v{T[0]}
    v_mov_b32 v{T[3]}, 20
    v_mov_b32 v{T[4]}, {BIG}
    v_cndmask_b32 v{T[2]}, v{T[0]}, v{T[3]}, vcc
    v_mul_u32_u24 v{vV[0]}, 336, v{T[1]}
    v_lshl_add_u32 v{vV[0]}, v{T[2]}, 4, v{vV[0]}
    v_cmp_lt_u32 vcc, 20, v{T[2]}
    v_mov_b32 v{vIdx}, 0xdddddddd
    v_mov_b32 v{K1[0]+1}, 0x3f80
    v_cndmask_b32 v{vV[0]}, v{vV[0]}, v{T[4]}, vcc
    v_cmp_eq_u32 vcc, 20, v{T[0]}
    v_mov_b32 v{K1[1]+1}, 0x3f80
    v_mov_b32 v{Q1[0]+1}, 0
    v_cndmask_b32 v{vV[0]}, v{vV[0]}, v{T[4]}, vcc
    v_mov_b32 v{Q1[1]+1}, 0
    v_add_u32 v{vK[1]}, {3*GROUP}, v{vK[0]}
    v_add_u32 v{vK1[1]}, {3*GROUP}, v{vK1[0]}
    v_add_u32 v{vV[1]}, {3*GROUP}, v{vV[0]}
    s_mul_i32 s{sT1}, s{sBr}, {O_BR}
    s_add_u32 s{sT1}, s{sT1}, {O_OFF}
    """)
    srd(16, kWs, f"s{sT1}", O_BR)
    a(f"""
    s_lshl_b32 s{sT2}, s{sHead}, 16
    s_lshl_b32 s{sT1}, s{sTok}, 4
    s_add_u32 s{sT2}, s{sT2}, s{sT1}
    v_lshlrev_b32 v{vOst}, 15, v{T[1]}
    v_lshl_add_u32 v{vOst}, v{T[0]}, 4, v{vOst}
    v_add_u32 v{vOst}, s{sT2}, v{vOst}
    s_lshl_b32 s{sT2}, s{sHead}, 14
    s_lshl_b32 s{sT1}, s{sTok}, 3
    s_add_u32 s{sT2}, s{sT2}, s{sT1}
    s_add_u32 s{sT2}, s{sT2}, {O_TAIL}
    v_lshlrev_b32 v{vOst2}, 3, v{T[0]}
    v_lshl_add_u32 v{vOst2}, v{T[1]}, 24, v{vOst2}
    v_add_u32 v{vOst2}, s{sT2}, v{vOst2}
    s_lshl_b32 s{sF3}, s{sBr}, 13
    s_lshl_b32 s{sT1}, s{sTok}, 2
    s_add_u32 s{sF3}, s{sF3}, s{sT1}
    s_lshl_b32 s{sT1}, s{sHead}, 3
    s_add_u32 s{sF3}, s{sF3}, s{sT1}
    s_add_u32 s{sF3}, s{sF3}, {F3}
    """)
    a.c("flag addresses to poll (T5): B: slots 12..15 ; A: lanes 0-15 K slot, 16-31 V slot, 32-63 Q slot (own 4 mt)")
    a(f"""
    s_lshr_b32 s{sT1}, s{sHead}, 3
    s_lshl_b32 s{sT1}, s{sT1}, 7
    v_and_b32 v{T[2]}, 15, v{vL}
    v_lshrrev_b32 v{T[3]}, 4, v{vL}
    v_add_u32 v{T[3]}, 1, v{T[3]}
    v_lshlrev_b32 v{T[3]}, 9, v{T[3]}
    v_lshl_add_u32 v{T[3]}, v{T[2]}, 3, v{T[3]}
    v_and_b32 v{T[2]}, 3, v{vL}
    s_lshl_b32 s{sT2}, s{sT3}, 5
    v_lshl_add_u32 v{T[2]}, v{T[2]}, 3, s{sT2}
    v_cmp_gt_u32 vcc, 32, v{vL}
    v_lshlrev_b32 v{T[4]}, 3, v{vL}
    v_add_u32 v{T[4]}, {12*128}, v{T[4]}
    v_cndmask_b32 v{T[5]}, v{T[2]}, v{T[3]}, vcc
    v_add_u32 v{T[5]}, s{sT1}, v{T[5]}
    s_cmp_eq_u32 s{sBr}, 0
    s_cselect_b64 vcc, -1, 0
    s_lshl_b32 s{sT1}, s{sT0}, 11
    s_add_u32 s{sT1}, s{sT1}, {F1}
    v_cndmask_b32 v{T[5]}, v{T[4]}, v{T[5]}, vcc
    v_add_u32 v{T[5]}, s{sT1}, v{T[5]}
    """)
    for s in range(2):
        for r in range(16): a(f"v_mov_b32 v{O[s]+r}, 0")
    for r in range(8, 16): a(f"v_mov_b32 v{S[1][1]+r}, 0")
    for r in range(4): a(f"v_mov_b32 v{V[1][1]+r}, 0")
    a(f"""
    s_cmp_eq_u32 s{sBr}, 0
    s_cselect_b32 s{sT1}, s{sHead}, 32
    s_mul_i32 s{sT1}, s{sT1}, {KV_SET}
    s_lshl_b32 s{sT2}, s{sBr}, 5
    s_add_u32 s{sT2}, s{sT2}, s{sHead}
    s_mul_i32 s{sT2}, s{sT2}, {Q_HEAD}
    s_mul_i32 s{sT3}, s{sTok}, 40
    s_add_u32 s{sT2}, s{sT2}, s{sT3}
    s_add_u32 s{sT2}, s{sT2}, {Q_OFF}
    """)
    get_nonce()
    srd(8, kWs, f"s{sT1}", KV_SET)
    srd(12, kWs, f"s{sT2}", 2560)
    a(f"""
    s_barrier
    s_cmp_lg_u32 s{sW}, 0
    s_cbranch_scc1 L_f1w
    """)
    put_flag(sFl, 11)
    mark(4)
    a(f"""
    s_mov_b32 s{sSpin}, {SPIN}
    L_f1l:
    global_load_dwordx2 {vr(vF,2)}, v{T[5]}, s[{kWs}:{kWs+1}] sc1
    s_waitcnt vmcnt(0)
    v_cmp_ne_u64 vcc, s[{sN}:{sN+1}], {vr(vF,2)}
    s_sub_u32 s{sSpin}, s{sSpin}, 1
    s_cbranch_scc1 L_f1w
    s_cbranch_vccz L_f1w
    s_sleep {SL1}
    s_branch L_f1l
    L_f1w:
    s_barrier
    """)
    mark(5)
    for s in range(2):
        a(f"buffer_load_dwordx4 {vr(Q0[s],4)}, v{vK[0]}, s[12:15], 0 offen offset:{1280*s} {SC}")
        a(f"buffer_load_dword v{Q1[s]}, v{vK1[0]}, s[12:15], 0 offen offset:{1280*s+1024} {SC}")
    a(f"s_lshl_b32 s{sOff}, s{sW}, 10")
    dma = f"buffer_load_dwordx4 v{vD}, s[8:11], s{sOff} offen {SC} lds"
    for k in range(4):
        a(f"s_mov_b32 m0, s{sOff}\ns_nop 0\n{dma}\ns_add_u32 s{sOff}, s{sOff}, 8192")
    def qk1(s, Tt): p = Tt % 2; return f"v_mfma_f32_32x32x16_bf16 {vr(S[s][p],16)}, {vr(K0[p],4)}, {vr(Q0[s],4)}, 0"
    def qk2(s, Tt): p = Tt % 2; return f"v_mfma_f32_32x32x8_bf16 {vr(S[s][p],16)}, {vr(K1[p],2)}, {vr(Q1[s],2)}, {vr(S[s][p],16)}"
    def pv(s, Tt, h): p = Tt % 2; return f"v_smfmac_f32_32x32x32_bf16 {vr(O[s],16)}, {vr(V[p][h],4)}, {vr(S[s][p]+8*h,8)}, v{vIdx}"
    def rowmax(first):
        for s in range(2):
            x = S[s][0]
            if first:
                a(f"v_max3_f32 v{vM[s]}, v{x}, v{x+1}, v{x+2}")
                for r in range(3, 15, 2): a(f"v_max3_f32 v{vM[s]}, v{x+r}, v{x+r+1}, v{vM[s]}")
                a(f"v_max_f32 v{vM[s]}, v{x+15}, v{vM[s]}")
            else:
                for r in range(0, 16, 2): a(f"v_max3_f32 v{vM[s]}, v{x+r}, v{x+r+1}, v{vM[s]}")
    def crossmax():
        a(f"""
        v_mov_b32 v{T[0]}, v{vM[0]}
        v_mov_b32 v{T[1]}, v{vM[1]}
        s_nop 1
        v_permlane32_swap_b32 v{T[0]}, v{vM[0]}
        v_permlane32_swap_b32 v{T[1]}, v{vM[1]}
        s_nop 1
        v_max_f32 v{vM[0]}, v{vM[0]}, v{T[0]}
        v_max_f32 v{vM[1]}, v{vM[1]}, v{T[1]}
        """)
    a("s_waitcnt vmcnt(3)\ns_barrier")
    mark(6)
    a(f"""
    ds_read_b128 {vr(K0[0],4)}, v{vK[0]}
    ds_read_b32 v{K1[0]}, v{vK1[0]} offset:1024
    ds_read_b128 {vr(K0[1],4)}, v{vK[0]} offset:{TILE}
    ds_read_b32 v{K1[1]}, v{vK1[0]} offset:{TILE+1024}
    ds_read_b128 {vr(V[0][0],4)}, v{vV[0]} offset:1280
    ds_read_b128 {vr(V[0][1],4)}, v{vV[0]} offset:{1280+672}
    s_waitcnt lgkmcnt(4)
    {qk1(0,0)}
    {qk2(0,0)}
    {qk1(1,0)}
    {qk2(1,0)}
    v_cmp_gt_u32 vcc, 32, v{vL}
    s_nop 8
    """)
    rowmax(True)
    crossmax()
    for s in range(2):
        a(f"""
        v_sub_f32 v{T[2]}, 0, v{vM[s]}
        v_and_b32 v{T[3]}, 0xffff0000, v{T[2]}
        v_sub_f32 v{T[4]}, v{T[2]}, v{T[3]}
        v_and_b32 v{T[4]}, 0xffff0000, v{T[4]}
        v_cndmask_b32 v{T[5]}, v{T[4]}, v{T[3]}, vcc
        v_lshrrev_b32 v{Q1[s]+1}, 16, v{T[5]}
        v_add_f32 v{vP+2*s}, v{T[3]}, v{T[4]}
        v_add_f32 v{vP+2*s+1}, v{T[3]}, v{T[4]}
        """)
    for s in range(2):
        for r in range(0, 16, 2): a(f"v_pk_add_f32 {vr(S[s][0]+r,2)}, {vr(S[s][0]+r,2)}, {vr(vP+2*s,2)}")
    a(f"""
    s_mov_b32 s{sC}, 0
    s_setprio 1
    s_waitcnt vmcnt(2) lgkmcnt(0)
    s_barrier
    """)
    mark(7)
    def body(first):
        for t in range(16):
            Tt = 16 + t
            def ad(regs, tl, o):
                return f"v{regs[1]} offset:{(tl-12)*TILE+o}" if 12 <= tl < 16 else f"v{regs[0]} offset:{tl*TILE+o}"
            for s in range(2):
                X = S[s][Tt % 2]
                e = lambda i: a(f"v_exp_f32 v{X+i}, v{X+i}")
                e(0); e(1)
                if s == 0:
                    a(pv(1, Tt - 1, 1))
                    a(f"ds_read_b128 {vr(V[(Tt+1)%2][0],4)}, {ad(vV,t+1,1280)}")
                else:
                    a(pv(0, Tt, 1))
                    if first: a(f"s_mov_b32 m0, s{sOff}")
                    if stamp and "as" in DBG and t % 4 == 0: a("s_memtime s[88:89]")
                    a(f"ds_read_b128 {vr(V[(Tt+1)%2][1],4)}, {ad(vV,t+1,1952)}")
                e(2); e(3); e(4); e(5)
                a(qk1(s, Tt + 1))
                if s == 0: a(f"ds_read_b128 {vr(K0[Tt%2],4)}, {ad(vK,t+2,0)}")
                elif first: a(dma)
                elif t == 15: a(f"s_add_u32 s{sC}, s{sC}, 1")
                e(6); e(7); e(8); e(9)
                a(pv(s, Tt, 0))
                if s == 0:
                    a("s_waitcnt lgkmcnt(2)")
                    a(f"ds_read_b32 v{K1[Tt%2]}, {ad(vK1,t+2,1024)}")
                else:
                    if first: a(f"s_add_u32 s{sOff}, s{sOff}, 8192")
                    if stamp and "as" in DBG and t % 4 == 0:
                        a(f"s_waitcnt lgkmcnt(0)\ns_sub_u32 s88, s88, s48\ns_mov_b32 m0, s63\ns_add_u32 s63, s63, 1\nv_writelane_b32 v255, s88, m0")
                    a("s_waitcnt lgkmcnt(1)")
                    if not first and t == 11:
                        a(f"s_cmp_eq_u32 s{sC}, 3\ns_cbranch_scc1 L_bal\nL_balr:")
                e(10); e(11); e(12); e(13)
                a(qk2(s, Tt + 1))
                e(14); e(15)
            if first and t % 4 == 3:
                a("s_waitcnt vmcnt(4)\ns_barrier")
    def bump():
        for r in (vK, vK1, vV): a(f"v_add_u32 v{r[0]}, {4*GROUP}, v{r[0]}")
        a(f"""
        s_cmp_eq_u32 s{sC}, 3
        s_mov_b32 s{sT0}, {4*GROUP}
        s_cmov_b32 s{sT0}, {(4*GROUP - 15*GROUP) & 0xffffffff}
        """)
        for r in (vK, vK1, vV): a(f"v_add_u32 v{r[1]}, s{sT0}, v{r[1]}")
    a.raw(".p2align 6")
    body(True)
    a.c("group 15 -> slot 0 (all waves are past group 0)")
    a(f"""
    s_lshl_b32 s{sT0}, s{sW}, 11
    s_min_u32 s{sT1}, s{sT0}, {GROUP-1024}
    s_mov_b32 m0, s{sT1}
    s_add_u32 s{sOff}, s{sT1}, {15*GROUP}
    {dma}
    s_add_u32 s{sT0}, s{sT0}, 1024
    s_min_u32 s{sT1}, s{sT0}, {GROUP-1024}
    s_mov_b32 m0, s{sT1}
    s_add_u32 s{sOff}, s{sT1}, {15*GROUP}
    {dma}
    s_mov_b32 s{sC}, 1
    """)
    bump()
    a.raw(".p2align 6")
    a.label("L_loop")
    body(False)
    a(f"""
    s_cmp_eq_u32 s{sC}, 4
    s_cbranch_scc1 L_adone
    """)
    bump()
    a(f"""
    s_cmp_lg_u32 s{sC}, 2
    s_cbranch_scc1 L_loop
    s_waitcnt vmcnt(0)
    s_barrier
    s_cmp_eq_u32 s{sHi}, 0
    s_cbranch_scc1 L_loop
    s_setprio 2
    s_branch L_loop
    L_adone:
    s_setprio 3
    s_waitcnt lgkmcnt(0)
    {pv(1, 31, 1)}
    """)
    mark(8)
    lo, hi = 0x2b800000, 0x5d800000
    if force_fallback: lo = 0x7f000000
    lb = lambda s: f"v_mov_b32 v{O[s]+13}, v{O[s]+12}\ns_nop 1\nv_permlane32_swap_b32 v{O[s]+12}, v{O[s]+13}\ns_nop 1"
    for s in range(2):
        a(lb(s))
        a(f"v_mov_b32 v{T[s]}, v{O[s]+12}")
        for r in range(12): a(f"v_fma_f32 v{T[s]}, v{O[s]+r}, 0, v{T[s]}")
    a(f"""
    v_cmp_le_f32 vcc, 0x{lo:x}, v{T[0]}
    s_mov_b64 s[{sM0}:{sM1}], vcc
    v_cmp_le_f32 vcc, 0x{lo:x}, v{T[1]}
    s_and_b64 s[{sM0}:{sM1}], s[{sM0}:{sM1}], vcc
    v_cmp_ge_f32 vcc, 0x{hi:x}, v{T[0]}
    s_and_b64 s[{sM0}:{sM1}], s[{sM0}:{sM1}], vcc
    v_cmp_ge_f32 vcc, 0x{hi:x}, v{T[1]}
    s_and_b64 s[{sM0}:{sM1}], s[{sM0}:{sM1}], vcc
    s_cmp_eq_u64 s[{sM0}:{sM1}], -1
    s_cbranch_scc0 L_fallback
    L_store:
    v_rcp_f32 v{vP}, v{O[0]+12}
    v_rcp_f32 v{vP+2}, v{O[1]+12}
    v_mov_b32 v{vP+1}, v{vP}
    v_mov_b32 v{vP+3}, v{vP+2}
    """)
    for s in range(2):
        for r in range(0, 12, 2): a(f"v_pk_mul_f32 {vr(O[s]+r,2)}, {vr(O[s]+r,2)}, {vr(vP+2*s,2)}")
        for r in range(6): a(f"v_cvt_pk_bf16_f32 v{S[s][0]+r}, v{O[s]+2*r}, v{O[s]+2*r+1}")
        a(f"buffer_store_dwordx4 {vr(S[s][0],4)}, v{vOst}, s[16:19], 0 offen offset:{512*s} {SC}")
        a(f"buffer_store_dwordx2 {vr(S[s][0]+4,2)}, v{vOst2}, s[16:19], 0 offen offset:{256*s} {SC}")

    R = RegAlloc(O[1] + 16)
    OW = [[R.alloc(f"OW{p}{q}") for q in range(5)] for p in range(2)]
    oM = R.alloc("oM"); oT = R.alloc("oT"); oF = R.alloc("oF"); oW = [R.alloc("oW0"), R.alloc("oW1")]; oS = [R.alloc("oS0"), R.alloc("oS1")]
    nvmax.append(R.n)
    R = RegAlloc(BASE)
    OF = [R.alloc(f"OF{k}", 4, 4) for k in range(16)]
    OT = [R.alloc(f"OT{k}", 2, 2) for k in range(8)]
    WB = [[R.alloc(f"WB{b}{t}", 4, 4) for t in range(5)] for b in range(2)]
    WT = [R.alloc(f"WT{t}", 2, 2) for t in range(5)]
    OC = [R.alloc(f"OC{t}", 4, 4) for t in range(5)]
    assert R.n <= OW[0][0]
    sNt, sDone, sNew = 34, 35, 36
    for q in range(5):
        a(f"v_add_u32 v{T[0]}, {64*q}, v{vL}")
        divc(T[1], T[2], T[0], 10, 6554, 16)
        a(f"""
        v_lshrrev_b32 v{T[4]}, 4, v{T[1]}
        v_and_b32 v{T[5]}, 3, v{T[1]}
        v_bfe_u32 v{T[6]}, v{T[1]}, 3, 1
        v_mul_u32_u24 v{T[6]}, 20, v{T[6]}
        v_and_b32 v{T[7]}, 4, v{T[1]}
        v_add3_u32 v{T[6]}, v{T[6]}, v{T[7]}, v{T[5]}
        v_lshl_add_u32 v{T[6]}, v{T[4]}, 3, v{T[6]}
        v_mul_u32_u24 v{T[6]}, 1280, v{T[6]}
        v_lshl_add_u32 v{OW[0][q]}, v{T[2]}, 4, v{T[6]}
        v_lshrrev_b32 v{T[6]}, 2, v{T[1]}
        v_mul_u32_u24 v{T[6]}, 20, v{T[6]}
        v_add3_u32 v{T[6]}, v{T[6]}, v{T[5]}, 16
        v_mul_u32_u24 v{T[6]}, 1280, v{T[6]}
        v_lshl_add_u32 v{OW[1][q]}, v{T[2]}, 4, v{T[6]}
        """)
    a(f"""
    s_and_b32 s{sT0}, s2, 7
    s_lshr_b32 s{sT1}, s2, 3
    s_lshr_b32 s{sBr}, s{sT0}, 2
    s_and_b32 s{sT0}, s{sT0}, 3
    s_lshl_b32 s{sT0}, s{sT0}, 2
    s_and_b32 s{sT2}, s{sT1}, 3
    s_add_u32 s{sT0}, s{sT0}, s{sT2}
    s_lshr_b32 s{sNt}, s{sT1}, 2
    s_lshl_b32 s{sTok}, s{sT0}, 7
    s_lshl_b32 s{sT0}, s{sW}, 4
    s_add_u32 s{sTok}, s{sTok}, s{sT0}
    v_and_b32 v{T[4]}, 15, v{vL}
    v_lshrrev_b32 v{T[1]}, 4, v{vL}
    v_add_u32 v{T[5]}, s{sTok}, v{T[4]}
    v_lshlrev_b32 v{oM}, 15, v{T[1]}
    v_lshl_add_u32 v{oM}, v{T[5]}, 4, v{oM}
    v_lshlrev_b32 v{oT}, 14, v{T[1]}
    v_lshl_add_u32 v{oT}, v{T[5]}, 3, v{oT}
    v_lshrrev_b32 v{T[6]}, 2, v{vL}
    v_mul_u32_u24 v{T[6]}, 160, v{T[6]}
    v_and_b32 v{T[7]}, 3, v{vL}
    v_lshl_add_u32 v{oW[0]}, v{T[7]}, 3, v{T[6]}
    v_add_u32 v{oW[1]}, 51200, v{oW[0]}
    v_mul_u32_u24 v{T[4]}, 2560, v{T[4]}
    v_lshl_add_u32 v{oS[1]}, v{T[1]}, 3, v{T[4]}
    v_and_b32 v{T[6]}, 1, v{T[1]}
    v_lshl_add_u32 v{T[6]}, v{T[6]}, 5, v{T[4]}
    v_lshrrev_b32 v{T[1]}, 1, v{T[1]}
    v_lshl_add_u32 v{oS[0]}, v{T[1]}, 4, v{T[6]}
    s_lshl_b32 s{sT0}, s{sNt}, 14
    s_lshl_b32 s{sT1}, s{sBr}, 13
    s_add_u32 s{sT0}, s{sT0}, s{sT1}
    s_lshr_b32 s{sT1}, s{sTok}, 6
    s_lshl_b32 s{sT1}, s{sT1}, 8
    s_add_u32 s{sT0}, s{sT0}, s{sT1}
    s_add_u32 s{sT0}, s{sT0}, {F3}
    v_and_b32 v{oF}, 31, v{vL}
    v_lshl_add_u32 v{oF}, v{oF}, 3, s{sT0}
    s_cmp_eq_u32 s{sBr}, 0
    s_cselect_b32 s{sT0}, s{kAo}, s{kBo}
    s_cselect_b32 s{sT1}, s{kAo+1}, s{kBo+1}
    s_mul_i32 s{sT2}, s{sNt}, 160
    s_add_u32 s12, s{sT0}, s{sT2}
    s_addc_u32 s13, s{sT1}, 0
    s_sub_u32 s14, {640*1280}, s{sT2}
    s_mov_b32 s15, 0x00020000
    s_waitcnt vmcnt(0)
    """)
    put_flag(sF3, 14)
    mark(9)
    a(f"""
    s_mul_i32 s{sT0}, s{sBr}, {O_BR}
    s_add_u32 s{sT0}, s{sT0}, {O_OFF}
    """)
    srd(8, kWs, f"s{sT0}", O_BR)
    a(f"""
    s_mul_i32 s{sT0}, s{sTok}, 2560
    s_mul_i32 s{sT1}, s{sBr}, 1280
    s_add_u32 s{sT0}, s{sT0}, s{sT1}
    s_add_u32 s{sT0}, s{sT0}, s{sT2}
    s_sub_u32 s{sT1}, {2048*2560}, s{sT0}
    """)
    srd(16, kOut, f"s{sT0}", f"s{sT1}")
    a(f"""
    s_mul_i32 s{sT0}, s{sW}, 5120
    s_mul_i32 s{sT1}, s{sW}, {40*1280}
    s_add_u32 s{sT2}, s{sT1}, {8*40*1280}
    s_mul_i32 s{sT3}, s{sW}, {160*1280}
    s_barrier
    """)
    lstamp("os")
    def blk(pat, moff, soff):
        for q in range(5):
            a(f"s_add_u32 m0, s{sT0}, {moff + q*1024}\ns_nop 0\nbuffer_load_dwordx4 v{OW[pat][q]}, s[12:15], s{soff} offen lds")
    blk(0, 0, sT1); blk(0, 8 * 5120, sT2)
    a(f"s_cmp_eq_u32 s{sHi}, 0\ns_cbranch_scc0 L_ow3")
    blk(1, 16 * 5120, sT3)
    a.label("L_ow3")
    for t in range(5):
        for r in range(4): a(f"v_mov_b32 v{OC[t]+r}, 0")
    a(f"""
    s_mov_b32 s{sDone}, 0
    s_mov_b32 s{sNew}, 0
    s_mov_b32 s{sSpin}, {SPIN}
    global_load_dwordx2 {vr(vF,2)}, v{oF}, s[{kWs}:{kWs+1}] sc1
    s_waitcnt vmcnt(0)
    s_barrier
    """)
    mark(10)
    lstamp("os")
    a.label("L_rnd")
    a(f"""
    v_cmp_eq_u64 vcc, s[{sN}:{sN+1}], {vr(vF,2)}
    s_sub_u32 s{sSpin}, s{sSpin}, 1
    s_cselect_b32 vcc_lo, -1, vcc_lo
    s_lshr_b32 s{sT0}, vcc_lo, 1
    s_and_b32 s{sT0}, s{sT0}, vcc_lo
    s_lshr_b32 s{sT1}, s{sT0}, 2
    s_and_b32 s{sT0}, s{sT0}, s{sT1}
    s_and_b32 s{sT0}, s{sT0}, 0x11111111
    s_andn2_b32 s{sT3}, s{sT0}, s{sDone}
    s_or_b32 s{sDone}, s{sDone}, s{sT3}
    """)
    for un in range(8):
        a(f"""
        s_bitcmp0_b32 s{sT3}, {4*un}
        s_cbranch_scc1 L_ld{un}
        s_mov_b32 s{sT0}, {8*un*32768}
        s_mov_b32 s{sT1}, {(8*un+4)*32768}
        s_mov_b32 s{sT2}, {O_TAIL + 4*un*16384}
        buffer_load_dwordx2 {vr(OT[un],2)}, v{oT}, s[8:11], s{sT2} offen {SC}
        buffer_load_dwordx4 {vr(OF[2*un],4)}, v{oM}, s[8:11], s{sT0} offen {SC}
        buffer_load_dwordx4 {vr(OF[2*un+1],4)}, v{oM}, s[8:11], s{sT1} offen {SC}
        L_ld{un}:
        """)
    a(f"""
    s_cmp_eq_u32 s{sDone}, 0x11111111
    s_cbranch_scc1 L_mm
    s_sleep {SL4}
    global_load_dwordx2 {vr(vF,2)}, v{oF}, s[{kWs}:{kWs+1}] sc1
    """)
    a.label("L_mm")
    def wad(blkidx, extra):
        off = blkidx * 5120 + extra
        return (oW[0], off) if off < 51200 else (oW[1], off - 51200)
    for un in range(8):
        a(f"s_bitcmp0_b32 s{sNew}, {4*un}\ns_cbranch_scc1 L_mm{un}")
        for t in range(5):
            r_, o_ = wad(16, un * 2560 + 32 * t)
            a(f"ds_read_b64_tr_b16 {vr(WT[t],2)}, v{r_} offset:{o_}")
        for t in range(5):
            for hr in range(2):
                r_, o_ = wad(2 * un, hr * 2560 + 32 * t)
                a(f"ds_read_b64_tr_b16 {vr(WB[0][t]+2*hr,2)}, v{r_} offset:{o_}")
        a("s_waitcnt lgkmcnt(10)")
        for t in range(5):
            a(f"v_mfma_f32_16x16x16_bf16 {vr(OC[t],4)}, {vr(WT[t],2)}, {vr(OT[un],2)}, {vr(OC[t],4)}")
        a("s_waitcnt lgkmcnt(0)")
        for t in range(5):
            a(f"v_mfma_f32_16x16x32_bf16 {vr(OC[t],4)}, {vr(WB[0][t],4)}, {vr(OF[2*un],4)}, {vr(OC[t],4)}")
            for hr in range(2):
                r_, o_ = wad(2 * un + 1, hr * 2560 + 32 * t)
                a(f"ds_read_b64_tr_b16 {vr(WB[1][t]+2*hr,2)}, v{r_} offset:{o_}")
        for t in range(5):
            a(f"s_waitcnt lgkmcnt({8-2*t})")
            a(f"v_mfma_f32_16x16x32_bf16 {vr(OC[t],4)}, {vr(WB[1][t],4)}, {vr(OF[2*un+1],4)}, {vr(OC[t],4)}")
        a.label(f"L_mm{un}")
    a(f"""
    s_mov_b32 s{sNew}, s{sT3}
    s_mov_b32 s{sT3}, 0
    s_cmp_lg_u32 s{sDone}, 0x11111111
    s_cbranch_scc1 L_more
    s_cmp_eq_u32 s{sNew}, 0
    s_cbranch_scc1 L_ost
    """)
    lstamp("os")
    a("s_waitcnt vmcnt(0)")
    lstamp("os")
    a(f"""
    s_branch L_mm
    L_more:
    s_waitcnt vmcnt(0)
    s_branch L_rnd
    L_ost:
    s_nop 1
    """)
    mark(11)
    for t in range(5):
        p = OF[0] + 2 * t
        a(f"v_cvt_pk_bf16_f32 v{p}, v{OC[t]}, v{OC[t]+1}")
        a(f"v_cvt_pk_bf16_f32 v{p+1}, v{OC[t]+2}, v{OC[t]+3}")
        if t % 2 == 1:
            a(f"s_nop 1\nv_permlane16_swap_b32 v{p-2}, v{p}\nv_permlane16_swap_b32 v{p-1}, v{p+1}")
            a(f"buffer_store_dwordx4 {vr(p-2,4)}, v{oS[0]}, s[16:19], 0 offen offset:{64*(t//2)}")
    a(f"buffer_store_dwordx2 {vr(OF[0]+8,2)}, v{oS[1]}, s[16:19], 0 offen offset:128")
    mark(12)
    stamp_end()
    a.label("L_end")
    a("s_endpgm")
    a.label("L_bal")
    a("s_setprio 0\ns_branch L_balr")

    a.label("L_fallback")
    for r in (vK, vK1, vV): a(f"v_subrev_u32 v{r[0]}, {12*GROUP}, v{r[0]}")
    a(f"""
    v_mov_b32 v{Q1[0]+1}, 0
    v_mov_b32 v{Q1[1]+1}, 0
    v_mov_b32 v{vM[0]}, 0xff800000
    v_mov_b32 v{vM[1]}, 0xff800000
    s_mov_b32 s{sGo}, 0
    L_fb1:
    buffer_load_dwordx4 {vr(K0[0],4)}, v{vK[0]}, s[8:11], s{sGo} offen {SC}
    buffer_load_dword v{K1[0]}, v{vK1[0]}, s[8:11], s{sGo} offen offset:1024 {SC}
    s_waitcnt vmcnt(0)
    {qk1(0,0)}
    {qk2(0,0)}
    {qk1(1,0)}
    {qk2(1,0)}
    s_add_u32 s{sGo}, s{sGo}, {TILE}
    s_nop 8
    """)
    rowmax(False)
    a(f"s_cmp_lt_u32 s{sGo}, {KV_SET}\ns_cbranch_scc1 L_fb1")
    crossmax()
    for s in range(2):
        for r in range(16): a(f"v_mov_b32 v{O[s]+r}, 0")
    a(f"""
    s_mov_b32 s{sGo}, 0
    L_fb2:
    buffer_load_dwordx4 {vr(K0[0],4)}, v{vK[0]}, s[8:11], s{sGo} offen {SC}
    buffer_load_dword v{K1[0]}, v{vK1[0]}, s[8:11], s{sGo} offen offset:1024 {SC}
    buffer_load_dwordx4 {vr(V[0][0],4)}, v{vV[0]}, s[8:11], s{sGo} offen offset:1280 {SC}
    buffer_load_dwordx4 {vr(V[0][1],4)}, v{vV[0]}, s[8:11], s{sGo} offen offset:{1280+672} {SC}
    s_waitcnt vmcnt(0)
    {qk1(0,0)}
    {qk2(0,0)}
    {qk1(1,0)}
    {qk2(1,0)}
    s_add_u32 s{sGo}, s{sGo}, {TILE}
    s_nop 8
    """)
    for s in range(2):
        for r in range(16): a(f"v_sub_f32 v{S[s][0]+r}, v{S[s][0]+r}, v{vM[s]}")
        for r in range(16): a(f"v_exp_f32 v{S[s][0]+r}, v{S[s][0]+r}")
    a(f"""
    s_nop 1
    {pv(0,0,0)}
    {pv(0,0,1)}
    {pv(1,0,0)}
    {pv(1,0,1)}
    s_cmp_lt_u32 s{sGo}, {KV_SET}
    s_cbranch_scc1 L_fb2
    s_nop 15
    {lb(0)}
    {lb(1)}
    s_branch L_store
    L_codeend:
    """)
    print("nv per phase", nvmax)
    kernel_desc(a, name, 256, 102)

if __name__ == "__main__":
    import sys
    NAME = "concat_heads__mha_block__grouped_kv_mqa__prompt"
    ref = open(f"cdna_kernels/{NAME}.s.ref").read().split("\n")
    hdr = [l for l in ref if l.startswith(";") and "@launch" not in l]
    opts = eval("dict(" + (sys.argv[2] if len(sys.argv) > 2 else "") + ")")
    a = Asm()
    a.raw('.amdgcn_target "amdgcn-amd-amdhsa--gfx950"')
    gen(a, NAME + "_kernel", **opts)
    out = "\n".join(hdr) + f"\n; @launch grid=(256,1,1) block=(512,1,1) lds={LDS}\n" + a.text()
    dst = sys.argv[1] if len(sys.argv) > 1 else f"cdna_kernels/{NAME}.s"
    open(dst, "w").write(out)
```

```python
import struct
from common import Asm, vr, RegAlloc, kernel_header, kernel_desc

def f32bits(x): return struct.unpack("<I", struct.pack("<f", x))[0]
QSCALE = f32bits((20 ** -0.5) * 1.4426950408889634)

TILE = 2624; GROUP = 4 * TILE; KV_SET = 16 * GROUP
KV_OFF = 0
Q_OFF = KV_OFF + 33 * KV_SET
Q_HEAD = 64 * 1280
O_OFF = Q_OFF + 64 * Q_HEAD
O_TAIL = 64 * 32768
O_BR = O_TAIL + 32 * 16384
F1 = O_OFF + 2 * O_BR
F3 = F1 + 8 * 2048
WS_USED = F3 + 8 * 2048
ST_OFF = 16 << 20
assert WS_USED <= ST_OFF
LDS = 163840
BIG = 0x100000
SPIN = 30000
kAx, kAw, kAo, kBx, kBq, kBk, kBv, kBo, kOut, kDbg, kWs = 64, 66, 68, 70, 72, 74, 76, 78, 80, 82, 84
sN = 86

def interleave(a, mf, rd):
    rd = list(rd); n = len(mf)
    for i, m in enumerate(mf):
        a(m)
        k = 2 if len(rd) > (n - i - 3) else 1
        for _ in range(k):
            if rd: a(rd.pop(0))
    for r in rd: a(r)

def gen(a, name, stamp=False, force_fallback=False, SC="sc1", DBG="", AHEAD=1, ROT=True, LPF=0, SL1=4, SL3=8, SL4=1, BAL=11, CPF=True, UPR=2, LA=3):
    vL = 1
    T = list(range(2, 10))
    vF = 10
    BASE = 12
    sW, sI, sT0, sT1, sT2, sT3, sC = 20, 21, 23, 24, 25, 26, 27
    sW4, sHi, sSpin, sFl, sM0, sM1 = 22, 38, 43, 39, 44, 45
    nvmax = []
    uid = [0]
    def mark(i):
        if "rt" in DBG:
            a(f"s_memrealtime s[88:89]\ns_waitcnt lgkmcnt(0)\ns_mov_b32 s{50+i}, s88")
            return
        if stamp: a(f"s_memtime s[88:89]\ns_waitcnt lgkmcnt(0)\ns_sub_u32 s{50+i}, s88, s48")
    def lstamp(tag):
        if stamp and tag in DBG:
            a(f"s_memtime s[88:89]\ns_waitcnt lgkmcnt(0)\ns_sub_u32 s88, s88, s48\ns_mov_b32 m0, s63\ns_add_u32 s63, s63, 1\ns_min_u32 s63, s63, 15\nv_writelane_b32 v255, s88, m0")
    def stamp_end():
        if "rt" in DBG:
            a(f"s_cmp_lg_u32 s{sW}, 0\ns_cbranch_scc1 L_end\ns_waitcnt vmcnt(0)\ns_memrealtime s[88:89]\ns_waitcnt lgkmcnt(0)\ns_mov_b32 s60, s88\ns_mov_b32 s63, s46\nv_mov_b32 v2, 0")
            for i in range(14):
                a(f"s_sub_u32 s88, s{50+i}, s{sN}\ns_add_u32 s88, s88, 1000\nv_writelane_b32 v2, s88, {i}")
            a(f"v_lshlrev_b32 v3, 2, v{vL}\ns_mov_b64 exec, 0x3fff\nglobal_atomic_umax v3, v2, s[{kDbg}:{kDbg+1}] offset:8 sc1")
            return
        if not stamp: return
        Z = 64
        a(f"""
        s_waitcnt vmcnt(0) lgkmcnt(0)
        s_memrealtime s[90:91]
        s_memtime s[88:89]
        s_waitcnt lgkmcnt(0)
        s_sub_u32 s88, s88, s48
        v_mov_b32 v{Z}, s46
        v_mov_b32 v{Z+1}, s90
        v_mov_b32 v{Z+2}, s88
        """)
        for i in range(13): a(f"v_mov_b32 v{Z+3+i}, s{50+i}")
        a(f"""
        s_lshl_b32 s88, s2, 3
        s_add_u32 s88, s88, s{sW}
        s_lshl_b32 s88, s88, 6
        s_add_u32 s88, s88, {ST_OFF}
        v_mov_b32 v{T[0]}, s88
        s_add_u32 s88, s88, 262144
        v_lshl_add_u32 v{T[1]}, v{vL}, 2, s88
        s_mov_b64 exec, 0xffff
        global_store_dword v{T[1]}, v255, s[{kWs}:{kWs+1}]
        s_mov_b64 exec, 1
        """)
        for i in range(4): a(f"global_store_dwordx4 v{T[0]}, {vr(Z+4*i,4)}, s[{kWs}:{kWs+1}] offset:{16*i}")
    def srd(d, base, off, size):
        a(f"""
        s_add_u32 s{d}, s{base}, {off}
        s_addc_u32 s{d+1}, s{base+1}, 0
        s_mov_b32 s{d+2}, {size}
        s_mov_b32 s{d+3}, 0x00020000
        """)
    def divc(vq, vrem, vn, d, mul, sh):
        a(f"v_mul_u32_u24 v{vq}, {mul}, v{vn}")
        a(f"v_lshrrev_b32 v{vq}, {sh}, v{vq}")
        a(f"v_mul_u32_u24 v{vrem}, {d}, v{vq}")
        a(f"v_sub_u32 v{vrem}, v{vn}, v{vrem}")
    def get_nonce():
        uid[0] += 1; u = uid[0]
        a(f"""
        v_mov_b32 v{T[0]}, 0
        s_mov_b32 s{sSpin}, {SPIN}
        L_gn{u}:
        global_load_dwordx2 {vr(vF,2)}, v{T[0]}, s[{kDbg}:{kDbg+1}] sc1
        s_waitcnt vmcnt(0)
        v_readfirstlane_b32 s{sN}, v{vF}
        v_readfirstlane_b32 s{sN+1}, v{vF+1}
        s_sub_u32 s{sSpin}, s{sSpin}, 1
        s_cbranch_scc1 L_gd{u}
        s_cmp_eq_u32 s{sN}, 0
        s_cbranch_scc1 L_gn{u}
        L_gd{u}:
        """)
    def put_flag(flag_sgpr, shift):
        a(f"""
        v_lshl_add_u32 v{T[0]}, v{vL}, {shift}, s{flag_sgpr}
        v_mov_b32 v{T[2]}, s{sN}
        v_mov_b32 v{T[3]}, s{sN+1}
        s_mov_b64 exec, 0xff
        global_store_dwordx2 v{T[0]}, {vr(T[2],2)}, s[{kWs}:{kWs+1}] sc1
        s_mov_b64 exec, -1
        """)

    kernel_header(a, name)
    sMt, sGrp, sJ4, sLd, sSt, sHS, sScale = 28, 29, 30, 31, 32, 33, 34
    sOx, sOw, sOe, sM, sLd64, sWm, sWn, sRot, sTS, sCT = 35, 36, 37, 40, 41, 42, 92, 93, 94, 95
    a(f"""
    s_getpc_b64 s[96:97]
    s_cmp_ge_u32 s2, 256
    s_cbranch_scc1 L_end
    s_load_dwordx16 s[64:79], s[0:1], 0
    s_load_dwordx4 s[80:83], s[0:1], 64
    s_load_dwordx2 s[84:85], s[0:1], 80
    s_memrealtime s[46:47]
    {"s_memtime s[48:49]" if stamp else ""}
    {"s_mov_b32 s63, 0" if stamp else ""}
    v_lshrrev_b32 v{T[0]}, 6, v0
    v_and_b32 v{vL}, 63, v0
    s_and_b32 s{sT0}, s2, 7
    v_readfirstlane_b32 s{sW}, v{T[0]}
    s_lshr_b32 s{sT1}, s2, 3
    s_lshr_b32 s{sGrp}, s{sT0}, 1
    s_and_b32 s{sMt}, s{sT0}, 1
    s_lshl_b32 s{sMt}, s{sMt}, 3
    s_and_b32 s{sT2}, s{sT1}, 7
    s_add_u32 s{sMt}, s{sMt}, s{sT2}
    s_lshr_b32 s{sJ4}, s{sT1}, 3
    s_and_b32 s{sW4}, s{sW}, 3
    s_lshr_b32 s{sHi}, s{sW}, 2
    s_cmp_ge_u32 s{sW}, 4
    s_cbranch_scc0 L_comp
    """)
    ST = 39424; NST = 4; WOFF = 16384; EOFF = 36864
    IMG = 2 * ST; IH = 5376
    R = RegAlloc(BASE)
    bX = [R.alloc(f"bX{k}") for k in range(2)]; bW = R.alloc("bW"); bE = R.alloc("bE"); bXe = [R.alloc(f"bXe{k}") for k in range(2)]
    aX = [R.alloc(f"aX{k}") for k in range(2)]; aW = R.alloc("aW"); aE = R.alloc("aE"); aXe = [R.alloc(f"aXe{k}") for k in range(2)]
    A0 = [R.alloc(f"A0{i}") for i in range(5)]; A1 = [R.alloc(f"A1{i}") for i in range(5)]
    assert A1[1] % 2 == 0
    AE = [R.alloc(f"AE{i}") for i in range(2)]
    FX = [[R.alloc(f"FX{b}{i}", 4, 4) for i in range(4)] for b in range(2)]
    FW = [[R.alloc(f"FW{b}{i}", 4, 4) for i in range(5)] for b in range(2)]
    FXe = [R.alloc(f"FXe{b}", 4, 4) for b in range(2)]
    FE = [[R.alloc(f"FE{b}{i}", 4, 4) for i in range(2)] for b in range(2)]
    ACC = [[R.alloc(f"C{m}{n}", 4, 4) for n in range(5)] for m in range(4)]
    ACE = [R.alloc(f"CE{n}", 4, 4) for n in range(2)]
    SO = [R.alloc(f"SO{q}") for q in range(6)]
    nvmax.append(R.n)
    LX = [FX[0][0] + i for i in range(4)]; LW = [FX[0][1] + i for i in range(5)]; LE = FX[0][3]
    a(f"""
    s_setprio 2
    s_cmp_eq_u32 s{sGrp}, 3
    s_mov_b32 s{sLd}, 3840
    s_cmov_b32 s{sLd}, 1280
    s_mul_i32 s{sRot}, s{sJ4}, 3
    s_add_u32 s{sRot}, s{sRot}, s{sT2}
    s_cmp_ge_u32 s{sRot}, 10
    s_cselect_b32 s{sT0}, 10, 0
    s_sub_u32 s{sRot}, s{sRot}, s{sT0}
    {"" if ROT else f"s_mov_b32 s{sRot}, 0"}
    v_lshrrev_b32 v{T[0]}, 3, v{vL}
    s_lshl_b32 s{sT0}, s{sW4}, 5
    v_add_u32 v{T[0]}, s{sT0}, v{T[0]}
    v_mul_u32_u24 v{T[0]}, 1280, v{T[0]}
    v_and_b32 v{T[1]}, 7, v{vL}
    v_lshrrev_b32 v{T[2]}, 4, v{vL}
    v_xor_b32 v{T[1]}, v{T[1]}, v{T[2]}
    v_xor_b32 v{T[2]}, 4, v{T[1]}
    v_lshl_add_u32 v{LX[0]}, v{T[1]}, 4, v{T[0]}
    v_lshl_add_u32 v{LX[1]}, v{T[2]}, 4, v{T[0]}
    v_add_u32 v{LX[1]}, 10240, v{LX[1]}
    v_add_u32 v{LX[2]}, 20480, v{LX[0]}
    v_add_u32 v{LX[3]}, 20480, v{LX[1]}
    s_lshl_b32 s{sLd64}, s{sLd}, 6
    s_lshr_b32 s{sT0}, s{sW4}, 1
    s_mul_i32 s{sT0}, s{sT0}, 160
    s_and_b32 s{sT1}, s{sW4}, 1
    s_mul_i32 s{sT1}, s{sT1}, s{sLd}
    s_lshl_b32 s{sT1}, s{sT1}, 5
    s_add_u32 s{sM}, s{sT0}, s{sT1}
    v_mov_b32 v{T[7]}, s{sLd}
    """)
    for q in range(5):
        a(f"v_add_u32 v{T[0]}, {q*64}, v{vL}")
        divc(T[1], T[2], T[0], 10, 6554, 16)
        a(f"""
        v_lshl_add_u32 v{T[3]}, v{T[2]}, 4, s{sM}
        v_and_b32 v{T[4]}, 3, v{T[1]}
        v_and_b32 v{T[5]}, 12, v{T[1]}
        v_lshl_add_u32 v{T[4]}, v{T[5]}, 1, v{T[4]}
        v_lshrrev_b32 v{T[5]}, 4, v{T[1]}
        v_lshl_add_u32 v{T[4]}, v{T[5]}, 2, v{T[4]}
        v_mad_u32_u24 v{LW[q]}, v{T[4]}, v{T[7]}, v{T[3]}
        """)
    a(f"""
    s_mul_i32 s{sT0}, s{sW4}, 640
    v_lshlrev_b32 v{LE}, 4, v{vL}
    v_add_u32 v{LE}, s{sT0}, v{LE}
    s_lshl_b32 s{sOx}, s{sRot}, 7
    s_mul_i32 s{sOw}, s{sRot}, s{sLd64}
    s_mul_i32 s{sOe}, s{sRot}, 2560
    s_mul_i32 s{sT0}, s{sMt}, 163840
    s_mov_b32 s10, 163840
    s_mov_b32 s11, 0x00020000
    s_mov_b32 s15, 0x00020000
    s_mov_b32 s18, 25600
    s_mov_b32 s19, 0x00020000
    s_cmp_eq_u32 s{sGrp}, 3
    s_cselect_b32 s{sT1}, 0, s{sGrp}
    s_mov_b32 s14, {640*3840}
    s_cmov_b32 s14, {640*1280}
    s_waitcnt lgkmcnt(0)
    s_cselect_b32 s8, s{kBx}, s{kAx}
    s_cselect_b32 s9, s{kBx+1}, s{kAx+1}
    s_cselect_b32 s12, s{kBq}, s{kAw}
    s_cselect_b32 s13, s{kBq+1}, s{kAw+1}
    s_add_u32 s8, s8, s{sT0}
    s_addc_u32 s9, s9, 0
    s_mul_i32 s{sT1}, s{sT1}, 1280
    s_mul_i32 s{sT0}, s{sJ4}, 320
    s_add_u32 s{sT0}, s{sT0}, s{sT1}
    s_add_u32 s12, s12, s{sT0}
    s_addc_u32 s13, s13, 0
    s_sub_u32 s14, s14, s{sT0}
    s_cmp_lt_u32 s{sJ4}, 2
    s_cselect_b32 s16, s{kBk}, s{kBv}
    s_cselect_b32 s17, s{kBk+1}, s{kBv+1}
    s_lshl_b32 s{sT0}, s{sW4}, 12
    s_mul_i32 s{sT1}, s{sW4}, 5120
    s_add_u32 s{sT1}, s{sT1}, {WOFF}
    s_mul_i32 s{sT2}, s{sW4}, 640
    s_add_u32 s{sT2}, s{sT2}, {EOFF}
    s_mov_b32 s{sSt}, 0
    s_mov_b32 s{sC}, 0
    s_cmp_eq_u32 s{sGrp}, 3
    s_cbranch_scc1 L_llB
    """)
    def issue(ext):
        for q in range(4):
            a(f"s_add_u32 m0, s{sT0}, {q*1024}\ns_nop 0\nbuffer_load_dwordx4 v{LX[q]}, s[8:11], s{sOx} offen lds")
        for q in range(5):
            a(f"s_add_u32 m0, s{sT1}, {q*1024}\ns_nop 0\nbuffer_load_dwordx4 v{LW[q]}, s[12:15], s{sOw} offen lds")
        if ext:
            a(f"""
            s_mov_b32 m0, s{sT2}
            s_mov_b32 exec_hi, 0xff
            buffer_load_dwordx4 v{LE}, s[16:19], s{sOe} offen lds
            s_mov_b32 exec_hi, -1
            s_add_u32 s{sOe}, s{sOe}, 2560
            """)
        a(f"""
        s_add_u32 s{sOx}, s{sOx}, 128
        s_add_u32 s{sOw}, s{sOw}, s{sLd64}
        s_cmp_eq_u32 s{sOx}, 1280
        s_cselect_b32 s{sOx}, 0, s{sOx}
        s_cselect_b32 s{sOw}, 0, s{sOw}
        s_cselect_b32 s{sOe}, 0, s{sOe}
        s_add_u32 s{sSt}, s{sSt}, 1
        s_and_b32 s{sSt}, s{sSt}, 3
        s_mov_b32 s{sM}, {ST}
        s_cmp_eq_u32 s{sSt}, 0
        s_cmov_b32 s{sM}, {(-3*ST) & 0xffffffff}
        s_add_u32 s{sT0}, s{sT0}, s{sM}
        s_add_u32 s{sT1}, s{sT1}, s{sM}
        s_add_u32 s{sT2}, s{sT2}, s{sM}
        """)
    for ext in (False, True):
        tag = "B" if ext else "A"
        n = 10 if ext else 9
        a.label(f"L_ll{tag}")
        issue(ext)
        a(f"""
        s_add_u32 s{sC}, s{sC}, 1
        s_cmp_lt_u32 s{sC}, {AHEAD+1}
        s_cbranch_scc1 L_ll{tag}
        s_waitcnt vmcnt({AHEAD*n})
        s_barrier
        s_cmp_lt_u32 s{sC}, 10
        s_cbranch_scc1 L_ll{tag}
        """)
        for c in range(AHEAD):
            a(f"s_waitcnt vmcnt({(AHEAD-1-c)*n})\ns_barrier")
        if not ext: a("s_branch L_ldone")
    a.label("L_ldone")
    a.c("loader waves: ones rows of the V image (2 heads per wave x 16 blocks), then common store setup")
    a(f"""
    s_cmp_lg_u32 s{sGrp}, 2
    s_cbranch_scc1 L_stset
    v_and_b32 v{T[0]}, 31, v{vL}
    v_mul_u32_u24 v{T[0]}, 336, v{T[0]}
    s_mul_i32 s{sT0}, s{sW4}, {2*IH}
    s_add_u32 s{sT0}, s{sT0}, {IMG + 320}
    v_add_u32 v{T[0]}, s{sT0}, v{T[0]}
    v_mov_b32 v{T[2]}, 0x3f803f80
    v_mov_b32 v{T[3]}, 0x3f803f80
    v_mov_b32 v{T[4]}, 0x3f803f80
    v_mov_b32 v{T[5]}, 0x3f803f80
    ds_write_b128 v{T[0]}, {vr(T[2],4)}
    s_branch L_stset
    """)
    assert T[2] % 2 == 0

    a.label("L_comp")
    if CPF:
        a(f"""
        v_lshlrev_b32 v{T[0]}, 7, v0
        v_min_u32 v{T[0]}, L_codeend - {name} - 8, v{T[0]}
        global_load_dword v252, v{T[0]}, s[96:97]
        """)
    a(f"""
    s_lshr_b32 s{sWm}, s{sW}, 1
    s_and_b32 s{sWn}, s{sW}, 1
    v_and_b32 v{T[0]}, 15, v{vL}
    v_lshrrev_b32 v{T[1]}, 4, v{vL}
    v_lshrrev_b32 v{T[2]}, 1, v{T[0]}
    v_xor_b32 v{T[2]}, v{T[2]}, v{T[1]}
    v_xor_b32 v{T[3]}, 4, v{T[2]}
    v_lshlrev_b32 v{T[4]}, 7, v{T[0]}
    v_lshl_add_u32 v{T[2]}, v{T[2]}, 4, v{T[4]}
    v_lshl_add_u32 v{T[3]}, v{T[3]}, 4, v{T[4]}
    s_lshl_b32 s{sT0}, s{sWm}, 13
    v_add_u32 v{bX[0]}, s{sT0}, v{T[2]}
    v_add_u32 v{bX[1]}, s{sT0}, v{T[3]}
    s_and_b32 s{sM}, s{sJ4}, 1
    s_lshl_b32 s{sM}, s{sM}, 1
    s_add_u32 s{sM}, s{sM}, s{sWn}
    s_lshl_b32 s{sT2}, s{sM}, 11
    v_add_u32 v{bXe[0]}, s{sT2}, v{bX[0]}
    v_add_u32 v{bXe[1]}, s{sT2}, v{bX[1]}
    v_lshrrev_b32 v{T[2]}, 2, v{vL}
    v_mul_u32_u24 v{T[2]}, 40, v{vL}
    v_and_b32 v{T[3]}, 3, v{vL}
    s_mul_i32 s{sT0}, s{sWn}, 10240
    v_add_u32 v{bW}, s{sT0}, v{T[2]}
    v_lshrrev_b32 v{T[2]}, 2, v{T[0]}
    v_lshl_add_u32 v{T[2]}, v{T[1]}, 3, v{T[2]}
    v_mul_u32_u24 v{T[2]}, 40, v{T[2]}
    v_lshl_add_u32 v{bE}, v{T[3]}, 3, v{T[2]}
    s_waitcnt lgkmcnt(0)
    s_add_u32 s{sT1}, s2, s{sW}
    s_cmp_lg_u32 s{sT1}, 0
    s_cbranch_scc1 L_nononce
    s_or_b32 s{sT1}, s46, 1
    v_mov_b32 v{vF}, s{sT1}
    v_mov_b32 v{vF+1}, s47
    v_mov_b32 v{T[2]}, 0
    s_mov_b64 exec, 1
    global_store_dwordx2 v{T[2]}, {vr(vF,2)}, s[{kDbg}:{kDbg+1}] sc1
    s_mov_b64 exec, -1
    L_nononce:
    """)
    if LPF:
        a.c("linear touch of this wave's 1/1024 share of both Wo matrices")
        a(f"""
        s_lshl_b32 s{sT0}, s2, 2
        s_add_u32 s{sT0}, s{sT0}, s{sW}
        s_mul_i32 s{sT3}, s{sT0}, 800
        v_min_u32 v{T[2]}, 6, v{vL}
        v_lshl_add_u32 v{T[3]}, v{T[2]}, 7, s{sT3}
        global_load_dword v250, v{T[3]}, s[{kAo}:{kAo+1}]
        global_load_dword v251, v{T[3]}, s[{kBo}:{kBo+1}]
        """)
    for m in range(4):
        for n in range(5):
            for r in (0, 2): a(f"v_pk_mov_b32 {vr(ACC[m][n]+r,2)}, 0, 0")
    for n in range(2):
        for r in range(4): a(f"v_mov_b32 v{ACE[n]+r}, 0")
    a(f"""
    s_cmp_eq_u32 s{sGrp}, 1
    s_mov_b32 s{sScale}, 0x{QSCALE:x}
    s_cmov_b32 s{sScale}, 1.0
    v_mov_b32 v{A1[1]}, s{sScale}
    v_mov_b32 v{A1[2]}, s{sScale}
    s_mul_i32 s{sT0}, s{sMt}, {GROUP}
    s_add_u32 s{sT0}, s{sT0}, {KV_OFF + 32*KV_SET}
    """)
    srd(12, kWs, f"s{sT0}", GROUP)
    a(f"""
    s_mov_b32 s{sSt}, 0
    s_mov_b32 s{sC}, 0
    s_cmp_eq_u32 s{sGrp}, 2
    s_cbranch_scc1 L_F
    """)
    def addr_T():
        a(f"""
        s_mul_i32 s{sT0}, s{sWn}, {4*IH}
        s_mul_i32 s{sT1}, s{sWm}, 2560
        s_add_u32 s{sT0}, s{sT0}, s{sT1}
        s_add_u32 s{sT0}, s{sT0}, {IMG}
        v_mul_u32_u24 v{T[3]}, {IH}, v{T[1]}
        v_add_u32 v{T[3]}, s{sT0}, v{T[3]}
        v_lshl_add_u32 v{A0[0]}, v{T[0]}, 4, v{T[3]}
        v_lshl_add_u32 v{A0[1]}, v{T[0]}, 3, v{T[3]}
        """)
    def addr_F():
        a(f"""
        s_mul_i32 s{sT0}, s{sWn}, {4*IH}
        s_mul_i32 s{sT1}, s{sWm}, 2688
        s_add_u32 s{sT0}, s{sT0}, s{sT1}
        s_add_u32 s{sT0}, s{sT0}, {IMG}
        v_lshrrev_b32 v{T[5]}, 1, v{T[1]}
        v_mul_u32_u24 v{T[5]}, 336, v{T[5]}
        v_and_b32 v{T[6]}, 1, v{T[1]}
        v_lshl_add_u32 v{T[5]}, v{T[6]}, 3, v{T[5]}
        v_lshrrev_b32 v{T[3]}, 2, v{T[0]}
        v_mul_u32_u24 v{T[3]}, {IH}, v{T[3]}
        v_and_b32 v{T[4]}, 3, v{T[0]}
        v_lshl_add_u32 v{T[3]}, v{T[4]}, 4, v{T[3]}
        v_add3_u32 v{A0[0]}, v{T[3]}, v{T[5]}, s{sT0}
        """)
    def addr_E(kind):
        a(f"""
        s_lshl_b32 s{sT0}, s{sWm}, 1
        s_lshr_b32 s{sT1}, s{sM}, 1
        s_add_u32 s{sT0}, s{sT0}, s{sT1}
        s_mul_i32 s{sT0}, s{sT0}, {TILE}
        s_and_b32 s{sT1}, s{sM}, 1
        v_and_b32 v{T[4]}, 1, v{T[1]}
        v_lshrrev_b32 v{T[5]}, 1, v{T[1]}
        """)
        if kind == "K":
            a(f"""
            s_lshl_b32 s{sT2}, s{sT1}, 8
            s_add_u32 s{sT2}, s{sT2}, s{sT0}
            v_lshlrev_b32 v{T[6]}, 9, v{T[4]}
            v_lshl_add_u32 v{T[6]}, v{T[5]}, 3, v{T[6]}
            v_lshl_add_u32 v{T[6]}, v{T[0]}, 4, v{T[6]}
            v_add_u32 v{AE[0]}, s{sT2}, v{T[6]}
            s_lshl_b32 s{sT2}, s{sT1}, 7
            s_add_u32 s{sT2}, s{sT2}, s{sT0}
            s_add_u32 s{sT2}, s{sT2}, 1024
            v_lshlrev_b32 v{T[6]}, 20, v{T[1]}
            v_lshl_add_u32 v{T[6]}, v{T[0]}, 3, v{T[6]}
            v_add_u32 v{AE[1]}, s{sT2}, v{T[6]}
            """)
        else:
            a(f"""
            s_mul_i32 s{sT2}, s{sT1}, 672
            s_add_u32 s{sT2}, s{sT2}, s{sT0}
            s_add_u32 s{sT2}, s{sT2}, 1280
            v_mul_u32_u24 v{T[6]}, 336, v{T[5]}
            v_lshl_add_u32 v{T[6]}, v{T[4]}, 3, v{T[6]}
            v_lshl_add_u32 v{T[6]}, v{T[0]}, 4, v{T[6]}
            v_add_u32 v{AE[0]}, s{sT2}, v{T[6]}
            v_cmp_lt_u32 vcc, 4, v{T[0]}
            v_add_u32 v{T[6]}, 256, v{AE[0]}
            v_mov_b32 v{T[7]}, {BIG}
            v_cndmask_b32 v{AE[1]}, v{T[6]}, v{T[7]}, vcc
            """)
    def reads(b, ks, ext):
        r = [f"ds_read_b128 {vr(FX[b][0],4)}, v{aX[ks]}"]
        for tn in range(5):
            for hr in range(2):
                r.append(f"ds_read_b64_tr_b16 {vr(FW[b][tn]+2*hr,2)}, v{aW} offset:{WOFF + ks*5120 + hr*2560 + tn*8}")
        for tm in range(1, 4):
            r.append(f"ds_read_b128 {vr(FX[b][tm],4)}, v{aX[ks]} offset:{tm*2048}")
        if ext:
            r.append(f"ds_read_b128 {vr(FXe[b],4)}, v{aXe[ks]}")
            for tn in range(2):
                for hr in range(2):
                    r.append(f"ds_read_b64_tr_b16 {vr(FE[b][tn]+2*hr,2)}, v{aE} offset:{EOFF + ks*1280 + hr*160 + tn*32}")
        return r
    def mf(d, x, w, orient):
        A_, B_ = (w, x) if orient == "T" else (x, w)
        return f"v_mfma_f32_16x16x32_bf16 {vr(d,4)}, {vr(A_,4)}, {vr(B_,4)}, {vr(d,4)}"
    def mfmas(b, orient, ext):
        m = [mf(ACC[tm][tn], FX[b][tm], FW[b][tn], orient) for tm in range(4) for tn in range(5)]
        if ext: m += [mf(ACE[tn], FXe[b], FE[b][tn], "T" if ext == "K" else "F") for tn in range(2)]
        return m
    def setaddr(ext):
        a(f"v_add_u32 v{aX[0]}, s{sSt}, v{bX[0]}")
        a(f"v_add_u32 v{aW}, s{sSt}, v{bW}")
        a(f"v_add_u32 v{aX[1]}, s{sSt}, v{bX[1]}")
        if ext:
            a(f"v_add_u32 v{aXe[0]}, s{sSt}, v{bXe[0]}")
            a(f"v_add_u32 v{aXe[1]}, s{sSt}, v{bXe[1]}")
            a(f"v_add_u32 v{aE}, s{sSt}, v{bE}")
        a(f"s_add_u32 s{sSt}, s{sSt}, {ST}\ns_cmp_eq_u32 s{sSt}, {ST*NST}\ns_cselect_b32 s{sSt}, 0, s{sSt}")
    def variant(tag, orient, ext):
        L = f"L_{tag}"
        setaddr(ext)
        mark(0)
        a("s_barrier")
        mark(1)
        for r in reads(0, 0, ext): a(r)
        a(f"s_branch {L}_mid")
        a.raw(".p2align 6")
        a.label(f"{L}_loop")
        a("s_barrier")
        lstamp("gs")
        interleave(a, mfmas(1, orient, ext), reads(0, 0, ext))
        a.label(f"{L}_mid")
        a("s_waitcnt lgkmcnt(0)")
        interleave(a, mfmas(0, orient, ext), reads(1, 1, ext))
        setaddr(ext)
        a(f"s_add_u32 s{sC}, s{sC}, 1\ns_cmp_lt_u32 s{sC}, 10\ns_waitcnt lgkmcnt(0)\ns_cbranch_scc1 {L}_loop")
        for m in mfmas(1, orient, ext): a(m)
        mark(2)
        P = FX[0][0]; k = 0
        for tm in range(4):
            for tn in range(5):
                c = ACC[tm][tn]; p = P + 2 * (k % 8); k += 1
                if orient == "T":
                    for r in (0, 2): a(f"v_pk_mul_f32 {vr(c+r,2)}, {vr(c+r,2)}, {vr(A1[1],2)}")
                a(f"v_cvt_pk_bf16_f32 v{c}, v{c}, v{c+1}")
                a(f"v_cvt_pk_bf16_f32 v{c+1}, v{c+2}, v{c+3}")
                if orient == "T":
                    if tn < 4: a(f"ds_write_b64 v{A0[0]}, {vr(c,2)} offset:{(tm>>1)*1280 + (tm&1)*256 + (tn&1)*512 + (tn>>1)*8}")
                    else: a(f"ds_write_b64 v{A0[1]}, {vr(c,2)} offset:{(tm>>1)*1280 + 1024 + (tm&1)*128}")
                else:
                    a(f"ds_write_b64 v{A0[0]}, {vr(c,2)} offset:{tm*672 + tn*64}")
        if ext:
            if ext == "V":
                a(f"v_and_b32 v{T[0]}, 15, v{vL}\nv_cmp_eq_u32 vcc, 4, v{T[0]}\nv_mov_b32 v{T[6]}, 0x3f803f80")
            for tn in range(2):
                c = ACE[tn]
                a(f"v_cvt_pk_bf16_f32 v{c}, v{c}, v{c+1}")
                a(f"v_cvt_pk_bf16_f32 v{c+1}, v{c+2}, v{c+3}")
                if ext == "V" and tn == 1:
                    a(f"v_cndmask_b32 v{c}, v{c}, v{T[6]}, vcc\nv_cndmask_b32 v{c+1}, v{c+1}, v{T[6]}, vcc")
                a(f"buffer_store_dwordx2 {vr(c,2)}, v{AE[tn]}, s[12:15], 0 offen {SC}")
        a("s_branch L_stset")
    def store_setup():
        a(f"""
        s_cmp_eq_u32 s{sGrp}, 2
        s_cselect_b32 s{sCT}, 1, 0
        s_cselect_b32 s{sT3}, 1280, 0
        s_cmp_eq_u32 s{sGrp}, 1
        s_cselect_b32 s{sT0}, 1, s{sCT}
        s_cmp_eq_u32 s{sT0}, 1
        s_mov_b32 s{sHS}, {Q_HEAD}
        s_cmov_b32 s{sHS}, {KV_SET}
        s_mov_b32 s{sTS}, 1280
        s_cmov_b32 s{sTS}, {TILE}
        s_mov_b32 s{sT0}, {Q_OFF}
        s_cmov_b32 s{sT0}, {KV_OFF}
        s_add_u32 s{sT0}, s{sT0}, s{sT3}
        s_cmp_eq_u32 s{sGrp}, 3
        s_cselect_b32 s{sT1}, 32, 0
        s_lshl_b32 s{sT2}, s{sJ4}, 3
        s_add_u32 s{sT1}, s{sT1}, s{sT2}
        s_add_u32 s{sT1}, s{sT1}, s{sW}
        s_mul_i32 s{sT1}, s{sT1}, s{sHS}
        s_add_u32 s{sT0}, s{sT0}, s{sT1}
        s_lshl_b32 s{sT1}, s{sTS}, 2
        s_mul_i32 s{sT2}, s{sT1}, s{sMt}
        s_add_u32 s{sT0}, s{sT0}, s{sT2}
        s_sub_u32 s{sT1}, s{sT1}, s{sT3}
        """)
        srd(8, kWs, f"s{sT0}", f"s{sT1}")
        a(f"""
        s_cmp_eq_u32 s{sCT}, 1
        s_mov_b32 s{sCT}, 80
        s_cmov_b32 s{sCT}, 84
        s_mov_b32 s{sT0}, 820
        s_cmov_b32 s{sT0}, 781
        s_lshl_b32 s{sT2}, s{sCT}, 4
        s_sub_u32 s{sT2}, s{sTS}, s{sT2}
        """)
        for q in range(6):
            a(f"""
            v_add_u32 v{T[0]}, {64*q}, v{vL}
            v_mul_u32_u24 v{T[1]}, s{sT0}, v{T[0]}
            v_lshrrev_b32 v{T[1]}, 16, v{T[1]}
            v_lshlrev_b32 v{T[0]}, 4, v{T[0]}
            v_mad_u32_u24 v{SO[q]}, v{T[1]}, s{sT2}, v{T[0]}
            """)
        a(f"""
        s_lshl_b32 s{sFl}, s{sGrp}, 2
        s_add_u32 s{sFl}, s{sFl}, s{sJ4}
        s_lshl_b32 s{sFl}, s{sFl}, 4
        s_add_u32 s{sFl}, s{sFl}, s{sMt}
        s_lshl_b32 s{sFl}, s{sFl}, 3
        s_add_u32 s{sFl}, s{sFl}, {F1}
        """)
    def pre():
        a(f"v_and_b32 v{T[0]}, 15, v{vL}\nv_lshrrev_b32 v{T[1]}, 4, v{vL}")
    pre(); addr_T()
    a(f"s_cmp_eq_u32 s{sGrp}, 3\ns_cbranch_scc1 L_B")
    variant("T", "T", None)
    a.label("L_B")
    a(f"s_cmp_lt_u32 s{sJ4}, 2\ns_cbranch_scc0 L_BV")
    addr_E("K"); variant("TK", "T", "K")
    a.label("L_BV")
    addr_E("V"); variant("TV", "T", "V")
    a.label("L_F")
    pre(); addr_F(); variant("F", "F", None)
    a.label("L_stset")
    store_setup()
    a.label("L_stgo")
    SD = FX[0][0]
    a(f"""
    s_mul_i32 s{sT0}, s{sW}, {IH}
    s_add_u32 s{sT0}, s{sT0}, {IMG}
    v_lshl_add_u32 v{T[0]}, v{vL}, 4, s{sT0}
    s_waitcnt lgkmcnt(0)
    s_barrier
    """)
    for q in range(6): a(f"ds_read_b128 {vr(SD+4*q,4)}, v{T[0]} offset:{q*1024}")
    for q in range(5):
        a(f"s_waitcnt lgkmcnt({5-q})\nbuffer_store_dwordx4 {vr(SD+4*q,4)}, v{SO[q]}, s[8:11], 0 offen {SC}")
    a(f"""
    s_cmp_lg_u32 s{sGrp}, 2
    s_waitcnt lgkmcnt(0)
    s_cbranch_scc1 L_no6
    buffer_store_dwordx4 {vr(SD+20,4)}, v{SO[5]}, s[8:11], 0 offen {SC}
    L_no6:
    """)
    mark(3)

    R = RegAlloc(BASE)
    vK = [R.alloc("aK0"), R.alloc("aK1")]; vK1 = [R.alloc("aKa"), R.alloc("aKb")]; vV = [R.alloc("aV0"), R.alloc("aV1")]
    vIdx = R.alloc("idx"); vD = R.alloc("dma"); vM = [R.alloc("Ma"), R.alloc("Mb")]
    vOst = R.alloc("ost"); vOst2 = R.alloc("ost2"); vP = R.alloc("pk", 4, 2)
    R.n = max(R.n, SD + 24)
    Q0 = [R.alloc(f"Q0{s}", 4, 4) for s in range(2)]
    Q1 = [R.alloc(f"Q1{s}", 2, 2) for s in range(2)]
    K0 = [R.alloc(f"K0{i}", 4, 4) for i in range(2)]
    K1 = [R.alloc(f"K1{i}", 2, 2) for i in range(2)]
    V = [[R.alloc(f"V{i}{j}", 4, 4) for j in range(2)] for i in range(2)]
    S = [[R.alloc(f"S{s}{p}", 16, 4) for p in range(2)] for s in range(2)]
    O = [R.alloc(f"O{s}", 16, 4) for s in range(2)]
    assert R.n <= SO[0]
    nvmax.append(R.n)
    sHead, sTok, sBr, sOff, sF3, sGo = 28, 29, 30, 31, 32, 33
    R = RegAlloc(O[1] + 16)
    OW = [[R.alloc(f"OW{p}{q}") for q in range(5)] for p in range(2)]
    oM = R.alloc("oM"); oT = R.alloc("oT"); oF = R.alloc("oF"); oW = [R.alloc(f"oW{i}") for i in range(3)]; oS = [R.alloc("oS0"), R.alloc("oS1")]
    nvmax.append(R.n)
    R = RegAlloc(BASE)
    OF = [R.alloc(f"OF{k}", 4, 4) for k in range(16)]
    OT = [R.alloc(f"OT{k}", 2, 2) for k in range(8)]
    WB = [[[R.alloc(f"WB{b}{h}{t}", 4, 4) for t in range(5)] for h in range(2)] for b in range(2)]
    WT = [[R.alloc(f"WT{b}{t}", 2, 2) for t in range(5)] for b in range(2)]
    assert R.n <= OW[0][0]
    OC = [228 + 4 * t for t in range(5)]
    WL = GROUP
    sNt, sDone, sRdy, sBo, sTo = 34, 35, 36, 37, 40
    for q in range(5):
        a(f"v_add_u32 v{T[0]}, {64*q}, v{vL}")
        divc(T[1], T[2], T[0], 10, 6554, 16)
        a(f"""
        v_lshrrev_b32 v{T[4]}, 4, v{T[1]}
        v_and_b32 v{T[5]}, 3, v{T[1]}
        v_bfe_u32 v{T[6]}, v{T[1]}, 3, 1
        v_mul_u32_u24 v{T[6]}, 20, v{T[6]}
        v_and_b32 v{T[7]}, 4, v{T[1]}
        v_add3_u32 v{T[6]}, v{T[6]}, v{T[7]}, v{T[5]}
        v_lshl_add_u32 v{T[6]}, v{T[4]}, 3, v{T[6]}
        v_mul_u32_u24 v{T[6]}, 1280, v{T[6]}
        v_lshl_add_u32 v{OW[0][q]}, v{T[2]}, 4, v{T[6]}
        v_lshrrev_b32 v{T[6]}, 2, v{T[1]}
        v_mul_u32_u24 v{T[6]}, 20, v{T[6]}
        v_add3_u32 v{T[6]}, v{T[6]}, v{T[5]}, 16
        v_mul_u32_u24 v{T[6]}, 1280, v{T[6]}
        v_lshl_add_u32 v{OW[1][q]}, v{T[2]}, 4, v{T[6]}
        """)
    a(f"""
    s_and_b32 s{sT0}, s2, 7
    s_lshr_b32 s{sT1}, s2, 3
    s_lshr_b32 s{sBo}, s{sT0}, 2
    s_and_b32 s{sT0}, s{sT0}, 3
    s_lshl_b32 s{sT0}, s{sT0}, 2
    s_and_b32 s{sT2}, s{sT1}, 3
    s_add_u32 s{sT0}, s{sT0}, s{sT2}
    s_lshr_b32 s{sNt}, s{sT1}, 2
    s_lshl_b32 s{sTo}, s{sT0}, 7
    s_lshl_b32 s{sT0}, s{sW}, 4
    s_add_u32 s{sTo}, s{sTo}, s{sT0}
    v_and_b32 v{T[4]}, 15, v{vL}
    v_lshrrev_b32 v{T[1]}, 4, v{vL}
    v_add_u32 v{T[5]}, s{sTo}, v{T[4]}
    v_lshlrev_b32 v{oM}, 15, v{T[1]}
    v_lshl_add_u32 v{oM}, v{T[5]}, 4, v{oM}
    v_lshlrev_b32 v{oT}, 14, v{T[1]}
    v_lshl_add_u32 v{oT}, v{T[5]}, 3, v{oT}
    v_lshrrev_b32 v{T[6]}, 2, v{vL}
    v_mul_u32_u24 v{T[6]}, 160, v{T[6]}
    v_and_b32 v{T[7]}, 3, v{vL}
    v_lshl_add_u32 v{oW[1]}, v{T[7]}, 3, v{T[6]}
    v_add_u32 v{oW[1]}, {WL}, v{oW[1]}
    v_mul_u32_u24 v{T[4]}, 2560, v{T[4]}
    v_lshl_add_u32 v{oS[1]}, v{T[1]}, 3, v{T[4]}
    v_and_b32 v{T[6]}, 1, v{T[1]}
    v_lshl_add_u32 v{T[6]}, v{T[6]}, 5, v{T[4]}
    v_lshrrev_b32 v{T[1]}, 1, v{T[1]}
    v_lshl_add_u32 v{oS[0]}, v{T[1]}, 4, v{T[6]}
    s_lshl_b32 s{sT0}, s{sNt}, 11
    s_lshl_b32 s{sT1}, s{sBo}, 10
    s_add_u32 s{sT0}, s{sT0}, s{sT1}
    s_lshr_b32 s{sT1}, s{sTo}, 9
    s_lshl_b32 s{sT1}, s{sT1}, 8
    s_add_u32 s{sT0}, s{sT0}, s{sT1}
    s_add_u32 s{sT0}, s{sT0}, {F3}
    v_and_b32 v{oF}, 31, v{vL}
    v_lshl_add_u32 v{oF}, v{oF}, 3, s{sT0}
    s_cmp_eq_u32 s{sBo}, 0
    s_cselect_b32 s{sT0}, s{kAo}, s{kBo}
    s_cselect_b32 s{sT1}, s{kAo+1}, s{kBo+1}
    s_mul_i32 s{sT2}, s{sNt}, 160
    s_add_u32 s92, s{sT0}, s{sT2}
    s_addc_u32 s93, s{sT1}, 0
    s_sub_u32 s94, {640*1280}, s{sT2}
    s_mov_b32 s95, 0x00020000
    """)
    a(f"""
    s_and_b32 s{sT0}, s2, 7
    s_lshr_b32 s{sT1}, s2, 3
    s_lshr_b32 s{sBr}, s{sT1}, 4
    s_bfe_u32 s{sT2}, s{sT1}, 0x20002
    s_lshl_b32 s{sHead}, s{sT0}, 2
    s_add_u32 s{sHead}, s{sHead}, s{sT2}
    s_and_b32 s{sT3}, s{sT1}, 3
    s_lshl_b32 s{sTok}, s{sT3}, 9
    s_lshl_b32 s{sT1}, s{sW}, 6
    s_add_u32 s{sTok}, s{sTok}, s{sT1}
    v_and_b32 v{T[0]}, 31, v{vL}
    v_lshrrev_b32 v{T[1]}, 5, v{vL}
    v_lshlrev_b32 v{vK[0]}, 4, v{vL}
    v_lshlrev_b32 v{vD}, 4, v{vL}
    v_lshlrev_b32 v{vK1[0]}, 3, v{T[0]}
    v_lshl_add_u32 v{vK1[0]}, v{T[1]}, 2, v{vK1[0]}
    v_cmp_eq_u32 vcc, 24, v{T[0]}
    v_mov_b32 v{T[3]}, 20
    v_mov_b32 v{T[4]}, {BIG}
    v_cndmask_b32 v{T[2]}, v{T[0]}, v{T[3]}, vcc
    v_mul_u32_u24 v{vV[0]}, 336, v{T[1]}
    v_lshl_add_u32 v{vV[0]}, v{T[2]}, 4, v{vV[0]}
    v_cmp_lt_u32 vcc, 20, v{T[2]}
    v_mov_b32 v{vIdx}, 0xdddddddd
    v_mov_b32 v{K1[0]+1}, 0x3f80
    v_cndmask_b32 v{vV[0]}, v{vV[0]}, v{T[4]}, vcc
    v_cmp_eq_u32 vcc, 20, v{T[0]}
    v_mov_b32 v{K1[1]+1}, 0x3f80
    v_mov_b32 v{Q1[0]+1}, 0
    v_cndmask_b32 v{vV[0]}, v{vV[0]}, v{T[4]}, vcc
    v_mov_b32 v{Q1[1]+1}, 0
    v_add_u32 v{vK[1]}, {3*GROUP}, v{vK[0]}
    v_add_u32 v{vK1[1]}, {3*GROUP}, v{vK1[0]}
    v_add_u32 v{vV[1]}, {3*GROUP}, v{vV[0]}
    s_mul_i32 s{sT1}, s{sBr}, {O_BR}
    s_add_u32 s{sT1}, s{sT1}, {O_OFF}
    """)
    srd(16, kWs, f"s{sT1}", O_BR)
    a(f"""
    s_lshl_b32 s{sT2}, s{sHead}, 16
    s_lshl_b32 s{sT1}, s{sTok}, 4
    s_add_u32 s{sT2}, s{sT2}, s{sT1}
    v_lshlrev_b32 v{vOst}, 15, v{T[1]}
    v_lshl_add_u32 v{vOst}, v{T[0]}, 4, v{vOst}
    v_add_u32 v{vOst}, s{sT2}, v{vOst}
    s_lshl_b32 s{sT2}, s{sHead}, 14
    s_lshl_b32 s{sT1}, s{sTok}, 3
    s_add_u32 s{sT2}, s{sT2}, s{sT1}
    s_add_u32 s{sT2}, s{sT2}, {O_TAIL}
    v_lshlrev_b32 v{vOst2}, 3, v{T[0]}
    v_lshl_add_u32 v{vOst2}, v{T[1]}, 24, v{vOst2}
    v_add_u32 v{vOst2}, s{sT2}, v{vOst2}
    s_lshl_b32 s{sF3}, s{sBr}, 10
    s_lshl_b32 s{sT1}, s{sT3}, 8
    s_add_u32 s{sF3}, s{sF3}, s{sT1}
    s_lshl_b32 s{sT1}, s{sHead}, 3
    s_add_u32 s{sF3}, s{sF3}, s{sT1}
    s_add_u32 s{sF3}, s{sF3}, {F3}
    """)
    a.c("flag addresses to poll (T5): B: slots 12..15 ; A: lanes 0-15 K slot, 16-31 V slot, 32-63 Q slot (own 4 mt)")
    a(f"""
    s_lshr_b32 s{sT1}, s{sHead}, 3
    s_lshl_b32 s{sT1}, s{sT1}, 7
    v_and_b32 v{T[2]}, 15, v{vL}
    v_lshrrev_b32 v{T[3]}, 4, v{vL}
    v_add_u32 v{T[3]}, 1, v{T[3]}
    v_lshlrev_b32 v{T[3]}, 9, v{T[3]}
    v_lshl_add_u32 v{T[3]}, v{T[2]}, 3, v{T[3]}
    v_and_b32 v{T[2]}, 3, v{vL}
    s_lshl_b32 s{sT2}, s{sT3}, 5
    v_lshl_add_u32 v{T[2]}, v{T[2]}, 3, s{sT2}
    v_cmp_gt_u32 vcc, 32, v{vL}
    v_lshlrev_b32 v{T[4]}, 3, v{vL}
    v_add_u32 v{T[4]}, {12*128}, v{T[4]}
    v_cndmask_b32 v{T[5]}, v{T[2]}, v{T[3]}, vcc
    v_add_u32 v{T[5]}, s{sT1}, v{T[5]}
    s_cmp_eq_u32 s{sBr}, 0
    s_cselect_b64 vcc, -1, 0
    s_lshl_b32 s{sT1}, s{sT0}, 11
    s_add_u32 s{sT1}, s{sT1}, {F1}
    v_cndmask_b32 v{T[5]}, v{T[4]}, v{T[5]}, vcc
    v_add_u32 v{T[5]}, s{sT1}, v{T[5]}
    """)
    for s in range(2):
        for r in range(16): a(f"v_mov_b32 v{O[s]+r}, 0")
    for r in range(8, 16): a(f"v_mov_b32 v{S[1][1]+r}, 0")
    for r in range(4): a(f"v_mov_b32 v{V[1][1]+r}, 0")
    a(f"""
    s_cmp_eq_u32 s{sBr}, 0
    s_cselect_b32 s{sT1}, s{sHead}, 32
    s_mul_i32 s{sT1}, s{sT1}, {KV_SET}
    s_lshl_b32 s{sT2}, s{sBr}, 5
    s_add_u32 s{sT2}, s{sT2}, s{sHead}
    s_mul_i32 s{sT2}, s{sT2}, {Q_HEAD}
    s_mul_i32 s{sT3}, s{sTok}, 40
    s_add_u32 s{sT2}, s{sT2}, s{sT3}
    s_add_u32 s{sT2}, s{sT2}, {Q_OFF}
    """)
    get_nonce()
    srd(8, kWs, f"s{sT1}", KV_SET)
    srd(12, kWs, f"s{sT2}", 2560)
    a(f"""
    s_barrier
    s_cmp_lg_u32 s{sW}, 0
    s_cbranch_scc1 L_f1w
    """)
    put_flag(sFl, 11)
    mark(4)
    a(f"""
    s_mov_b32 s{sSpin}, {SPIN}
    L_f1l:
    global_load_dwordx2 {vr(vF,2)}, v{T[5]}, s[{kWs}:{kWs+1}] sc1
    s_waitcnt vmcnt(0)
    v_cmp_ne_u64 vcc, s[{sN}:{sN+1}], {vr(vF,2)}
    s_sub_u32 s{sSpin}, s{sSpin}, 1
    s_cbranch_scc1 L_f1w
    s_cbranch_vccz L_f1w
    s_sleep {SL1}
    s_branch L_f1l
    L_f1w:
    s_barrier
    """)
    mark(5)
    for s in range(2):
        a(f"buffer_load_dwordx4 {vr(Q0[s],4)}, v{vK[0]}, s[12:15], 0 offen offset:{1280*s} {SC}")
        a(f"buffer_load_dword v{Q1[s]}, v{vK1[0]}, s[12:15], 0 offen offset:{1280*s+1024} {SC}")
    a(f"s_lshl_b32 s{sOff}, s{sW}, 10")
    dma = f"buffer_load_dwordx4 v{vD}, s[8:11], s{sOff} offen {SC} lds"
    for k in range(4):
        a(f"s_mov_b32 m0, s{sOff}\ns_nop 0\n{dma}\ns_add_u32 s{sOff}, s{sOff}, 8192")
    def qk1(s, Tt): p = Tt % 2; return f"v_mfma_f32_32x32x16_bf16 {vr(S[s][p],16)}, {vr(K0[p],4)}, {vr(Q0[s],4)}, 0"
    def qk2(s, Tt): p = Tt % 2; return f"v_mfma_f32_32x32x8_bf16 {vr(S[s][p],16)}, {vr(K1[p],2)}, {vr(Q1[s],2)}, {vr(S[s][p],16)}"
    def pv(s, Tt, h): p = Tt % 2; return f"v_smfmac_f32_32x32x32_bf16 {vr(O[s],16)}, {vr(V[p][h],4)}, {vr(S[s][p]+8*h,8)}, v{vIdx}"
    def rowmax(first):
        for s in range(2):
            x = S[s][0]
            if first:
                a(f"v_max3_f32 v{vM[s]}, v{x}, v{x+1}, v{x+2}")
                for r in range(3, 15, 2): a(f"v_max3_f32 v{vM[s]}, v{x+r}, v{x+r+1}, v{vM[s]}")
                a(f"v_max_f32 v{vM[s]}, v{x+15}, v{vM[s]}")
            else:
                for r in range(0, 16, 2): a(f"v_max3_f32 v{vM[s]}, v{x+r}, v{x+r+1}, v{vM[s]}")
    def crossmax():
        a(f"""
        v_mov_b32 v{T[0]}, v{vM[0]}
        v_mov_b32 v{T[1]}, v{vM[1]}
        s_nop 1
        v_permlane32_swap_b32 v{T[0]}, v{vM[0]}
        v_permlane32_swap_b32 v{T[1]}, v{vM[1]}
        s_nop 1
        v_max_f32 v{vM[0]}, v{vM[0]}, v{T[0]}
        v_max_f32 v{vM[1]}, v{vM[1]}, v{T[1]}
        """)
    a("s_waitcnt vmcnt(3)\ns_barrier")
    mark(6)
    a(f"""
    ds_read_b128 {vr(K0[0],4)}, v{vK[0]}
    ds_read_b32 v{K1[0]}, v{vK1[0]} offset:1024
    ds_read_b128 {vr(K0[1],4)}, v{vK[0]} offset:{TILE}
    ds_read_b32 v{K1[1]}, v{vK1[0]} offset:{TILE+1024}
    ds_read_b128 {vr(V[0][0],4)}, v{vV[0]} offset:1280
    ds_read_b128 {vr(V[0][1],4)}, v{vV[0]} offset:{1280+672}
    s_waitcnt lgkmcnt(4)
    {qk1(0,0)}
    {qk2(0,0)}
    {qk1(1,0)}
    {qk2(1,0)}
    v_cmp_gt_u32 vcc, 32, v{vL}
    s_nop 8
    """)
    rowmax(True)
    crossmax()
    for s in range(2):
        a(f"""
        v_sub_f32 v{T[2]}, 0, v{vM[s]}
        v_and_b32 v{T[3]}, 0xffff0000, v{T[2]}
        v_sub_f32 v{T[4]}, v{T[2]}, v{T[3]}
        v_and_b32 v{T[4]}, 0xffff0000, v{T[4]}
        v_cndmask_b32 v{T[5]}, v{T[4]}, v{T[3]}, vcc
        v_lshrrev_b32 v{Q1[s]+1}, 16, v{T[5]}
        v_add_f32 v{vP+2*s}, v{T[3]}, v{T[4]}
        v_add_f32 v{vP+2*s+1}, v{T[3]}, v{T[4]}
        """)
    for s in range(2):
        for r in range(0, 16, 2): a(f"v_pk_add_f32 {vr(S[s][0]+r,2)}, {vr(S[s][0]+r,2)}, {vr(vP+2*s,2)}")
    a(f"""
    s_mov_b32 s{sC}, 0
    s_setprio 1
    s_waitcnt vmcnt(2) lgkmcnt(0)
    s_barrier
    """)
    mark(7)
    def body(first):
        for t in range(16):
            Tt = 16 + t
            def ad(regs, tl, o):
                return f"v{regs[1]} offset:{(tl-12)*TILE+o}" if 12 <= tl < 16 else f"v{regs[0]} offset:{tl*TILE+o}"
            for s in range(2):
                X = S[s][Tt % 2]
                e = lambda i: a(f"v_exp_f32 v{X+i}, v{X+i}")
                e(0); e(1)
                if s == 0:
                    a(pv(1, Tt - 1, 1))
                    a(f"ds_read_b128 {vr(V[(Tt+1)%2][0],4)}, {ad(vV,t+1,1280)}")
                else:
                    a(pv(0, Tt, 1))
                    if first: a(f"s_mov_b32 m0, s{sOff}")
                    if stamp and "as" in DBG and t % 4 == 0: a("s_memtime s[88:89]")
                    a(f"ds_read_b128 {vr(V[(Tt+1)%2][1],4)}, {ad(vV,t+1,1952)}")
                e(2); e(3); e(4); e(5)
                a(qk1(s, Tt + 1))
                if s == 0: a(f"ds_read_b128 {vr(K0[Tt%2],4)}, {ad(vK,t+2,0)}")
                elif first: a(dma)
                elif t == 15: a(f"s_add_u32 s{sC}, s{sC}, 1")
                e(6); e(7); e(8); e(9)
                a(pv(s, Tt, 0))
                if s == 0:
                    a("s_waitcnt lgkmcnt(2)")
                    a(f"ds_read_b32 v{K1[Tt%2]}, {ad(vK1,t+2,1024)}")
                else:
                    if first: a(f"s_add_u32 s{sOff}, s{sOff}, 8192")
                    if stamp and "as" in DBG and t % 4 == 0:
                        a(f"s_waitcnt lgkmcnt(0)\ns_sub_u32 s88, s88, s48\ns_mov_b32 m0, s63\ns_add_u32 s63, s63, 1\nv_writelane_b32 v255, s88, m0")
                    a("s_waitcnt lgkmcnt(1)")
                    if not first and t == 11:
                        a(f"s_cmp_eq_u32 s{sC}, 3\ns_cbranch_scc1 L_bal\nL_balr:")
                e(10); e(11); e(12); e(13)
                a(qk2(s, Tt + 1))
                e(14); e(15)
            if first and t % 4 == 3:
                a("s_waitcnt vmcnt(4)\ns_barrier")
    def bump():
        for r in (vK, vK1, vV): a(f"v_add_u32 v{r[0]}, {4*GROUP}, v{r[0]}")
        a(f"""
        s_cmp_eq_u32 s{sC}, 3
        s_mov_b32 s{sT0}, {4*GROUP}
        s_cmov_b32 s{sT0}, {(4*GROUP - 15*GROUP) & 0xffffffff}
        """)
        for r in (vK, vK1, vV): a(f"v_add_u32 v{r[1]}, s{sT0}, v{r[1]}")
    a.raw(".p2align 6")
    body(True)
    a.c("group 15 -> slot 0 (all waves are past group 0)")
    a(f"""
    s_lshl_b32 s{sT0}, s{sW}, 11
    s_min_u32 s{sT1}, s{sT0}, {GROUP-1024}
    s_mov_b32 m0, s{sT1}
    s_add_u32 s{sOff}, s{sT1}, {15*GROUP}
    {dma}
    s_add_u32 s{sT0}, s{sT0}, 1024
    s_min_u32 s{sT1}, s{sT0}, {GROUP-1024}
    s_mov_b32 m0, s{sT1}
    s_add_u32 s{sOff}, s{sT1}, {15*GROUP}
    {dma}
    s_mov_b32 s{sC}, 1
    """)
    bump()
    a.raw(".p2align 6")
    a.label("L_loop")
    body(False)
    a(f"""
    s_cmp_eq_u32 s{sC}, 4
    s_cbranch_scc1 L_adone
    """)
    bump()
    a(f"""
    s_cmp_lg_u32 s{sC}, 2
    s_cbranch_scc1 L_loop
    s_waitcnt vmcnt(0)
    s_barrier
    s_cmp_eq_u32 s{sHi}, 0
    s_cbranch_scc1 L_wpf
    s_setprio 2
    s_branch L_loop
    L_adone:
    s_setprio 3
    s_waitcnt lgkmcnt(0)
    {pv(1, 31, 1)}
    """)
    mark(8)
    lo, hi = 0x2b800000, 0x5d800000
    if force_fallback: lo = 0x7f000000
    lb = lambda s: f"v_mov_b32 v{O[s]+13}, v{O[s]+12}\ns_nop 1\nv_permlane32_swap_b32 v{O[s]+12}, v{O[s]+13}\ns_nop 1"
    for s in range(2):
        a(lb(s))
        a(f"v_mov_b32 v{T[s]}, v{O[s]+12}")
        for r in range(12): a(f"v_fma_f32 v{T[s]}, v{O[s]+r}, 0, v{T[s]}")
    a(f"""
    v_cmp_le_f32 vcc, 0x{lo:x}, v{T[0]}
    s_mov_b64 s[{sM0}:{sM1}], vcc
    v_cmp_le_f32 vcc, 0x{lo:x}, v{T[1]}
    s_and_b64 s[{sM0}:{sM1}], s[{sM0}:{sM1}], vcc
    v_cmp_ge_f32 vcc, 0x{hi:x}, v{T[0]}
    s_and_b64 s[{sM0}:{sM1}], s[{sM0}:{sM1}], vcc
    v_cmp_ge_f32 vcc, 0x{hi:x}, v{T[1]}
    s_and_b64 s[{sM0}:{sM1}], s[{sM0}:{sM1}], vcc
    s_cmp_eq_u64 s[{sM0}:{sM1}], -1
    s_cbranch_scc0 L_fallback
    L_store:
    v_rcp_f32 v{vP}, v{O[0]+12}
    v_rcp_f32 v{vP+2}, v{O[1]+12}
    v_mov_b32 v{vP+1}, v{vP}
    v_mov_b32 v{vP+3}, v{vP+2}
    """)
    for s in range(2):
        for r in range(0, 12, 2): a(f"v_pk_mul_f32 {vr(O[s]+r,2)}, {vr(O[s]+r,2)}, {vr(vP+2*s,2)}")
        for r in range(6): a(f"v_cvt_pk_bf16_f32 v{S[s][0]+r}, v{O[s]+2*r}, v{O[s]+2*r+1}")
        a(f"buffer_store_dwordx4 {vr(S[s][0],4)}, v{vOst}, s[16:19], 0 offen offset:{512*s} {SC}")
        a(f"buffer_store_dwordx2 {vr(S[s][0]+4,2)}, v{vOst2}, s[16:19], 0 offen offset:{256*s} {SC}")

    sU = [3, 4, 5, 6, 7, 12, 13, 14]
    def blk(pat):
        for q in range(5):
            a(f"s_add_u32 m0, s{sT0}, {WL + q*1024}\ns_nop 0\nbuffer_load_dwordx4 v{OW[pat][q]}, s[92:95], s{sT1} offen lds")
    a(f"""
    s_mul_i32 s{sT0}, s{sBo}, {O_BR}
    s_add_u32 s{sT0}, s{sT0}, {O_OFF}
    """)
    srd(8, kWs, f"s{sT0}", O_BR)
    a(f"""
    s_mov_b32 s{sRdy}, 0
    s_mov_b32 s{sDone}, 0
    s_mov_b32 s{sSpin}, {SPIN}
    s_waitcnt vmcnt(0)
    s_barrier
    s_cmp_lg_u32 s{sW}, 7
    s_cbranch_scc1 L_nf3
    """)
    put_flag(sF3, 11)
    a.label("L_nf3")
    mark(9)
    a(f"""
    s_mul_i32 s{sT0}, s{sTo}, 2560
    s_mul_i32 s{sT1}, s{sBo}, 1280
    s_add_u32 s{sT0}, s{sT0}, s{sT1}
    s_mul_i32 s{sT1}, s{sNt}, 160
    s_add_u32 s{sT0}, s{sT0}, s{sT1}
    s_sub_u32 s{sT1}, {2048*2560}, s{sT0}
    """)
    srd(16, kOut, f"s{sT0}", f"s{sT1}")
    a(f"""
    s_cmp_ge_u32 s{sW}, 6
    s_cbranch_scc1 L_ow3
    s_cmp_ge_u32 s{sW}, 4
    s_cbranch_scc1 L_ow2
    s_mul_i32 s{sT0}, s{sW}, 5120
    s_add_u32 s{sT0}, s{sT0}, {16*5120}
    s_mul_i32 s{sT1}, s{sW}, {160*1280}
    """)
    blk(1)
    a(f"""
    s_branch L_ow3
    L_ow2:
    s_add_u32 s{sT2}, s{sW}, 10
    s_mul_i32 s{sT0}, s{sT2}, 5120
    s_mul_i32 s{sT1}, s{sT2}, {40*1280}
    """)
    blk(0)
    a.label("L_ow3")
    def issue(p):
        a(f"""
        s_andn2_b32 s{sT0}, s{sRdy}, s{sDone}
        s_cbranch_scc1 L_is{p}
        L_ip{p}:
        global_load_dwordx2 {vr(vF,2)}, v{oF}, s[{kWs}:{kWs+1}] sc1
        s_waitcnt vmcnt(0)
        v_cmp_eq_u64 vcc, s[{sN}:{sN+1}], {vr(vF,2)}
        s_sub_u32 s{sSpin}, s{sSpin}, 1
        s_cselect_b32 vcc_lo, -1, vcc_lo
        s_lshr_b32 s{sT0}, vcc_lo, 1
        s_and_b32 s{sT0}, s{sT0}, vcc_lo
        s_lshr_b32 s{sT1}, s{sT0}, 2
        s_and_b32 s{sT0}, s{sT0}, s{sT1}
        s_and_b32 s{sRdy}, s{sT0}, 0x11111111
        s_andn2_b32 s{sT0}, s{sRdy}, s{sDone}
        s_cbranch_scc0 L_ip{p}
        L_is{p}:
        s_ff1_i32_b32 s{sU[p]}, s{sT0}
        s_bitset1_b32 s{sDone}, s{sU[p]}
        s_lshl_b32 s{sT0}, s{sU[p]}, 16
        s_add_u32 s{sT1}, s{sT0}, {4*32768}
        s_lshl_b32 s{sT2}, s{sU[p]}, 14
        s_add_u32 s{sT2}, s{sT2}, {O_TAIL}
        buffer_load_dwordx2 {vr(OT[p],2)}, v{oT}, s[8:11], s{sT2} offen {SC}
        buffer_load_dwordx4 {vr(OF[2*p],4)}, v{oM}, s[8:11], s{sT0} offen {SC}
        buffer_load_dwordx4 {vr(OF[2*p+1],4)}, v{oM}, s[8:11], s{sT1} offen {SC}
        """)
    def wreads(p):
        b = p % 2
        a(f"""
        s_mul_i32 s{sT0}, s{sU[p]}, 2560
        s_mul_i32 s{sT1}, s{sU[p]}, 640
        s_add_u32 s{sT1}, s{sT1}, {16*5120}
        v_add_u32 v{oW[0]}, s{sT0}, v{oW[1]}
        v_add_u32 v{oW[2]}, s{sT1}, v{oW[1]}
        """)
        r = [f"ds_read_b64_tr_b16 {vr(WT[b][t],2)}, v{oW[2]} offset:{32*t}" for t in range(5)]
        r += [f"ds_read_b64_tr_b16 {vr(WB[b][h][t]+2*hr,2)}, v{oW[0]} offset:{h*5120 + hr*2560 + 32*t}" for h in range(2) for t in range(5) for hr in range(2)]
        return r
    issue(0)
    a("s_barrier")
    mark(10)
    for p in range(1, LA): issue(p)
    for i, x in enumerate(wreads(0)):
        if i in (12, 20): a("s_waitcnt lgkmcnt(4)")
        a(x)
    for p in range(8):
        b = p % 2
        lstamp("os")
        a(f"s_waitcnt vmcnt({3*min(LA-1, 7-p)}) lgkmcnt(0)")
        nx = wreads(p + 1) if p < 7 else []
        mm = [f"v_mfma_f32_16x16x16_bf16 {vr(OC[t],4)}, {vr(WT[b][t],2)}, {vr(OT[p],2)}, {vr(OC[t],4) if p else 0}" for t in range(5)]
        mm += [f"v_mfma_f32_16x16x32_bf16 {vr(OC[t],4)}, {vr(WB[b][h][t],4)}, {vr(OF[2*p+h],4)}, {vr(OC[t],4)}" for h in range(2) for t in range(5)]
        for i, m in enumerate(mm):
            a(m)
            if nx and i in (6, 10): a("s_waitcnt lgkmcnt(4)")
            for _ in range(2):
                if nx: a(nx.pop(0))
        if p + LA < 8: issue(p + LA)
    a("s_nop 3")
    mark(11)
    for t in range(5):
        p = OF[0] + 2 * t
        a(f"v_cvt_pk_bf16_f32 v{p}, v{OC[t]}, v{OC[t]+1}")
        a(f"v_cvt_pk_bf16_f32 v{p+1}, v{OC[t]+2}, v{OC[t]+3}")
        if t % 2 == 1:
            a(f"s_nop 1\nv_permlane16_swap_b32 v{p-2}, v{p}\nv_permlane16_swap_b32 v{p-1}, v{p+1}")
            a(f"buffer_store_dwordx4 {vr(p-2,4)}, v{oS[0]}, s[16:19], 0 offen offset:{64*(t//2)}")
    a(f"buffer_store_dwordx2 {vr(OF[0]+8,2)}, v{oS[1]}, s[16:19], 0 offen offset:128")
    mark(12)
    stamp_end()
    a.label("L_end")
    a("s_endpgm")
    def blk(pat):
        for q in range(5):
            a(f"s_add_u32 m0, s{sT0}, {WL + q*1024}\ns_nop 0\nbuffer_load_dwordx4 v{OW[pat][q]}, s[92:95], s{sT1} offen lds")
    a(f"""
    L_wpf:
    s_mov_b32 s{sT2}, s{sW}
    L_wpl:
    s_mul_i32 s{sT0}, s{sT2}, 5120
    s_mul_i32 s{sT1}, s{sT2}, {40*1280}
    """)
    blk(0)
    a(f"""
    s_add_u32 s{sT2}, s{sT2}, 4
    s_cmp_lt_u32 s{sT2}, 14
    s_cbranch_scc1 L_wpl
    s_branch L_loop
    """)
    a.label("L_bal")
    a("s_setprio 0\ns_branch L_balr")

    a.label("L_fallback")
    for r in (vK, vK1, vV): a(f"v_subrev_u32 v{r[0]}, {12*GROUP}, v{r[0]}")
    a(f"""
    v_mov_b32 v{Q1[0]+1}, 0
    v_mov_b32 v{Q1[1]+1}, 0
    v_mov_b32 v{vM[0]}, 0xff800000
    v_mov_b32 v{vM[1]}, 0xff800000
    s_mov_b32 s{sGo}, 0
    L_fb1:
    buffer_load_dwordx4 {vr(K0[0],4)}, v{vK[0]}, s[8:11], s{sGo} offen {SC}
    buffer_load_dword v{K1[0]}, v{vK1[0]}, s[8:11], s{sGo} offen offset:1024 {SC}
    s_waitcnt vmcnt(0)
    {qk1(0,0)}
    {qk2(0,0)}
    {qk1(1,0)}
    {qk2(1,0)}
    s_add_u32 s{sGo}, s{sGo}, {TILE}
    s_nop 8
    """)
    rowmax(False)
    a(f"s_cmp_lt_u32 s{sGo}, {KV_SET}\ns_cbranch_scc1 L_fb1")
    crossmax()
    for s in range(2):
        for r in range(16): a(f"v_mov_b32 v{O[s]+r}, 0")
    a(f"""
    s_mov_b32 s{sGo}, 0
    L_fb2:
    buffer_load_dwordx4 {vr(K0[0],4)}, v{vK[0]}, s[8:11], s{sGo} offen {SC}
    buffer_load_dword v{K1[0]}, v{vK1[0]}, s[8:11], s{sGo} offen offset:1024 {SC}
    buffer_load_dwordx4 {vr(V[0][0],4)}, v{vV[0]}, s[8:11], s{sGo} offen offset:1280 {SC}
    buffer_load_dwordx4 {vr(V[0][1],4)}, v{vV[0]}, s[8:11], s{sGo} offen offset:{1280+672} {SC}
    s_waitcnt vmcnt(0)
    {qk1(0,0)}
    {qk2(0,0)}
    {qk1(1,0)}
    {qk2(1,0)}
    s_add_u32 s{sGo}, s{sGo}, {TILE}
    s_nop 8
    """)
    for s in range(2):
        for r in range(16): a(f"v_sub_f32 v{S[s][0]+r}, v{S[s][0]+r}, v{vM[s]}")
        for r in range(16): a(f"v_exp_f32 v{S[s][0]+r}, v{S[s][0]+r}")
    a(f"""
    s_nop 1
    {pv(0,0,0)}
    {pv(0,0,1)}
    {pv(1,0,0)}
    {pv(1,0,1)}
    s_cmp_lt_u32 s{sGo}, {KV_SET}
    s_cbranch_scc1 L_fb2
    s_nop 15
    {lb(0)}
    {lb(1)}
    s_branch L_store
    L_codeend:
    """)
    print("nv per phase", nvmax)
    kernel_desc(a, name, 256, 102)

if __name__ == "__main__":
    import sys
    NAME = "concat_heads__mha_block__grouped_kv_mqa__prompt"
    ref = open(f"cdna_kernels/{NAME}.s.ref").read().split("\n")
    hdr = [l for l in ref if l.startswith(";") and "@launch" not in l]
    opts = eval("dict(" + (sys.argv[2] if len(sys.argv) > 2 else "") + ")")
    a = Asm()
    a.raw('.amdgcn_target "amdgcn-amd-amdhsa--gfx950"')
    gen(a, NAME + "_kernel", **opts)
    out = "\n".join(hdr) + f"\n; @launch grid=(256,1,1) block=(512,1,1) lds={LDS}\n" + a.text()
    dst = sys.argv[1] if len(sys.argv) > 1 else f"cdna_kernels/{NAME}.s"
    open(dst, "w").write(out)
```

```python
import struct
from common import Asm, vr, RegAlloc, kernel_header, kernel_desc

def f32bits(x): return struct.unpack("<I", struct.pack("<f", x))[0]
QSCALE = f32bits((20 ** -0.5) * 1.4426950408889634)

TILE = 2624; GROUP = 4 * TILE; KV_SET = 16 * GROUP
KV_OFF = 0
Q_OFF = KV_OFF + 33 * KV_SET
Q_HEAD = 64 * 1280
O_OFF = Q_OFF + 64 * Q_HEAD
O_TAIL = 64 * 32768
O_BR = O_TAIL + 32 * 16384
F1 = O_OFF + 2 * O_BR
F3 = F1 + 64 * 2048
WS_USED = F3 + 8 * 2048
ST_OFF = 16 << 20
assert WS_USED <= ST_OFF
LDS = 163840
BIG = 0x100000
SPIN = 1000000
kAx, kAw, kAo, kBx, kBq, kBk, kBv, kBo, kOut, kDbg, kWs = 64, 66, 68, 70, 72, 74, 76, 78, 80, 82, 84
sN = 86

def interleave(a, mf, rd):
    rd = list(rd); n = len(mf)
    for i, m in enumerate(mf):
        a(m)
        k = 2 if len(rd) > (n - i - 3) else 1
        for _ in range(k):
            if rd: a(rd.pop(0))
    for r in rd: a(r)

def gen(a, name, stamp=False, force_fallback=False, SC="sc1", DBG="", AHEAD=1, ROT=True, LPF=0, SL1=0, SL3=8, SL4=1, BAL=11, CPF=False, UPR=2, LA=3, TICK=False, TST=5, SS=None, NR=8, PRE=0, EARLY=True, BT=9, ESP=True, OS=''):
    SS = SS or SC
    vL = 1
    T = list(range(2, 10))
    vF = 10
    BASE = 12
    sW, sI, sT0, sT1, sT2, sT3, sC = 20, 21, 23, 24, 25, 26, 27
    sW4, sHi, sSpin, sFl, sM0, sM1 = 22, 38, 43, 39, 44, 45
    nvmax = []
    uid = [0]
    def mark(i):
        if "rt" in DBG:
            a(f"s_memrealtime s[88:89]\ns_waitcnt lgkmcnt(0)\ns_mov_b32 s{50+i}, s88")
            return
        if stamp: a(f"s_memtime s[88:89]\ns_waitcnt lgkmcnt(0)\ns_sub_u32 s{50+i}, s88, s48")
    def lstamp(tag):
        if stamp and tag in DBG:
            a(f"s_memtime s[88:89]\ns_waitcnt lgkmcnt(0)\ns_sub_u32 s88, s88, s48\ns_mov_b32 m0, s63\ns_add_u32 s63, s63, 1\ns_min_u32 s63, s63, 15\nv_writelane_b32 v255, s88, m0")
    def stamp_end():
        if "rt" in DBG:
            a(f"s_cmp_lg_u32 s{sW}, 0\ns_cbranch_scc1 L_end\ns_waitcnt vmcnt(0)\ns_memrealtime s[88:89]\ns_waitcnt lgkmcnt(0)\ns_mov_b32 s60, s88\ns_mov_b32 s63, s46\nv_mov_b32 v2, 0")
            for i in range(14):
                a(f"s_sub_u32 s88, s{50+i}, s{sN}\ns_add_u32 s88, s88, 1000\nv_writelane_b32 v2, s88, {i}")
            a(f"v_lshlrev_b32 v3, 2, v{vL}\ns_mov_b64 exec, 0x3fff\nglobal_atomic_umax v3, v2, s[{kDbg}:{kDbg+1}] offset:8 sc1")
            return
        if not stamp: return
        Z = 64
        a(f"""
        s_waitcnt vmcnt(0) lgkmcnt(0)
        s_memrealtime s[90:91]
        s_memtime s[88:89]
        s_waitcnt lgkmcnt(0)
        s_sub_u32 s88, s88, s48
        v_mov_b32 v{Z}, s46
        v_mov_b32 v{Z+1}, s90
        v_mov_b32 v{Z+2}, s88
        """)
        for i in range(13): a(f"v_mov_b32 v{Z+3+i}, s{50+i}")
        a(f"""
        s_lshl_b32 s88, s2, 3
        s_add_u32 s88, s88, s{sW}
        s_lshl_b32 s88, s88, 6
        s_add_u32 s88, s88, {ST_OFF}
        v_mov_b32 v{T[0]}, s88
        s_add_u32 s88, s88, 262144
        v_lshl_add_u32 v{T[1]}, v{vL}, 2, s88
        s_mov_b64 exec, 0xffff
        global_store_dword v{T[1]}, v255, s[{kWs}:{kWs+1}]
        s_mov_b64 exec, 1
        """)
        for i in range(4): a(f"global_store_dwordx4 v{T[0]}, {vr(Z+4*i,4)}, s[{kWs}:{kWs+1}] offset:{16*i}")
    def srd(d, base, off, size):
        a(f"""
        s_add_u32 s{d}, s{base}, {off}
        s_addc_u32 s{d+1}, s{base+1}, 0
        s_mov_b32 s{d+2}, {size}
        s_mov_b32 s{d+3}, 0x00020000
        """)
    def divc(vq, vrem, vn, d, mul, sh):
        a(f"v_mul_u32_u24 v{vq}, {mul}, v{vn}")
        a(f"v_lshrrev_b32 v{vq}, {sh}, v{vq}")
        a(f"v_mul_u32_u24 v{vrem}, {d}, v{vq}")
        a(f"v_sub_u32 v{vrem}, v{vn}, v{vrem}")
    def get_nonce():
        uid[0] += 1; u = uid[0]
        a(f"""
        v_mov_b32 v{T[0]}, 0
        s_mov_b32 s{sSpin}, {SPIN}
        L_gn{u}:
        global_load_dwordx2 {vr(vF,2)}, v{T[0]}, s[{kDbg}:{kDbg+1}] sc1
        s_waitcnt vmcnt(0)
        v_readfirstlane_b32 s{sN}, v{vF}
        v_readfirstlane_b32 s{sN+1}, v{vF+1}
        s_sub_u32 s{sSpin}, s{sSpin}, 1
        s_cbranch_scc1 L_gd{u}
        s_cmp_eq_u32 s{sN}, 0
        s_cbranch_scc1 L_gn{u}
        L_gd{u}:
        """)
    def put_flag(flag_sgpr, shift, nr=8):
        a(f"""
        v_lshl_add_u32 v{T[0]}, v{vL}, {shift}, s{flag_sgpr}
        v_mov_b32 v{T[2]}, s{sN}
        v_mov_b32 v{T[3]}, s{sN+1}
        s_mov_b32 exec_lo, {(1 << min(nr, 32)) - 1}
        s_mov_b32 exec_hi, {-1 if nr == 64 else 0}
        global_store_dwordx2 v{T[0]}, {vr(T[2],2)}, s[{kWs}:{kWs+1}] sc1
        s_mov_b64 exec, -1
        """)

    kernel_header(a, name)
    sMt, sGrp, sJ4, sLd, sSt, sHS, sScale = 28, 29, 30, 31, 32, 33, 34
    sOx, sOw, sOe, sM, sLd64, sWm, sWn, sRot, sTS, sCT = 35, 36, 37, 40, 41, 42, 92, 93, 94, 95
    a(f"""
    s_getpc_b64 s[96:97]
    s_cmp_ge_u32 s2, 256
    s_cbranch_scc1 L_end
    s_load_dwordx16 s[64:79], s[0:1], 0
    s_load_dwordx4 s[80:83], s[0:1], 64
    s_load_dwordx2 s[84:85], s[0:1], 80
    s_memrealtime s[46:47]
    {"s_memtime s[48:49]" if stamp else ""}
    {"s_mov_b32 s63, 0" if stamp else ""}
    v_lshrrev_b32 v{T[0]}, 6, v0
    v_and_b32 v{vL}, 63, v0
    s_getreg_b32 s{sT1}, hwreg(HW_REG_XCC_ID, 0, 3)
    v_readfirstlane_b32 s{sW}, v{T[0]}
    """)
    if TICK:
        a.c("logical workgroup id = (die, ticket on that die's counter); a full die spills to the next counter")
        a(f"""
        v_mov_b32 v{T[2]}, {LDS - 16}
        s_cmp_lg_u32 s{sW}, 0
        s_cbranch_scc1 L_tk2
        v_mov_b32 v{T[1]}, 1
        s_mov_b32 s{sT3}, 16
        s_mov_b64 exec, 1
        s_waitcnt lgkmcnt(0)
        L_tk:
        s_lshl_b32 s{sT2}, s{sT1}, {TST}
        v_mov_b32 v{T[0]}, s{sT2}
        global_atomic_add v{T[3]}, v{T[0]}, v{T[1]}, s[{kDbg}:{kDbg+1}] offset:16 sc0 sc1
        s_waitcnt vmcnt(0)
        v_readfirstlane_b32 s{sT2}, v{T[3]}
        s_sub_u32 s{sT3}, s{sT3}, 1
        s_cbranch_scc1 L_tk1
        s_cmp_lt_u32 s{sT2}, 32
        s_cbranch_scc1 L_tk1
        s_add_u32 s{sT1}, s{sT1}, 1
        s_and_b32 s{sT1}, s{sT1}, 7
        s_branch L_tk
        L_tk1:
        s_lshl_b32 s{sT2}, s{sT2}, 3
        s_add_u32 s{sT2}, s{sT2}, s{sT1}
        v_mov_b32 v{T[3]}, s{sT2}
        ds_write_b32 v{T[2]}, v{T[3]}
        s_mov_b64 exec, -1
        s_waitcnt lgkmcnt(0)
        L_tk2:
        s_barrier
        ds_read_b32 v{T[3]}, v{T[2]}
        s_waitcnt lgkmcnt(0)
        v_readfirstlane_b32 s2, v{T[3]}
        s_nop 3
        s_and_b32 s2, s2, 255
        """)
        mark(10)
    a(f"""
    s_and_b32 s{sT0}, s2, 7
    s_lshr_b32 s{sT1}, s2, 3
    s_lshr_b32 s{sGrp}, s{sT0}, 1
    s_and_b32 s{sMt}, s{sT0}, 1
    s_lshl_b32 s{sMt}, s{sMt}, 3
    s_and_b32 s{sT2}, s{sT1}, 7
    s_add_u32 s{sMt}, s{sMt}, s{sT2}
    s_lshr_b32 s{sJ4}, s{sT1}, 3
    s_and_b32 s{sW4}, s{sW}, 3
    s_lshr_b32 s{sHi}, s{sW}, 2
    s_cmp_ge_u32 s{sW}, 4
    s_cbranch_scc0 L_comp
    """)
    ST = 39424; NST = 4; WOFF = 16384; EOFF = 36864
    IMG = 2 * ST; IH = 5376
    R = RegAlloc(BASE)
    bX = [R.alloc(f"bX{k}") for k in range(2)]; bW = R.alloc("bW"); bE = R.alloc("bE"); bXe = [R.alloc(f"bXe{k}") for k in range(2)]
    aX = [R.alloc(f"aX{k}") for k in range(2)]; aW = R.alloc("aW"); aE = R.alloc("aE"); aXe = [R.alloc(f"aXe{k}") for k in range(2)]
    A0 = [R.alloc(f"A0{i}") for i in range(5)]; A1 = [R.alloc(f"A1{i}") for i in range(5)]
    assert A1[1] % 2 == 0
    AE = [R.alloc(f"AE{i}") for i in range(2)]
    FX = [[R.alloc(f"FX{b}{i}", 4, 4) for i in range(4)] for b in range(2)]
    FW = [[R.alloc(f"FW{b}{i}", 4, 4) for i in range(5)] for b in range(2)]
    FXe = [R.alloc(f"FXe{b}", 4, 4) for b in range(2)]
    FE = [[R.alloc(f"FE{b}{i}", 4, 4) for i in range(2)] for b in range(2)]
    ACC = [[R.alloc(f"C{m}{n}", 4, 4) for n in range(5)] for m in range(4)]
    ACE = [R.alloc(f"CE{n}", 4, 4) for n in range(2)]
    SO = [R.alloc(f"SO{q}") for q in range(6)]
    nvmax.append(R.n)
    LX = [FX[0][0] + i for i in range(4)]; LW = [FX[0][1] + i for i in range(5)]; LE = FX[0][3]
    a(f"""
    s_setprio 2
    s_cmp_eq_u32 s{sGrp}, 3
    s_mov_b32 s{sLd}, 3840
    s_cmov_b32 s{sLd}, 1280
    s_mul_i32 s{sRot}, s{sJ4}, 3
    s_add_u32 s{sRot}, s{sRot}, s{sT2}
    s_cmp_ge_u32 s{sRot}, 10
    s_cselect_b32 s{sT0}, 10, 0
    s_sub_u32 s{sRot}, s{sRot}, s{sT0}
    {"" if ROT is True else f"s_mov_b32 s{sRot}, 0" if not ROT else f"s_and_b32 s{sRot}, s{sRot}, {ROT[0]}"+chr(10)+f"s_mul_i32 s{sRot}, s{sRot}, {ROT[1]}"}
    v_lshrrev_b32 v{T[0]}, 3, v{vL}
    s_lshl_b32 s{sT0}, s{sW4}, 5
    v_add_u32 v{T[0]}, s{sT0}, v{T[0]}
    v_mul_u32_u24 v{T[0]}, 1280, v{T[0]}
    v_and_b32 v{T[1]}, 7, v{vL}
    v_lshrrev_b32 v{T[2]}, 4, v{vL}
    v_xor_b32 v{T[1]}, v{T[1]}, v{T[2]}
    v_xor_b32 v{T[2]}, 4, v{T[1]}
    v_lshl_add_u32 v{LX[0]}, v{T[1]}, 4, v{T[0]}
    v_lshl_add_u32 v{LX[1]}, v{T[2]}, 4, v{T[0]}
    v_add_u32 v{LX[1]}, 10240, v{LX[1]}
    v_add_u32 v{LX[2]}, 20480, v{LX[0]}
    v_add_u32 v{LX[3]}, 20480, v{LX[1]}
    s_lshl_b32 s{sLd64}, s{sLd}, 6
    s_lshr_b32 s{sT0}, s{sW4}, 1
    s_mul_i32 s{sT0}, s{sT0}, 160
    s_and_b32 s{sT1}, s{sW4}, 1
    s_mul_i32 s{sT1}, s{sT1}, s{sLd}
    s_lshl_b32 s{sT1}, s{sT1}, 5
    s_add_u32 s{sM}, s{sT0}, s{sT1}
    v_mov_b32 v{T[7]}, s{sLd}
    """)
    for q in range(5):
        a(f"v_add_u32 v{T[0]}, {q*64}, v{vL}")
        divc(T[1], T[2], T[0], 10, 6554, 16)
        a(f"""
        v_lshl_add_u32 v{T[3]}, v{T[2]}, 4, s{sM}
        v_and_b32 v{T[4]}, 3, v{T[1]}
        v_and_b32 v{T[5]}, 12, v{T[1]}
        v_lshl_add_u32 v{T[4]}, v{T[5]}, 1, v{T[4]}
        v_lshrrev_b32 v{T[5]}, 4, v{T[1]}
        v_lshl_add_u32 v{T[4]}, v{T[5]}, 2, v{T[4]}
        v_mad_u32_u24 v{LW[q]}, v{T[4]}, v{T[7]}, v{T[3]}
        """)
    a(f"""
    s_mul_i32 s{sT0}, s{sW4}, 640
    v_lshlrev_b32 v{LE}, 4, v{vL}
    v_add_u32 v{LE}, s{sT0}, v{LE}
    s_lshl_b32 s{sOx}, s{sRot}, 7
    s_mul_i32 s{sOw}, s{sRot}, s{sLd64}
    s_mul_i32 s{sOe}, s{sRot}, 2560
    s_mul_i32 s{sT0}, s{sMt}, 163840
    s_mov_b32 s10, 163840
    s_mov_b32 s11, 0x00020000
    s_mov_b32 s15, 0x00020000
    s_mov_b32 s18, 25600
    s_mov_b32 s19, 0x00020000
    s_cmp_eq_u32 s{sGrp}, 3
    s_cselect_b32 s{sT1}, 0, s{sGrp}
    s_mov_b32 s14, {640*3840}
    s_cmov_b32 s14, {640*1280}
    s_waitcnt lgkmcnt(0)
    s_cselect_b32 s8, s{kBx}, s{kAx}
    s_cselect_b32 s9, s{kBx+1}, s{kAx+1}
    s_cselect_b32 s12, s{kBq}, s{kAw}
    s_cselect_b32 s13, s{kBq+1}, s{kAw+1}
    s_add_u32 s8, s8, s{sT0}
    s_addc_u32 s9, s9, 0
    s_mul_i32 s{sT1}, s{sT1}, 1280
    s_mul_i32 s{sT0}, s{sJ4}, 320
    s_add_u32 s{sT0}, s{sT0}, s{sT1}
    s_add_u32 s12, s12, s{sT0}
    s_addc_u32 s13, s13, 0
    s_sub_u32 s14, s14, s{sT0}
    s_cmp_lt_u32 s{sJ4}, 2
    s_cselect_b32 s16, s{kBk}, s{kBv}
    s_cselect_b32 s17, s{kBk+1}, s{kBv+1}
    s_lshl_b32 s{sT0}, s{sW4}, 12
    s_mul_i32 s{sT1}, s{sW4}, 5120
    s_add_u32 s{sT1}, s{sT1}, {WOFF}
    s_mul_i32 s{sT2}, s{sW4}, 640
    s_add_u32 s{sT2}, s{sT2}, {EOFF}
    s_mov_b32 s{sSt}, 0
    s_mov_b32 s{sC}, 0
    s_cmp_eq_u32 s{sGrp}, 3
    s_cbranch_scc1 L_llB
    """)
    def issue(ext):
        for q in range(4):
            a(f"s_add_u32 m0, s{sT0}, {q*1024}\ns_nop 0\nbuffer_load_dwordx4 v{LX[q]}, s[8:11], s{sOx} offen lds")
        for q in range(5):
            a(f"s_add_u32 m0, s{sT1}, {q*1024}\ns_nop 0\nbuffer_load_dwordx4 v{LW[q]}, s[12:15], s{sOw} offen lds")
        if ext:
            a(f"""
            s_mov_b32 m0, s{sT2}
            s_mov_b32 exec_hi, 0xff
            buffer_load_dwordx4 v{LE}, s[16:19], s{sOe} offen lds
            s_mov_b32 exec_hi, -1
            s_add_u32 s{sOe}, s{sOe}, 2560
            """)
        a(f"""
        s_add_u32 s{sOx}, s{sOx}, 128
        s_add_u32 s{sOw}, s{sOw}, s{sLd64}
        s_cmp_eq_u32 s{sOx}, 1280
        s_cselect_b32 s{sOx}, 0, s{sOx}
        s_cselect_b32 s{sOw}, 0, s{sOw}
        s_cselect_b32 s{sOe}, 0, s{sOe}
        s_add_u32 s{sSt}, s{sSt}, 1
        s_and_b32 s{sSt}, s{sSt}, 3
        s_mov_b32 s{sM}, {ST}
        s_cmp_eq_u32 s{sSt}, 0
        s_cmov_b32 s{sM}, {(-3*ST) & 0xffffffff}
        s_add_u32 s{sT0}, s{sT0}, s{sM}
        s_add_u32 s{sT1}, s{sT1}, s{sM}
        s_add_u32 s{sT2}, s{sT2}, s{sM}
        """)
    for ext in (False, True):
        tag = "B" if ext else "A"
        n = 10 if ext else 9
        a.label(f"L_ll{tag}")
        issue(ext)
        a(f"""
        s_add_u32 s{sC}, s{sC}, 1
        s_cmp_lt_u32 s{sC}, {AHEAD+1}
        s_cbranch_scc1 L_ll{tag}
        s_waitcnt vmcnt({AHEAD*n})
        s_barrier
        s_cmp_lt_u32 s{sC}, 10
        s_cbranch_scc1 L_ll{tag}
        """)
        for c in range(AHEAD):
            a(f"s_waitcnt vmcnt({(AHEAD-1-c)*n})\ns_barrier")
        if not ext: a("s_branch L_ldone")
    a.label("L_ldone")
    a.c("loader waves: ones rows of the V image (2 heads per wave x 16 blocks), then common store setup")
    a(f"""
    s_cmp_lg_u32 s{sGrp}, 2
    s_cbranch_scc1 L_stset
    v_and_b32 v{T[0]}, 31, v{vL}
    v_mul_u32_u24 v{T[0]}, 336, v{T[0]}
    s_mul_i32 s{sT0}, s{sW4}, {2*IH}
    s_add_u32 s{sT0}, s{sT0}, {IMG + 320}
    v_add_u32 v{T[0]}, s{sT0}, v{T[0]}
    v_mov_b32 v{T[2]}, 0x3f803f80
    v_mov_b32 v{T[3]}, 0x3f803f80
    v_mov_b32 v{T[4]}, 0x3f803f80
    v_mov_b32 v{T[5]}, 0x3f803f80
    ds_write_b128 v{T[0]}, {vr(T[2],4)}
    s_branch L_stset
    """)
    assert T[2] % 2 == 0

    a.label("L_comp")
    if CPF:
        a(f"""
        v_lshlrev_b32 v{T[0]}, 7, v0
        v_min_u32 v{T[0]}, L_codeend - {name} - 8, v{T[0]}
        global_load_dword v252, v{T[0]}, s[96:97]
        """)
    a(f"""
    s_lshr_b32 s{sWm}, s{sW}, 1
    s_and_b32 s{sWn}, s{sW}, 1
    v_and_b32 v{T[0]}, 15, v{vL}
    v_lshrrev_b32 v{T[1]}, 4, v{vL}
    v_lshrrev_b32 v{T[2]}, 1, v{T[0]}
    v_xor_b32 v{T[2]}, v{T[2]}, v{T[1]}
    v_xor_b32 v{T[3]}, 4, v{T[2]}
    v_lshlrev_b32 v{T[4]}, 7, v{T[0]}
    v_lshl_add_u32 v{T[2]}, v{T[2]}, 4, v{T[4]}
    v_lshl_add_u32 v{T[3]}, v{T[3]}, 4, v{T[4]}
    s_lshl_b32 s{sT0}, s{sWm}, 13
    v_add_u32 v{bX[0]}, s{sT0}, v{T[2]}
    v_add_u32 v{bX[1]}, s{sT0}, v{T[3]}
    s_and_b32 s{sM}, s{sJ4}, 1
    s_lshl_b32 s{sM}, s{sM}, 1
    s_add_u32 s{sM}, s{sM}, s{sWn}
    s_lshl_b32 s{sT2}, s{sM}, 11
    v_add_u32 v{bXe[0]}, s{sT2}, v{bX[0]}
    v_add_u32 v{bXe[1]}, s{sT2}, v{bX[1]}
    v_lshrrev_b32 v{T[2]}, 2, v{vL}
    v_mul_u32_u24 v{T[2]}, 40, v{vL}
    v_and_b32 v{T[3]}, 3, v{vL}
    s_mul_i32 s{sT0}, s{sWn}, 10240
    v_add_u32 v{bW}, s{sT0}, v{T[2]}
    v_lshrrev_b32 v{T[2]}, 2, v{T[0]}
    v_lshl_add_u32 v{T[2]}, v{T[1]}, 3, v{T[2]}
    v_mul_u32_u24 v{T[2]}, 40, v{T[2]}
    v_lshl_add_u32 v{bE}, v{T[3]}, 3, v{T[2]}
    s_waitcnt lgkmcnt(0)
    s_add_u32 s{sT1}, s2, s{sW}
    s_cmp_lg_u32 s{sT1}, 0
    s_cbranch_scc1 L_nononce
    s_or_b32 s{sT1}, s46, 1
    v_mov_b32 v{vF}, s{sT1}
    v_mov_b32 v{vF+1}, s47
    v_mov_b32 v{T[2]}, 0
    s_mov_b64 exec, 1
    global_store_dwordx2 v{T[2]}, {vr(vF,2)}, s[{kDbg}:{kDbg+1}] sc1
    s_mov_b64 exec, -1
    L_nononce:
    """)
    if LPF:
        a.c("linear touch of this wave's 1/1024 share of both Wo matrices")
        a(f"""
        s_lshl_b32 s{sT0}, s2, 2
        s_add_u32 s{sT0}, s{sT0}, s{sW}
        s_mul_i32 s{sT3}, s{sT0}, 800
        v_min_u32 v{T[2]}, 6, v{vL}
        v_lshl_add_u32 v{T[3]}, v{T[2]}, 7, s{sT3}
        global_load_dword v250, v{T[3]}, s[{kAo}:{kAo+1}]
        global_load_dword v251, v{T[3]}, s[{kBo}:{kBo+1}]
        """)
    for m in range(4):
        for n in range(5):
            for r in (0, 2): a(f"v_pk_mov_b32 {vr(ACC[m][n]+r,2)}, 0, 0")
    for n in range(2):
        for r in range(4): a(f"v_mov_b32 v{ACE[n]+r}, 0")
    a(f"""
    s_cmp_eq_u32 s{sGrp}, 1
    s_mov_b32 s{sScale}, 0x{QSCALE:x}
    s_cmov_b32 s{sScale}, 1.0
    v_mov_b32 v{A1[1]}, s{sScale}
    v_mov_b32 v{A1[2]}, s{sScale}
    s_mul_i32 s{sT0}, s{sMt}, {GROUP}
    s_add_u32 s{sT0}, s{sT0}, {KV_OFF + 32*KV_SET}
    """)
    srd(12, kWs, f"s{sT0}", GROUP)
    a(f"""
    s_mov_b32 s{sSt}, 0
    s_mov_b32 s{sC}, 0
    s_cmp_eq_u32 s{sGrp}, 2
    s_cbranch_scc1 L_F
    """)
    def addr_T():
        a(f"""
        s_mul_i32 s{sT0}, s{sWn}, {4*IH}
        s_mul_i32 s{sT1}, s{sWm}, 2560
        s_add_u32 s{sT0}, s{sT0}, s{sT1}
        s_add_u32 s{sT0}, s{sT0}, {IMG}
        v_mul_u32_u24 v{T[3]}, {IH}, v{T[1]}
        v_add_u32 v{T[3]}, s{sT0}, v{T[3]}
        v_lshl_add_u32 v{A0[0]}, v{T[0]}, 4, v{T[3]}
        v_lshl_add_u32 v{A0[1]}, v{T[0]}, 3, v{T[3]}
        """)
    def addr_F():
        a(f"""
        s_mul_i32 s{sT0}, s{sWn}, {4*IH}
        s_mul_i32 s{sT1}, s{sWm}, 2688
        s_add_u32 s{sT0}, s{sT0}, s{sT1}
        s_add_u32 s{sT0}, s{sT0}, {IMG}
        v_lshrrev_b32 v{T[5]}, 1, v{T[1]}
        v_mul_u32_u24 v{T[5]}, 336, v{T[5]}
        v_and_b32 v{T[6]}, 1, v{T[1]}
        v_lshl_add_u32 v{T[5]}, v{T[6]}, 3, v{T[5]}
        v_lshrrev_b32 v{T[3]}, 2, v{T[0]}
        v_mul_u32_u24 v{T[3]}, {IH}, v{T[3]}
        v_and_b32 v{T[4]}, 3, v{T[0]}
        v_lshl_add_u32 v{T[3]}, v{T[4]}, 4, v{T[3]}
        v_add3_u32 v{A0[0]}, v{T[3]}, v{T[5]}, s{sT0}
        """)
    def addr_E(kind):
        a(f"""
        s_lshl_b32 s{sT0}, s{sWm}, 1
        s_lshr_b32 s{sT1}, s{sM}, 1
        s_add_u32 s{sT0}, s{sT0}, s{sT1}
        s_mul_i32 s{sT0}, s{sT0}, {TILE}
        s_and_b32 s{sT1}, s{sM}, 1
        v_and_b32 v{T[4]}, 1, v{T[1]}
        v_lshrrev_b32 v{T[5]}, 1, v{T[1]}
        """)
        if kind == "K":
            a(f"""
            s_lshl_b32 s{sT2}, s{sT1}, 8
            s_add_u32 s{sT2}, s{sT2}, s{sT0}
            v_lshlrev_b32 v{T[6]}, 9, v{T[4]}
            v_lshl_add_u32 v{T[6]}, v{T[5]}, 3, v{T[6]}
            v_lshl_add_u32 v{T[6]}, v{T[0]}, 4, v{T[6]}
            v_add_u32 v{AE[0]}, s{sT2}, v{T[6]}
            s_lshl_b32 s{sT2}, s{sT1}, 7
            s_add_u32 s{sT2}, s{sT2}, s{sT0}
            s_add_u32 s{sT2}, s{sT2}, 1024
            v_lshlrev_b32 v{T[6]}, 20, v{T[1]}
            v_lshl_add_u32 v{T[6]}, v{T[0]}, 3, v{T[6]}
            v_add_u32 v{AE[1]}, s{sT2}, v{T[6]}
            """)
        else:
            a(f"""
            s_mul_i32 s{sT2}, s{sT1}, 672
            s_add_u32 s{sT2}, s{sT2}, s{sT0}
            s_add_u32 s{sT2}, s{sT2}, 1280
            v_mul_u32_u24 v{T[6]}, 336, v{T[5]}
            v_lshl_add_u32 v{T[6]}, v{T[4]}, 3, v{T[6]}
            v_lshl_add_u32 v{T[6]}, v{T[0]}, 4, v{T[6]}
            v_add_u32 v{AE[0]}, s{sT2}, v{T[6]}
            v_cmp_lt_u32 vcc, 4, v{T[0]}
            v_add_u32 v{T[6]}, 256, v{AE[0]}
            v_mov_b32 v{T[7]}, {BIG}
            v_cndmask_b32 v{AE[1]}, v{T[6]}, v{T[7]}, vcc
            """)
    def reads(b, ks, ext):
        r = [f"ds_read_b128 {vr(FX[b][0],4)}, v{aX[ks]}"]
        for tn in range(5):
            for hr in range(2):
                r.append(f"ds_read_b64_tr_b16 {vr(FW[b][tn]+2*hr,2)}, v{aW} offset:{WOFF + ks*5120 + hr*2560 + tn*8}")
        for tm in range(1, 4):
            r.append(f"ds_read_b128 {vr(FX[b][tm],4)}, v{aX[ks]} offset:{tm*2048}")
        if ext:
            r.append(f"ds_read_b128 {vr(FXe[b],4)}, v{aXe[ks]}")
            for tn in range(2):
                for hr in range(2):
                    r.append(f"ds_read_b64_tr_b16 {vr(FE[b][tn]+2*hr,2)}, v{aE} offset:{EOFF + ks*1280 + hr*160 + tn*32}")
        return r
    def mf(d, x, w, orient):
        A_, B_ = (w, x) if orient == "T" else (x, w)
        return f"v_mfma_f32_16x16x32_bf16 {vr(d,4)}, {vr(A_,4)}, {vr(B_,4)}, {vr(d,4)}"
    def mfmas(b, orient, ext):
        m = [mf(ACC[tm][tn], FX[b][tm], FW[b][tn], orient) for tm in range(4) for tn in range(5)]
        if ext: m += [mf(ACE[tn], FXe[b], FE[b][tn], "T" if ext == "K" else "F") for tn in range(2)]
        return m
    def setaddr(ext):
        a(f"v_add_u32 v{aX[0]}, s{sSt}, v{bX[0]}")
        a(f"v_add_u32 v{aW}, s{sSt}, v{bW}")
        a(f"v_add_u32 v{aX[1]}, s{sSt}, v{bX[1]}")
        if ext:
            a(f"v_add_u32 v{aXe[0]}, s{sSt}, v{bXe[0]}")
            a(f"v_add_u32 v{aXe[1]}, s{sSt}, v{bXe[1]}")
            a(f"v_add_u32 v{aE}, s{sSt}, v{bE}")
        a(f"s_add_u32 s{sSt}, s{sSt}, {ST}\ns_cmp_eq_u32 s{sSt}, {ST*NST}\ns_cselect_b32 s{sSt}, 0, s{sSt}")
    def variant(tag, orient, ext):
        L = f"L_{tag}"
        setaddr(ext)
        mark(0)
        a("s_barrier")
        mark(1)
        for r in reads(0, 0, ext): a(r)
        a(f"s_branch {L}_mid")
        a.raw(".p2align 6")
        a.label(f"{L}_loop")
        a("s_barrier")
        lstamp("gs")
        interleave(a, mfmas(1, orient, ext), reads(0, 0, ext))
        a.label(f"{L}_mid")
        a("s_waitcnt lgkmcnt(0)")
        interleave(a, mfmas(0, orient, ext), reads(1, 1, ext))
        setaddr(ext)
        a(f"s_add_u32 s{sC}, s{sC}, 1\ns_cmp_lt_u32 s{sC}, 10\ns_waitcnt lgkmcnt(0)\ns_cbranch_scc1 {L}_loop")
        for m in mfmas(1, orient, ext): a(m)
        mark(2)
        P = FX[0][0]; k = 0
        for tm in range(4):
            for tn in range(5):
                c = ACC[tm][tn]; p = P + 2 * (k % 8); k += 1
                if orient == "T":
                    for r in (0, 2): a(f"v_pk_mul_f32 {vr(c+r,2)}, {vr(c+r,2)}, {vr(A1[1],2)}")
                a(f"v_cvt_pk_bf16_f32 v{c}, v{c}, v{c+1}")
                a(f"v_cvt_pk_bf16_f32 v{c+1}, v{c+2}, v{c+3}")
                if orient == "T":
                    if tn < 4: a(f"ds_write_b64 v{A0[0]}, {vr(c,2)} offset:{(tm>>1)*1280 + (tm&1)*256 + (tn&1)*512 + (tn>>1)*8}")
                    else: a(f"ds_write_b64 v{A0[1]}, {vr(c,2)} offset:{(tm>>1)*1280 + 1024 + (tm&1)*128}")
                else:
                    a(f"ds_write_b64 v{A0[0]}, {vr(c,2)} offset:{tm*672 + tn*64}")
        if ext:
            if ext == "V":
                a(f"v_and_b32 v{T[0]}, 15, v{vL}\nv_cmp_eq_u32 vcc, 4, v{T[0]}\nv_mov_b32 v{T[6]}, 0x3f803f80")
            for tn in range(2):
                c = ACE[tn]
                a(f"v_cvt_pk_bf16_f32 v{c}, v{c}, v{c+1}")
                a(f"v_cvt_pk_bf16_f32 v{c+1}, v{c+2}, v{c+3}")
                if ext == "V" and tn == 1:
                    a(f"v_cndmask_b32 v{c}, v{c}, v{T[6]}, vcc\nv_cndmask_b32 v{c+1}, v{c+1}, v{T[6]}, vcc")
                a(f"buffer_store_dwordx2 {vr(c,2)}, v{AE[tn]}, s[12:15], 0 offen {SS}")
        a("s_branch L_stset")
    def store_setup():
        a(f"""
        s_cmp_eq_u32 s{sGrp}, 2
        s_cselect_b32 s{sCT}, 1, 0
        s_cselect_b32 s{sT3}, 1280, 0
        s_cmp_eq_u32 s{sGrp}, 1
        s_cselect_b32 s{sT0}, 1, s{sCT}
        s_cmp_eq_u32 s{sT0}, 1
        s_mov_b32 s{sHS}, {Q_HEAD}
        s_cmov_b32 s{sHS}, {KV_SET}
        s_mov_b32 s{sTS}, 1280
        s_cmov_b32 s{sTS}, {TILE}
        s_mov_b32 s{sT0}, {Q_OFF}
        s_cmov_b32 s{sT0}, {KV_OFF}
        s_add_u32 s{sT0}, s{sT0}, s{sT3}
        s_cmp_eq_u32 s{sGrp}, 3
        s_cselect_b32 s{sT1}, 32, 0
        s_lshl_b32 s{sT2}, s{sJ4}, 3
        s_add_u32 s{sT1}, s{sT1}, s{sT2}
        s_add_u32 s{sT1}, s{sT1}, s{sW}
        s_mul_i32 s{sT1}, s{sT1}, s{sHS}
        s_add_u32 s{sT0}, s{sT0}, s{sT1}
        s_lshl_b32 s{sT1}, s{sTS}, 2
        s_mul_i32 s{sT2}, s{sT1}, s{sMt}
        s_add_u32 s{sT0}, s{sT0}, s{sT2}
        s_sub_u32 s{sT1}, s{sT1}, s{sT3}
        """)
        srd(8, kWs, f"s{sT0}", f"s{sT1}")
        a(f"""
        s_cmp_eq_u32 s{sCT}, 1
        s_mov_b32 s{sCT}, 80
        s_cmov_b32 s{sCT}, 84
        s_mov_b32 s{sT0}, 820
        s_cmov_b32 s{sT0}, 781
        s_lshl_b32 s{sT2}, s{sCT}, 4
        s_sub_u32 s{sT2}, s{sTS}, s{sT2}
        """)
        for q in range(6):
            a(f"""
            v_add_u32 v{T[0]}, {64*q}, v{vL}
            v_mul_u32_u24 v{T[1]}, s{sT0}, v{T[0]}
            v_lshrrev_b32 v{T[1]}, 16, v{T[1]}
            v_lshlrev_b32 v{T[0]}, 4, v{T[0]}
            v_mad_u32_u24 v{SO[q]}, v{T[1]}, s{sT2}, v{T[0]}
            """)
        a(f"""
        s_lshl_b32 s{sFl}, s{sGrp}, 2
        s_add_u32 s{sFl}, s{sFl}, s{sJ4}
        s_lshl_b32 s{sFl}, s{sFl}, 4
        s_add_u32 s{sFl}, s{sFl}, s{sMt}
        s_lshl_b32 s{sFl}, s{sFl}, 3
        s_add_u32 s{sFl}, s{sFl}, {F1}
        """)
    def pre():
        a(f"v_and_b32 v{T[0]}, 15, v{vL}\nv_lshrrev_b32 v{T[1]}, 4, v{vL}")
    pre(); addr_T()
    a(f"s_cmp_eq_u32 s{sGrp}, 3\ns_cbranch_scc1 L_B")
    variant("T", "T", None)
    a.label("L_B")
    a(f"s_cmp_lt_u32 s{sJ4}, 2\ns_cbranch_scc0 L_BV")
    addr_E("K"); variant("TK", "T", "K")
    a.label("L_BV")
    addr_E("V"); variant("TV", "T", "V")
    a.label("L_F")
    pre(); addr_F(); variant("F", "F", None)
    a.label("L_stset")
    store_setup()
    a.label("L_stgo")
    SD = FX[0][0]
    a(f"""
    s_mul_i32 s{sT0}, s{sW}, {IH}
    s_add_u32 s{sT0}, s{sT0}, {IMG}
    v_lshl_add_u32 v{T[0]}, v{vL}, 4, s{sT0}
    s_waitcnt lgkmcnt(0)
    s_barrier
    """)
    for q in range(6): a(f"ds_read_b128 {vr(SD+4*q,4)}, v{T[0]} offset:{q*1024}")
    for q in range(5):
        a(f"s_waitcnt lgkmcnt({5-q})\nbuffer_store_dwordx4 {vr(SD+4*q,4)}, v{SO[q]}, s[8:11], 0 offen {SS}")
    a(f"""
    s_cmp_lg_u32 s{sGrp}, 2
    s_waitcnt lgkmcnt(0)
    s_cbranch_scc1 L_no6
    buffer_store_dwordx4 {vr(SD+20,4)}, v{SO[5]}, s[8:11], 0 offen {SS}
    L_no6:
    """)
    mark(3)

    R = RegAlloc(BASE)
    vK = [R.alloc("aK0"), R.alloc("aK1")]; vK1 = [R.alloc("aKa"), R.alloc("aKb")]; vV = [R.alloc("aV0"), R.alloc("aV1")]
    vIdx = R.alloc("idx"); vD = R.alloc("dma"); vM = [R.alloc("Ma"), R.alloc("Mb")]
    vOst = R.alloc("ost"); vOst2 = R.alloc("ost2"); vP = R.alloc("pk", 4, 2)
    R.n = max(R.n, SD + 24)
    Q0 = [R.alloc(f"Q0{s}", 4, 4) for s in range(2)]
    Q1 = [R.alloc(f"Q1{s}", 2, 2) for s in range(2)]
    K0 = [R.alloc(f"K0{i}", 4, 4) for i in range(2)]
    K1 = [R.alloc(f"K1{i}", 2, 2) for i in range(2)]
    V = [[R.alloc(f"V{i}{j}", 4, 4) for j in range(2)] for i in range(2)]
    S = [[R.alloc(f"S{s}{p}", 16, 4) for p in range(2)] for s in range(2)]
    O = [R.alloc(f"O{s}", 16, 4) for s in range(2)]
    assert R.n <= SO[0]
    nvmax.append(R.n)
    sHead, sTok, sBr, sOff, sF3, sGo = 28, 29, 30, 31, 32, 33
    R = RegAlloc(O[1] + 16)
    OW = [[R.alloc(f"OW{p}{q}") for q in range(5)] for p in range(2)]
    oM = R.alloc("oM"); oT = R.alloc("oT"); oF = R.alloc("oF"); oW = [R.alloc(f"oW{i}") for i in range(3)]; oS = [R.alloc("oS0"), R.alloc("oS1")]
    nvmax.append(R.n)
    R = RegAlloc(BASE)
    OF = [R.alloc(f"OF{k}", 4, 4) for k in range(16)]
    OT = [R.alloc(f"OT{k}", 2, 2) for k in range(8)]
    WB = [[[R.alloc(f"WB{b}{h}{t}", 4, 4) for t in range(5)] for h in range(2)] for b in range(2)]
    WT = [[R.alloc(f"WT{b}{t}", 2, 2) for t in range(5)] for b in range(2)]
    assert R.n <= OW[0][0]
    OC = [228 + 4 * t for t in range(5)]
    WL = GROUP
    sNt, sDone, sRdy, sBo, sTo = 34, 35, 36, 37, 40
    for q in range(5):
        a(f"v_add_u32 v{T[0]}, {64*q}, v{vL}")
        divc(T[1], T[2], T[0], 10, 6554, 16)
        a(f"""
        v_lshrrev_b32 v{T[4]}, 4, v{T[1]}
        v_and_b32 v{T[5]}, 3, v{T[1]}
        v_bfe_u32 v{T[6]}, v{T[1]}, 3, 1
        v_mul_u32_u24 v{T[6]}, 20, v{T[6]}
        v_and_b32 v{T[7]}, 4, v{T[1]}
        v_add3_u32 v{T[6]}, v{T[6]}, v{T[7]}, v{T[5]}
        v_lshl_add_u32 v{T[6]}, v{T[4]}, 3, v{T[6]}
        v_mul_u32_u24 v{T[6]}, 1280, v{T[6]}
        v_lshl_add_u32 v{OW[0][q]}, v{T[2]}, 4, v{T[6]}
        v_lshrrev_b32 v{T[6]}, 2, v{T[1]}
        v_mul_u32_u24 v{T[6]}, 20, v{T[6]}
        v_add3_u32 v{T[6]}, v{T[6]}, v{T[5]}, 16
        v_mul_u32_u24 v{T[6]}, 1280, v{T[6]}
        v_lshl_add_u32 v{OW[1][q]}, v{T[2]}, 4, v{T[6]}
        """)
    a(f"""
    s_and_b32 s{sT0}, s2, 7
    s_lshr_b32 s{sT1}, s2, 3
    s_lshr_b32 s{sBo}, s{sT0}, 2
    s_and_b32 s{sT0}, s{sT0}, 3
    s_lshl_b32 s{sT0}, s{sT0}, 2
    s_and_b32 s{sT2}, s{sT1}, 3
    s_add_u32 s{sT0}, s{sT0}, s{sT2}
    s_lshr_b32 s{sNt}, s{sT1}, 2
    s_lshl_b32 s{sTo}, s{sT0}, 7
    s_lshl_b32 s{sT0}, s{sW}, 4
    s_add_u32 s{sTo}, s{sTo}, s{sT0}
    v_and_b32 v{T[4]}, 15, v{vL}
    v_lshrrev_b32 v{T[1]}, 4, v{vL}
    v_add_u32 v{T[5]}, s{sTo}, v{T[4]}
    v_lshlrev_b32 v{oM}, 15, v{T[1]}
    v_lshl_add_u32 v{oM}, v{T[5]}, 4, v{oM}
    v_lshlrev_b32 v{oT}, 14, v{T[1]}
    v_lshl_add_u32 v{oT}, v{T[5]}, 3, v{oT}
    v_lshrrev_b32 v{T[6]}, 2, v{vL}
    v_mul_u32_u24 v{T[6]}, 160, v{T[6]}
    v_and_b32 v{T[7]}, 3, v{vL}
    v_lshl_add_u32 v{oW[1]}, v{T[7]}, 3, v{T[6]}
    v_add_u32 v{oW[1]}, {WL}, v{oW[1]}
    v_mul_u32_u24 v{T[4]}, 2560, v{T[4]}
    v_lshl_add_u32 v{oS[1]}, v{T[1]}, 3, v{T[4]}
    v_and_b32 v{T[6]}, 1, v{T[1]}
    v_lshl_add_u32 v{T[6]}, v{T[6]}, 5, v{T[4]}
    v_lshrrev_b32 v{T[1]}, 1, v{T[1]}
    v_lshl_add_u32 v{oS[0]}, v{T[1]}, 4, v{T[6]}
    s_lshl_b32 s{sT0}, s{sNt}, 11
    s_lshl_b32 s{sT1}, s{sBo}, 10
    s_add_u32 s{sT0}, s{sT0}, s{sT1}
    s_lshr_b32 s{sT1}, s{sTo}, 9
    s_lshl_b32 s{sT1}, s{sT1}, 8
    s_add_u32 s{sT0}, s{sT0}, s{sT1}
    s_add_u32 s{sT0}, s{sT0}, {F3}
    v_and_b32 v{oF}, 31, v{vL}
    v_lshl_add_u32 v{oF}, v{oF}, 3, s{sT0}
    s_cmp_eq_u32 s{sBo}, 0
    s_cselect_b32 s{sT0}, s{kAo}, s{kBo}
    s_cselect_b32 s{sT1}, s{kAo+1}, s{kBo+1}
    s_mul_i32 s{sT2}, s{sNt}, 160
    s_add_u32 s92, s{sT0}, s{sT2}
    s_addc_u32 s93, s{sT1}, 0
    s_sub_u32 s94, {640*1280}, s{sT2}
    s_mov_b32 s95, 0x00020000
    """)
    a(f"""
    s_and_b32 s{sT0}, s2, 7
    s_lshr_b32 s{sT1}, s2, 3
    s_lshr_b32 s{sBr}, s{sT1}, 4
    s_bfe_u32 s{sT2}, s{sT1}, 0x20002
    s_lshl_b32 s{sHead}, s{sT0}, 2
    s_add_u32 s{sHead}, s{sHead}, s{sT2}
    s_and_b32 s{sT3}, s{sT1}, 3
    s_lshl_b32 s{sTok}, s{sT3}, 9
    s_lshl_b32 s{sT1}, s{sW}, 6
    s_add_u32 s{sTok}, s{sTok}, s{sT1}
    v_and_b32 v{T[0]}, 31, v{vL}
    v_lshrrev_b32 v{T[1]}, 5, v{vL}
    v_lshlrev_b32 v{vK[0]}, 4, v{vL}
    v_lshlrev_b32 v{vD}, 4, v{vL}
    v_lshlrev_b32 v{vK1[0]}, 3, v{T[0]}
    v_lshl_add_u32 v{vK1[0]}, v{T[1]}, 2, v{vK1[0]}
    v_cmp_eq_u32 vcc, 24, v{T[0]}
    v_mov_b32 v{T[3]}, 20
    v_mov_b32 v{T[4]}, {BIG}
    v_cndmask_b32 v{T[2]}, v{T[0]}, v{T[3]}, vcc
    v_mul_u32_u24 v{vV[0]}, 336, v{T[1]}
    v_lshl_add_u32 v{vV[0]}, v{T[2]}, 4, v{vV[0]}
    v_cmp_lt_u32 vcc, 20, v{T[2]}
    v_mov_b32 v{vIdx}, 0xdddddddd
    v_mov_b32 v{K1[0]+1}, 0x3f80
    v_cndmask_b32 v{vV[0]}, v{vV[0]}, v{T[4]}, vcc
    v_cmp_eq_u32 vcc, 20, v{T[0]}
    v_mov_b32 v{K1[1]+1}, 0x3f80
    v_mov_b32 v{Q1[0]+1}, 0
    v_cndmask_b32 v{vV[0]}, v{vV[0]}, v{T[4]}, vcc
    v_mov_b32 v{Q1[1]+1}, 0
    v_add_u32 v{vK[1]}, {3*GROUP}, v{vK[0]}
    v_add_u32 v{vK1[1]}, {3*GROUP}, v{vK1[0]}
    v_add_u32 v{vV[1]}, {3*GROUP}, v{vV[0]}
    s_mul_i32 s{sT1}, s{sBr}, {O_BR}
    s_add_u32 s{sT1}, s{sT1}, {O_OFF}
    """)
    srd(16, kWs, f"s{sT1}", O_BR)
    a(f"""
    s_lshl_b32 s{sT2}, s{sHead}, 16
    s_lshl_b32 s{sT1}, s{sTok}, 4
    s_add_u32 s{sT2}, s{sT2}, s{sT1}
    v_lshlrev_b32 v{vOst}, 15, v{T[1]}
    v_lshl_add_u32 v{vOst}, v{T[0]}, 4, v{vOst}
    v_add_u32 v{vOst}, s{sT2}, v{vOst}
    s_lshl_b32 s{sT2}, s{sHead}, 14
    s_lshl_b32 s{sT1}, s{sTok}, 3
    s_add_u32 s{sT2}, s{sT2}, s{sT1}
    s_add_u32 s{sT2}, s{sT2}, {O_TAIL}
    v_lshlrev_b32 v{vOst2}, 3, v{T[0]}
    v_lshl_add_u32 v{vOst2}, v{T[1]}, 24, v{vOst2}
    v_add_u32 v{vOst2}, s{sT2}, v{vOst2}
    s_lshl_b32 s{sF3}, s{sBr}, 10
    s_lshl_b32 s{sT1}, s{sT3}, 8
    s_add_u32 s{sF3}, s{sF3}, s{sT1}
    s_lshl_b32 s{sT1}, s{sHead}, 3
    s_add_u32 s{sF3}, s{sF3}, s{sT1}
    s_add_u32 s{sF3}, s{sF3}, {F3}
    """)
    a.c("flag addresses to poll (T5): B: slots 12..15 ; A: lanes 0-15 K slot, 16-31 V slot, 32-63 Q slot (own 4 mt)")
    a(f"""
    s_lshr_b32 s{sT1}, s{sHead}, 3
    s_lshl_b32 s{sT1}, s{sT1}, 7
    v_and_b32 v{T[2]}, 15, v{vL}
    v_lshrrev_b32 v{T[3]}, 4, v{vL}
    v_add_u32 v{T[3]}, 1, v{T[3]}
    v_lshlrev_b32 v{T[3]}, 9, v{T[3]}
    v_lshl_add_u32 v{T[3]}, v{T[2]}, 3, v{T[3]}
    v_and_b32 v{T[2]}, 3, v{vL}
    s_lshl_b32 s{sT2}, s{sT3}, 5
    v_lshl_add_u32 v{T[2]}, v{T[2]}, 3, s{sT2}
    v_cmp_gt_u32 vcc, 32, v{vL}
    v_lshlrev_b32 v{T[4]}, 3, v{vL}
    v_add_u32 v{T[4]}, {12*128}, v{T[4]}
    v_cndmask_b32 v{T[5]}, v{T[2]}, v{T[3]}, vcc
    v_add_u32 v{T[5]}, s{sT1}, v{T[5]}
    s_cmp_eq_u32 s{sBr}, 0
    s_cselect_b64 vcc, -1, 0
    s_and_b32 s{sT1}, s2, {NR-1}
    s_lshl_b32 s{sT1}, s{sT1}, 11
    s_add_u32 s{sT1}, s{sT1}, {F1}
    v_cndmask_b32 v{T[5]}, v{T[4]}, v{T[5]}, vcc
    v_add_u32 v{T[5]}, s{sT1}, v{T[5]}
    """)
    for s in range(2):
        for r in range(16): a(f"v_mov_b32 v{O[s]+r}, 0")
    for r in range(8, 16): a(f"v_mov_b32 v{S[1][1]+r}, 0")
    for r in range(4): a(f"v_mov_b32 v{V[1][1]+r}, 0")
    a(f"""
    s_cmp_eq_u32 s{sBr}, 0
    s_cselect_b32 s{sT1}, s{sHead}, 32
    s_mul_i32 s{sT1}, s{sT1}, {KV_SET}
    s_lshl_b32 s{sT2}, s{sBr}, 5
    s_add_u32 s{sT2}, s{sT2}, s{sHead}
    s_mul_i32 s{sT2}, s{sT2}, {Q_HEAD}
    s_mul_i32 s{sT3}, s{sTok}, 40
    s_add_u32 s{sT2}, s{sT2}, s{sT3}
    s_add_u32 s{sT2}, s{sT2}, {Q_OFF}
    """)
    get_nonce()
    srd(8, kWs, f"s{sT1}", KV_SET)
    srd(12, kWs, f"s{sT2}", 2560)
    a(f"""
    s_barrier
    s_cmp_lg_u32 s{sW}, 0
    s_cbranch_scc1 L_f1w
    """)
    put_flag(sFl, 11, NR)
    if PRE: a(f"s_sleep {PRE}")
    mark(4)
    a(f"""
    s_mov_b32 s{sSpin}, {SPIN}
    L_f1l:
    global_load_dwordx2 {vr(vF,2)}, v{T[5]}, s[{kWs}:{kWs+1}] sc1
    s_waitcnt vmcnt(0)
    v_cmp_ne_u64 vcc, s[{sN}:{sN+1}], {vr(vF,2)}
    s_sub_u32 s{sSpin}, s{sSpin}, 1
    s_cbranch_scc1 L_f1w
    s_cbranch_vccz L_f1w
    s_sleep {SL1}
    s_branch L_f1l
    L_f1w:
    s_barrier
    """)
    mark(5)
    if not EARLY:
      for s in range(2):
        a(f"buffer_load_dwordx4 {vr(Q0[s],4)}, v{vK[0]}, s[12:15], 0 offen offset:{1280*s} {SC}")
        a(f"buffer_load_dword v{Q1[s]}, v{vK1[0]}, s[12:15], 0 offen offset:{1280*s+1024} {SC}")
    a(f"s_lshl_b32 s{sOff}, s{sW}, 10")
    dma = f"buffer_load_dwordx4 v{vD}, s[8:11], s{sOff} offen {SC} lds"
    kd = f"s_mov_b32 m0, s{sOff}\ns_nop 0\n{dma}\ns_add_u32 s{sOff}, s{sOff}, 8192"
    for k in range(1 if EARLY else 4): a(kd)
    if EARLY:
      for s in range(2):
        a(f"buffer_load_dwordx4 {vr(Q0[s],4)}, v{vK[0]}, s[12:15], 0 offen offset:{1280*s} {SC}")
        a(f"buffer_load_dword v{Q1[s]}, v{vK1[0]}, s[12:15], 0 offen offset:{1280*s+1024} {SC}")
      a(kd)
    def qk1(s, Tt): p = Tt % 2; return f"v_mfma_f32_32x32x16_bf16 {vr(S[s][p],16)}, {vr(K0[p],4)}, {vr(Q0[s],4)}, 0"
    def qk2(s, Tt): p = Tt % 2; return f"v_mfma_f32_32x32x8_bf16 {vr(S[s][p],16)}, {vr(K1[p],2)}, {vr(Q1[s],2)}, {vr(S[s][p],16)}"
    def pv(s, Tt, h): p = Tt % 2; return f"v_smfmac_f32_32x32x32_bf16 {vr(O[s],16)}, {vr(V[p][h],4)}, {vr(S[s][p]+8*h,8)}, v{vIdx}"
    def rowmax(first):
        for s in range(2):
            x = S[s][0]
            if first:
                a(f"v_max3_f32 v{vM[s]}, v{x}, v{x+1}, v{x+2}")
                for r in range(3, 15, 2): a(f"v_max3_f32 v{vM[s]}, v{x+r}, v{x+r+1}, v{vM[s]}")
                a(f"v_max_f32 v{vM[s]}, v{x+15}, v{vM[s]}")
            else:
                for r in range(0, 16, 2): a(f"v_max3_f32 v{vM[s]}, v{x+r}, v{x+r+1}, v{vM[s]}")
    def crossmax():
        a(f"""
        v_mov_b32 v{T[0]}, v{vM[0]}
        v_mov_b32 v{T[1]}, v{vM[1]}
        s_nop 1
        v_permlane32_swap_b32 v{T[0]}, v{vM[0]}
        v_permlane32_swap_b32 v{T[1]}, v{vM[1]}
        s_nop 1
        v_max_f32 v{vM[0]}, v{vM[0]}, v{T[0]}
        v_max_f32 v{vM[1]}, v{vM[1]}, v{T[1]}
        """)
    a(f"s_waitcnt vmcnt({1 if EARLY else 3})\ns_barrier")
    mark(6)
    a(f"""
    ds_read_b128 {vr(K0[0],4)}, v{vK[0]}
    ds_read_b32 v{K1[0]}, v{vK1[0]} offset:1024
    ds_read_b128 {vr(K0[1],4)}, v{vK[0]} offset:{TILE}
    ds_read_b32 v{K1[1]}, v{vK1[0]} offset:{TILE+1024}
    ds_read_b128 {vr(V[0][0],4)}, v{vV[0]} offset:1280
    ds_read_b128 {vr(V[0][1],4)}, v{vV[0]} offset:{1280+672}
    s_waitcnt lgkmcnt(4)
    {qk1(0,0)}
    {qk2(0,0)}
    {qk1(1,0)}
    {qk2(1,0)}
    v_cmp_gt_u32 vcc, 32, v{vL}
    {kd + chr(10) + kd + chr(10) + "s_nop 0" if EARLY else "s_nop 8"}
    """)
    rowmax(True)
    crossmax()
    for s in range(2):
        a(f"""
        v_sub_f32 v{T[2]}, 0, v{vM[s]}
        v_and_b32 v{T[3]}, 0xffff0000, v{T[2]}
        v_sub_f32 v{T[4]}, v{T[2]}, v{T[3]}
        v_and_b32 v{T[4]}, 0xffff0000, v{T[4]}
        v_cndmask_b32 v{T[5]}, v{T[4]}, v{T[3]}, vcc
        v_lshrrev_b32 v{Q1[s]+1}, 16, v{T[5]}
        v_add_f32 v{vP+2*s}, v{T[3]}, v{T[4]}
        v_add_f32 v{vP+2*s+1}, v{T[3]}, v{T[4]}
        """)
    for s in range(2):
        for r in range(0, 16, 2): a(f"v_pk_add_f32 {vr(S[s][0]+r,2)}, {vr(S[s][0]+r,2)}, {vr(vP+2*s,2)}")
    a(f"""
    s_mov_b32 s{sC}, 0
    s_setprio 1
    s_waitcnt vmcnt(2) lgkmcnt(0)
    s_barrier
    """)
    mark(7)
    def body(first):
        for t in range(16):
            Tt = 16 + t
            def ad(regs, tl, o):
                return f"v{regs[1]} offset:{(tl-12)*TILE+o}" if 12 <= tl < 16 else f"v{regs[0]} offset:{tl*TILE+o}"
            for s in range(2):
                X = S[s][Tt % 2]
                e = lambda i: a(f"v_exp_f32 v{X+i}, v{X+i}")
                e(0); e(1)
                if s == 0:
                    a(pv(1, Tt - 1, 1))
                    a(f"ds_read_b128 {vr(V[(Tt+1)%2][0],4)}, {ad(vV,t+1,1280)}")
                else:
                    a(pv(0, Tt, 1))
                    if first: a(f"s_mov_b32 m0, s{sOff}")
                    if stamp and "as" in DBG and t % 4 == 0: a("s_memtime s[88:89]")
                    a(f"ds_read_b128 {vr(V[(Tt+1)%2][1],4)}, {ad(vV,t+1,1952)}")
                e(2); e(3); e(4); e(5)
                a(qk1(s, Tt + 1))
                if s == 0: a(f"ds_read_b128 {vr(K0[Tt%2],4)}, {ad(vK,t+2,0)}")
                elif first: a(dma)
                elif t == 15: a(f"s_add_u32 s{sC}, s{sC}, 1")
                e(6); e(7); e(8); e(9)
                a(pv(s, Tt, 0))
                if s == 0:
                    a("s_waitcnt lgkmcnt(2)")
                    a(f"ds_read_b32 v{K1[Tt%2]}, {ad(vK1,t+2,1024)}")
                else:
                    if first: a(f"s_add_u32 s{sOff}, s{sOff}, 8192")
                    if stamp and "as" in DBG and t % 4 == 0:
                        a(f"s_waitcnt lgkmcnt(0)\ns_sub_u32 s88, s88, s48\ns_mov_b32 m0, s63\ns_add_u32 s63, s63, 1\nv_writelane_b32 v255, s88, m0")
                    a("s_waitcnt lgkmcnt(1)")
                    if not first and t == BT:
                        a(f"s_cmp_eq_u32 s{sC}, 3\ns_cbranch_scc1 L_bal\nL_balr:")
                e(10); e(11); e(12); e(13)
                a(qk2(s, Tt + 1))
                e(14); e(15)
            if first and t % 4 == 3:
                a("s_waitcnt vmcnt(4)\ns_barrier")
    def bump():
        for r in (vK, vK1, vV): a(f"v_add_u32 v{r[0]}, {4*GROUP}, v{r[0]}")
        a(f"""
        s_cmp_eq_u32 s{sC}, 3
        s_mov_b32 s{sT0}, {4*GROUP}
        s_cmov_b32 s{sT0}, {(4*GROUP - 15*GROUP) & 0xffffffff}
        """)
        for r in (vK, vK1, vV): a(f"v_add_u32 v{r[1]}, s{sT0}, v{r[1]}")
    a.raw(".p2align 6")
    body(True)
    a.c("group 15 -> slot 0 (all waves are past group 0)")
    a(f"""
    s_lshl_b32 s{sT0}, s{sW}, 11
    s_min_u32 s{sT1}, s{sT0}, {GROUP-1024}
    s_mov_b32 m0, s{sT1}
    s_add_u32 s{sOff}, s{sT1}, {15*GROUP}
    {dma}
    s_add_u32 s{sT0}, s{sT0}, 1024
    s_min_u32 s{sT1}, s{sT0}, {GROUP-1024}
    s_mov_b32 m0, s{sT1}
    s_add_u32 s{sOff}, s{sT1}, {15*GROUP}
    {dma}
    s_mov_b32 s{sC}, 1
    """)
    bump()
    a.raw(".p2align 6")
    a.label("L_loop")
    body(False)
    a(f"""
    s_cmp_eq_u32 s{sC}, 4
    s_cbranch_scc1 L_adone
    """)
    bump()
    a(f"""
    s_cmp_lg_u32 s{sC}, 2
    s_cbranch_scc1 L_loop
    s_waitcnt vmcnt(0)
    s_barrier
    s_cmp_eq_u32 s{sHi}, 0
    s_cbranch_scc1 L_wpf
    s_setprio 2
    s_branch L_loop
    L_adone:
    s_setprio 3
    s_waitcnt lgkmcnt(0)
    {pv(1, 31, 1)}
    """)
    mark(8)
    lo, hi = 0x2b800000, 0x5d800000
    if force_fallback: lo = 0x7f000000
    lb = lambda s: f"v_mov_b32 v{O[s]+13}, v{O[s]+12}\ns_nop 1\nv_permlane32_swap_b32 v{O[s]+12}, v{O[s]+13}\ns_nop 1"
    for s in range(2):
        a(lb(s))
        a(f"v_mov_b32 v{T[s]}, v{O[s]+12}")
        for r in range(12): a(f"v_fma_f32 v{T[s]}, v{O[s]+r}, 0, v{T[s]}")
    a(f"""
    v_cmp_le_f32 vcc, 0x{lo:x}, v{T[0]}
    s_mov_b64 s[{sM0}:{sM1}], vcc
    v_cmp_le_f32 vcc, 0x{lo:x}, v{T[1]}
    s_and_b64 s[{sM0}:{sM1}], s[{sM0}:{sM1}], vcc
    v_cmp_ge_f32 vcc, 0x{hi:x}, v{T[0]}
    s_and_b64 s[{sM0}:{sM1}], s[{sM0}:{sM1}], vcc
    v_cmp_ge_f32 vcc, 0x{hi:x}, v{T[1]}
    s_and_b64 s[{sM0}:{sM1}], s[{sM0}:{sM1}], vcc
    s_cmp_eq_u64 s[{sM0}:{sM1}], -1
    s_cbranch_scc0 L_fallback
    L_store:
    v_rcp_f32 v{vP}, v{O[0]+12}
    v_rcp_f32 v{vP+2}, v{O[1]+12}
    v_mov_b32 v{vP+1}, v{vP}
    v_mov_b32 v{vP+3}, v{vP+2}
    """)
    for s in range(2):
        for r in range(0, 12, 2): a(f"v_pk_mul_f32 {vr(O[s]+r,2)}, {vr(O[s]+r,2)}, {vr(vP+2*s,2)}")
        for r in range(6): a(f"v_cvt_pk_bf16_f32 v{S[s][0]+r}, v{O[s]+2*r}, v{O[s]+2*r+1}")
        a(f"buffer_store_dwordx4 {vr(S[s][0],4)}, v{vOst}, s[16:19], 0 offen offset:{512*s} {SS}")
        a(f"buffer_store_dwordx2 {vr(S[s][0]+4,2)}, v{vOst2}, s[16:19], 0 offen offset:{256*s} {SS}")

    sU = [3, 4, 5, 6, 7, 12, 13, 14]
    def blk(pat):
        for q in range(5):
            a(f"s_add_u32 m0, s{sT0}, {WL + q*1024}\ns_nop 0\nbuffer_load_dwordx4 v{OW[pat][q]}, s[92:95], s{sT1} offen lds")
    a(f"""
    s_mul_i32 s{sT0}, s{sBo}, {O_BR}
    s_add_u32 s{sT0}, s{sT0}, {O_OFF}
    """)
    srd(8, kWs, f"s{sT0}", O_BR)
    a(f"""
    s_mov_b32 s{sRdy}, 0
    s_mov_b32 s{sDone}, 0
    s_mov_b32 s{sSpin}, {SPIN}
    s_waitcnt vmcnt(0)
    s_barrier
    s_cmp_lg_u32 s{sW}, 7
    s_cbranch_scc1 L_nf3
    """)
    put_flag(sF3, 11)
    a.label("L_nf3")
    mark(9)
    a(f"""
    s_mul_i32 s{sT0}, s{sTo}, 2560
    s_mul_i32 s{sT1}, s{sBo}, 1280
    s_add_u32 s{sT0}, s{sT0}, s{sT1}
    s_mul_i32 s{sT1}, s{sNt}, 160
    s_add_u32 s{sT0}, s{sT0}, s{sT1}
    s_sub_u32 s{sT1}, {2048*2560}, s{sT0}
    """)
    srd(16, kOut, f"s{sT0}", f"s{sT1}")
    a(f"""
    s_cmp_ge_u32 s{sW}, 6
    s_cbranch_scc1 L_ow3
    s_cmp_ge_u32 s{sW}, 4
    s_cbranch_scc1 L_ow2
    s_mul_i32 s{sT0}, s{sW}, 5120
    s_add_u32 s{sT0}, s{sT0}, {16*5120}
    s_mul_i32 s{sT1}, s{sW}, {160*1280}
    """)
    blk(1)
    a(f"""
    s_branch L_ow3
    L_ow2:
    s_add_u32 s{sT2}, s{sW}, 10
    s_mul_i32 s{sT0}, s{sT2}, 5120
    s_mul_i32 s{sT1}, s{sT2}, {40*1280}
    """)
    blk(0)
    a.label("L_ow3")
    def issue(p):
        a(f"""
        s_andn2_b32 s{sT0}, s{sRdy}, s{sDone}
        s_cbranch_scc1 L_is{p}
        L_ip{p}:
        global_load_dwordx2 {vr(vF,2)}, v{oF}, s[{kWs}:{kWs+1}] sc1
        s_waitcnt vmcnt(0)
        v_cmp_eq_u64 vcc, s[{sN}:{sN+1}], {vr(vF,2)}
        s_sub_u32 s{sSpin}, s{sSpin}, 1
        s_cselect_b32 vcc_lo, -1, vcc_lo
        s_lshr_b32 s{sT0}, vcc_lo, 1
        s_and_b32 s{sT0}, s{sT0}, vcc_lo
        s_lshr_b32 s{sT1}, s{sT0}, 2
        s_and_b32 s{sT0}, s{sT0}, s{sT1}
        s_and_b32 s{sRdy}, s{sT0}, 0x11111111
        s_andn2_b32 s{sT0}, s{sRdy}, s{sDone}
        s_cbranch_scc0 L_ip{p}
        L_is{p}:
        s_ff1_i32_b32 s{sU[p]}, s{sT0}
        s_bitset1_b32 s{sDone}, s{sU[p]}
        s_lshl_b32 s{sT0}, s{sU[p]}, 16
        s_add_u32 s{sT1}, s{sT0}, {4*32768}
        s_lshl_b32 s{sT2}, s{sU[p]}, 14
        s_add_u32 s{sT2}, s{sT2}, {O_TAIL}
        buffer_load_dwordx2 {vr(OT[p],2)}, v{oT}, s[8:11], s{sT2} offen {SC}
        buffer_load_dwordx4 {vr(OF[2*p],4)}, v{oM}, s[8:11], s{sT0} offen {SC}
        buffer_load_dwordx4 {vr(OF[2*p+1],4)}, v{oM}, s[8:11], s{sT1} offen {SC}
        """)
    def wreads(p):
        b = p % 2
        a(f"""
        s_mul_i32 s{sT0}, s{sU[p]}, 2560
        s_mul_i32 s{sT1}, s{sU[p]}, 640
        s_add_u32 s{sT1}, s{sT1}, {16*5120}
        v_add_u32 v{oW[0]}, s{sT0}, v{oW[1]}
        v_add_u32 v{oW[2]}, s{sT1}, v{oW[1]}
        """)
        r = [f"ds_read_b64_tr_b16 {vr(WT[b][t],2)}, v{oW[2]} offset:{32*t}" for t in range(5)]
        r += [f"ds_read_b64_tr_b16 {vr(WB[b][h][t]+2*hr,2)}, v{oW[0]} offset:{h*5120 + hr*2560 + 32*t}" for h in range(2) for t in range(5) for hr in range(2)]
        return r
    issue(0)
    a("s_barrier")
    for p in range(1, LA): issue(p)
    for i, x in enumerate(wreads(0)):
        if i in (12, 20): a("s_waitcnt lgkmcnt(4)")
        a(x)
    for p in range(8):
        b = p % 2
        lstamp("os")
        a(f"s_waitcnt vmcnt({3*min(LA-1, 7-p)}) lgkmcnt(0)")
        nx = wreads(p + 1) if p < 7 else []
        mm = [f"v_mfma_f32_16x16x16_bf16 {vr(OC[t],4)}, {vr(WT[b][t],2)}, {vr(OT[p],2)}, {vr(OC[t],4) if p else 0}" for t in range(5)]
        mm += [f"v_mfma_f32_16x16x32_bf16 {vr(OC[t],4)}, {vr(WB[b][h][t],4)}, {vr(OF[2*p+h],4)}, {vr(OC[t],4)}" for h in range(2) for t in range(5)]
        for i, m in enumerate(mm):
            a(m)
            if nx and i in (6, 10): a("s_waitcnt lgkmcnt(4)")
            for _ in range(2):
                if nx: a(nx.pop(0))
        if p + LA < 8: issue(p + LA)
    a("s_nop 3")
    mark(11)
    for t in range(5):
        p = OF[0] + 2 * t
        a(f"v_cvt_pk_bf16_f32 v{p}, v{OC[t]}, v{OC[t]+1}")
        a(f"v_cvt_pk_bf16_f32 v{p+1}, v{OC[t]+2}, v{OC[t]+3}")
        if t % 2 == 1:
            a(f"s_nop 1\nv_permlane16_swap_b32 v{p-2}, v{p}\nv_permlane16_swap_b32 v{p-1}, v{p+1}")
            a(f"buffer_store_dwordx4 {vr(p-2,4)}, v{oS[0]}, s[16:19], 0 offen offset:{64*(t//2)} {OS}")
    a(f"buffer_store_dwordx2 {vr(OF[0]+8,2)}, v{oS[1]}, s[16:19], 0 offen offset:128 {OS}")
    mark(12)
    stamp_end()
    a.label("L_end")
    a("s_endpgm")
    def blk(pat):
        for q in range(5):
            a(f"s_add_u32 m0, s{sT0}, {WL + q*1024}\ns_nop 0\nbuffer_load_dwordx4 v{OW[pat][q]}, s[92:95], s{sT1} offen lds")
    a(f"""
    L_wpf:
    s_mov_b32 s{sT2}, s{sW}
    L_wpl:
    s_mul_i32 s{sT0}, s{sT2}, 5120
    s_mul_i32 s{sT1}, s{sT2}, {40*1280}
    """)
    blk(0)
    a(f"""
    s_add_u32 s{sT2}, s{sT2}, 4
    s_cmp_lt_u32 s{sT2}, 14
    s_cbranch_scc1 L_wpl
    s_branch L_loop
    """)
    a.label("L_bal")
    a("s_setprio 0\ns_branch L_balr")

    a.label("L_fallback")
    for r in (vK, vK1, vV): a(f"v_subrev_u32 v{r[0]}, {12*GROUP}, v{r[0]}")
    a(f"""
    v_mov_b32 v{Q1[0]+1}, 0
    v_mov_b32 v{Q1[1]+1}, 0
    v_mov_b32 v{vM[0]}, 0xff800000
    v_mov_b32 v{vM[1]}, 0xff800000
    s_mov_b32 s{sGo}, 0
    L_fb1:
    buffer_load_dwordx4 {vr(K0[0],4)}, v{vK[0]}, s[8:11], s{sGo} offen {SC}
    buffer_load_dword v{K1[0]}, v{vK1[0]}, s[8:11], s{sGo} offen offset:1024 {SC}
    s_waitcnt vmcnt(0)
    {qk1(0,0)}
    {qk2(0,0)}
    {qk1(1,0)}
    {qk2(1,0)}
    s_add_u32 s{sGo}, s{sGo}, {TILE}
    s_nop 8
    """)
    rowmax(False)
    a(f"s_cmp_lt_u32 s{sGo}, {KV_SET}\ns_cbranch_scc1 L_fb1")
    crossmax()
    for s in range(2):
        for r in range(16): a(f"v_mov_b32 v{O[s]+r}, 0")
    a(f"""
    s_mov_b32 s{sGo}, 0
    L_fb2:
    buffer_load_dwordx4 {vr(K0[0],4)}, v{vK[0]}, s[8:11], s{sGo} offen {SC}
    buffer_load_dword v{K1[0]}, v{vK1[0]}, s[8:11], s{sGo} offen offset:1024 {SC}
    buffer_load_dwordx4 {vr(V[0][0],4)}, v{vV[0]}, s[8:11], s{sGo} offen offset:1280 {SC}
    buffer_load_dwordx4 {vr(V[0][1],4)}, v{vV[0]}, s[8:11], s{sGo} offen offset:{1280+672} {SC}
    s_waitcnt vmcnt(0)
    {qk1(0,0)}
    {qk2(0,0)}
    {qk1(1,0)}
    {qk2(1,0)}
    s_add_u32 s{sGo}, s{sGo}, {TILE}
    s_nop 8
    """)
    for s in range(2):
        for r in range(16): a(f"v_sub_f32 v{S[s][0]+r}, v{S[s][0]+r}, v{vM[s]}")
        for r in range(16): a(f"v_exp_f32 v{S[s][0]+r}, v{S[s][0]+r}")
    a(f"""
    s_nop 1
    {pv(0,0,0)}
    {pv(0,0,1)}
    {pv(1,0,0)}
    {pv(1,0,1)}
    s_cmp_lt_u32 s{sGo}, {KV_SET}
    s_cbranch_scc1 L_fb2
    s_nop 15
    {lb(0)}
    {lb(1)}
    s_branch L_store
    L_codeend:
    """)
    print("nv per phase", nvmax)
    kernel_desc(a, name, 256, 102)

if __name__ == "__main__":
    import sys
    NAME = "concat_heads__mha_block__grouped_kv_mqa__prompt"
    ref = open(f"cdna_kernels/{NAME}.s.ref").read().split("\n")
    hdr = [l for l in ref if l.startswith(";") and "@launch" not in l]
    opts = eval("dict(" + (sys.argv[2] if len(sys.argv) > 2 else "") + ")")
    a = Asm()
    a.raw('.amdgcn_target "amdgcn-amd-amdhsa--gfx950"')
    gen(a, NAME + "_kernel", **opts)
    out = "\n".join(hdr) + f"\n; @launch grid=(256,1,1) block=(512,1,1) lds={LDS}\n" + a.text()
    dst = sys.argv[1] if len(sys.argv) > 1 else f"cdna_kernels/{NAME}.s"
    open(dst, "w").write(out)
```

```python
import struct
from common import Asm, vr, RegAlloc, kernel_header, kernel_desc

def f32bits(x): return struct.unpack("<I", struct.pack("<f", x))[0]
QSCALE = f32bits((20 ** -0.5) * 1.4426950408889634)

TILE = 2624; GROUP = 4 * TILE; KV_SET = 16 * GROUP
KV_OFF = 0
KVS = KV_SET + 128
Q_OFF = KV_OFF + 33 * KVS
Q_HEAD = 64 * 1280 + 128
O_OFF = Q_OFF + 64 * Q_HEAD
O_TAIL = 64 * 32768 + 128
O_BR = O_TAIL + 32 * 16384 + 128
F1 = O_OFF + 2 * O_BR
F3 = F1 + 64 * 2048
WS_USED = F3 + 8 * 2048
ST_OFF = 16 << 20
assert WS_USED <= ST_OFF
LDS = 163840
BIG = 0x100000
SPIN = 1000000
kAx, kAw, kAo, kBx, kBq, kBk, kBv, kBo, kOut, kDbg, kWs = 64, 66, 68, 70, 72, 74, 76, 78, 80, 82, 84
sN = 86

def interleave(a, mf, rd):
    rd = list(rd); n = len(mf)
    for i, m in enumerate(mf):
        a(m)
        k = 2 if len(rd) > (n - i - 3) else 1
        for _ in range(k):
            if rd: a(rd.pop(0))
    for r in rd: a(r)

def gen(a, name, stamp=False, force_fallback=False, SC="sc1", DBG="", AHEAD=1, ROT=True, LPF=0, SL1=0, SL3=8, SL4=1, BAL=11, CPF=False, UPR=2, LA=3, TICK=False, TST=5, SS=None, NR=8, PRE=0, EARLY=True, BT=9, ESP=True, OS='', TLB=0):
    SS = SS or SC
    vL = 1
    T = list(range(2, 10))
    vF = 10
    BASE = 12
    sW, sI, sT0, sT1, sT2, sT3, sC = 20, 21, 23, 24, 25, 26, 27
    sW4, sHi, sSpin, sFl, sM0, sM1 = 22, 38, 43, 39, 44, 45
    nvmax = []
    uid = [0]
    def mark(i):
        if "rt" in DBG:
            a(f"s_memrealtime s[88:89]\ns_waitcnt lgkmcnt(0)\ns_mov_b32 s{50+i}, s88")
            return
        if stamp: a(f"s_memtime s[88:89]\ns_waitcnt lgkmcnt(0)\ns_sub_u32 s{50+i}, s88, s48")
    def lstamp(tag):
        if stamp and tag in DBG:
            a(f"s_memtime s[88:89]\ns_waitcnt lgkmcnt(0)\ns_sub_u32 s88, s88, s48\ns_mov_b32 m0, s63\ns_add_u32 s63, s63, 1\ns_min_u32 s63, s63, 15\nv_writelane_b32 v255, s88, m0")
    def stamp_end():
        if "rt" in DBG:
            a(f"s_cmp_lg_u32 s{sW}, 0\ns_cbranch_scc1 L_end\ns_waitcnt vmcnt(0)\ns_memrealtime s[88:89]\ns_waitcnt lgkmcnt(0)\ns_mov_b32 s60, s88\ns_mov_b32 s63, s46\nv_mov_b32 v2, 0")
            for i in range(14):
                a(f"s_sub_u32 s88, s{50+i}, s{sN}\ns_add_u32 s88, s88, 1000\nv_writelane_b32 v2, s88, {i}")
            a(f"v_lshlrev_b32 v3, 2, v{vL}\ns_mov_b64 exec, 0x3fff\nglobal_atomic_umax v3, v2, s[{kDbg}:{kDbg+1}] offset:8 sc1")
            return
        if not stamp: return
        Z = 64
        a(f"""
        s_waitcnt vmcnt(0) lgkmcnt(0)
        s_memrealtime s[90:91]
        s_memtime s[88:89]
        s_waitcnt lgkmcnt(0)
        s_sub_u32 s88, s88, s48
        v_mov_b32 v{Z}, s46
        v_mov_b32 v{Z+1}, s90
        v_mov_b32 v{Z+2}, s88
        """)
        for i in range(13): a(f"v_mov_b32 v{Z+3+i}, s{50+i}")
        a(f"""
        s_lshl_b32 s88, s2, 3
        s_add_u32 s88, s88, s{sW}
        s_lshl_b32 s88, s88, 6
        s_add_u32 s88, s88, {ST_OFF}
        v_mov_b32 v{T[0]}, s88
        s_add_u32 s88, s88, 262144
        v_lshl_add_u32 v{T[1]}, v{vL}, 2, s88
        s_mov_b64 exec, 0xffff
        global_store_dword v{T[1]}, v255, s[{kWs}:{kWs+1}]
        s_mov_b64 exec, 1
        """)
        for i in range(4): a(f"global_store_dwordx4 v{T[0]}, {vr(Z+4*i,4)}, s[{kWs}:{kWs+1}] offset:{16*i}")
    def srd(d, base, off, size):
        a(f"""
        s_add_u32 s{d}, s{base}, {off}
        s_addc_u32 s{d+1}, s{base+1}, 0
        s_mov_b32 s{d+2}, {size}
        s_mov_b32 s{d+3}, 0x00020000
        """)
    def divc(vq, vrem, vn, d, mul, sh):
        a(f"v_mul_u32_u24 v{vq}, {mul}, v{vn}")
        a(f"v_lshrrev_b32 v{vq}, {sh}, v{vq}")
        a(f"v_mul_u32_u24 v{vrem}, {d}, v{vq}")
        a(f"v_sub_u32 v{vrem}, v{vn}, v{vrem}")
    def get_nonce():
        uid[0] += 1; u = uid[0]
        a(f"""
        v_mov_b32 v{T[0]}, 0
        s_mov_b32 s{sSpin}, {SPIN}
        L_gn{u}:
        global_load_dwordx2 {vr(vF,2)}, v{T[0]}, s[{kDbg}:{kDbg+1}] sc1
        s_waitcnt vmcnt(0)
        v_readfirstlane_b32 s{sN}, v{vF}
        v_readfirstlane_b32 s{sN+1}, v{vF+1}
        s_sub_u32 s{sSpin}, s{sSpin}, 1
        s_cbranch_scc1 L_gd{u}
        s_cmp_eq_u32 s{sN}, 0
        s_cbranch_scc1 L_gn{u}
        L_gd{u}:
        """)
    def put_flag(flag_sgpr, shift, nr=8):
        a(f"""
        v_lshl_add_u32 v{T[0]}, v{vL}, {shift}, s{flag_sgpr}
        v_mov_b32 v{T[2]}, s{sN}
        v_mov_b32 v{T[3]}, s{sN+1}
        s_mov_b32 exec_lo, {(1 << min(nr, 32)) - 1}
        s_mov_b32 exec_hi, {-1 if nr == 64 else 0}
        global_store_dwordx2 v{T[0]}, {vr(T[2],2)}, s[{kWs}:{kWs+1}] sc1
        s_mov_b64 exec, -1
        """)

    kernel_header(a, name)
    sMt, sGrp, sJ4, sLd, sSt, sHS, sScale = 28, 29, 30, 31, 32, 33, 34
    sOx, sOw, sOe, sM, sLd64, sWm, sWn, sRot, sTS, sCT = 35, 36, 37, 40, 41, 42, 92, 93, 94, 95
    a(f"""
    s_getpc_b64 s[96:97]
    s_cmp_ge_u32 s2, 256
    s_cbranch_scc1 L_end
    s_load_dwordx16 s[64:79], s[0:1], 0
    s_load_dwordx4 s[80:83], s[0:1], 64
    s_load_dwordx2 s[84:85], s[0:1], 80
    s_memrealtime s[46:47]
    {"s_memtime s[48:49]" if stamp else ""}
    {"s_mov_b32 s63, 0" if stamp else ""}
    v_lshrrev_b32 v{T[0]}, 6, v0
    v_and_b32 v{vL}, 63, v0
    s_getreg_b32 s{sT1}, hwreg(HW_REG_XCC_ID, 0, 3)
    v_readfirstlane_b32 s{sW}, v{T[0]}
    """)
    if TICK:
        a.c("logical workgroup id = (die, ticket on that die's counter); a full die spills to the next counter")
        a(f"""
        v_mov_b32 v{T[2]}, {LDS - 16}
        s_cmp_lg_u32 s{sW}, 0
        s_cbranch_scc1 L_tk2
        v_mov_b32 v{T[1]}, 1
        s_mov_b32 s{sT3}, 16
        s_mov_b64 exec, 1
        s_waitcnt lgkmcnt(0)
        L_tk:
        s_lshl_b32 s{sT2}, s{sT1}, {TST}
        v_mov_b32 v{T[0]}, s{sT2}
        global_atomic_add v{T[3]}, v{T[0]}, v{T[1]}, s[{kDbg}:{kDbg+1}] offset:16 sc0 sc1
        s_waitcnt vmcnt(0)
        v_readfirstlane_b32 s{sT2}, v{T[3]}
        s_sub_u32 s{sT3}, s{sT3}, 1
        s_cbranch_scc1 L_tk1
        s_cmp_lt_u32 s{sT2}, 32
        s_cbranch_scc1 L_tk1
        s_add_u32 s{sT1}, s{sT1}, 1
        s_and_b32 s{sT1}, s{sT1}, 7
        s_branch L_tk
        L_tk1:
        s_lshl_b32 s{sT2}, s{sT2}, 3
        s_add_u32 s{sT2}, s{sT2}, s{sT1}
        v_mov_b32 v{T[3]}, s{sT2}
        ds_write_b32 v{T[2]}, v{T[3]}
        s_mov_b64 exec, -1
        s_waitcnt lgkmcnt(0)
        L_tk2:
        s_barrier
        ds_read_b32 v{T[3]}, v{T[2]}
        s_waitcnt lgkmcnt(0)
        v_readfirstlane_b32 s2, v{T[3]}
        s_nop 3
        s_and_b32 s2, s2, 255
        """)
        mark(10)
    a(f"""
    s_and_b32 s{sT0}, s2, 7
    s_lshr_b32 s{sT1}, s2, 3
    s_lshr_b32 s{sGrp}, s{sT0}, 1
    s_and_b32 s{sMt}, s{sT0}, 1
    s_lshl_b32 s{sMt}, s{sMt}, 3
    s_and_b32 s{sT2}, s{sT1}, 7
    s_add_u32 s{sMt}, s{sMt}, s{sT2}
    s_lshr_b32 s{sJ4}, s{sT1}, 3
    s_and_b32 s{sW4}, s{sW}, 3
    s_lshr_b32 s{sHi}, s{sW}, 2
    s_cmp_ge_u32 s{sW}, 4
    s_cbranch_scc0 L_comp
    """)
    ST = 39424; NST = 4; WOFF = 16384; EOFF = 36864
    IMG = 2 * ST; IH = 5376
    R = RegAlloc(BASE)
    bX = [R.alloc(f"bX{k}") for k in range(2)]; bW = R.alloc("bW"); bE = R.alloc("bE"); bXe = [R.alloc(f"bXe{k}") for k in range(2)]
    aX = [R.alloc(f"aX{k}") for k in range(2)]; aW = R.alloc("aW"); aE = R.alloc("aE"); aXe = [R.alloc(f"aXe{k}") for k in range(2)]
    A0 = [R.alloc(f"A0{i}") for i in range(5)]; A1 = [R.alloc(f"A1{i}") for i in range(5)]
    assert A1[1] % 2 == 0
    AE = [R.alloc(f"AE{i}") for i in range(2)]
    FX = [[R.alloc(f"FX{b}{i}", 4, 4) for i in range(4)] for b in range(2)]
    FW = [[R.alloc(f"FW{b}{i}", 4, 4) for i in range(5)] for b in range(2)]
    FXe = [R.alloc(f"FXe{b}", 4, 4) for b in range(2)]
    FE = [[R.alloc(f"FE{b}{i}", 4, 4) for i in range(2)] for b in range(2)]
    ACC = [[R.alloc(f"C{m}{n}", 4, 4) for n in range(5)] for m in range(4)]
    ACE = [R.alloc(f"CE{n}", 4, 4) for n in range(2)]
    SO = [R.alloc(f"SO{q}") for q in range(6)]
    nvmax.append(R.n)
    LX = [FX[0][0] + i for i in range(4)]; LW = [FX[0][1] + i for i in range(5)]; LE = FX[0][3]
    a(f"""
    s_setprio 2
    s_cmp_eq_u32 s{sGrp}, 3
    s_mov_b32 s{sLd}, 3840
    s_cmov_b32 s{sLd}, 1280
    s_mul_i32 s{sRot}, s{sJ4}, 3
    s_add_u32 s{sRot}, s{sRot}, s{sT2}
    s_cmp_ge_u32 s{sRot}, 10
    s_cselect_b32 s{sT0}, 10, 0
    s_sub_u32 s{sRot}, s{sRot}, s{sT0}
    {"" if ROT is True else f"s_mov_b32 s{sRot}, 0" if not ROT else f"s_and_b32 s{sRot}, s{sRot}, {ROT[0]}"+chr(10)+f"s_mul_i32 s{sRot}, s{sRot}, {ROT[1]}"}
    v_lshrrev_b32 v{T[0]}, 3, v{vL}
    s_lshl_b32 s{sT0}, s{sW4}, 5
    v_add_u32 v{T[0]}, s{sT0}, v{T[0]}
    v_mul_u32_u24 v{T[0]}, 1280, v{T[0]}
    v_and_b32 v{T[1]}, 7, v{vL}
    v_lshrrev_b32 v{T[2]}, 4, v{vL}
    v_xor_b32 v{T[1]}, v{T[1]}, v{T[2]}
    v_xor_b32 v{T[2]}, 4, v{T[1]}
    v_lshl_add_u32 v{LX[0]}, v{T[1]}, 4, v{T[0]}
    v_lshl_add_u32 v{LX[1]}, v{T[2]}, 4, v{T[0]}
    v_add_u32 v{LX[1]}, 10240, v{LX[1]}
    v_add_u32 v{LX[2]}, 20480, v{LX[0]}
    v_add_u32 v{LX[3]}, 20480, v{LX[1]}
    s_lshl_b32 s{sLd64}, s{sLd}, 6
    s_lshr_b32 s{sT0}, s{sW4}, 1
    s_mul_i32 s{sT0}, s{sT0}, 160
    s_and_b32 s{sT1}, s{sW4}, 1
    s_mul_i32 s{sT1}, s{sT1}, s{sLd}
    s_lshl_b32 s{sT1}, s{sT1}, 5
    s_add_u32 s{sM}, s{sT0}, s{sT1}
    v_mov_b32 v{T[7]}, s{sLd}
    """)
    for q in range(5):
        a(f"v_add_u32 v{T[0]}, {q*64}, v{vL}")
        divc(T[1], T[2], T[0], 10, 6554, 16)
        a(f"""
        v_lshl_add_u32 v{T[3]}, v{T[2]}, 4, s{sM}
        v_and_b32 v{T[4]}, 3, v{T[1]}
        v_and_b32 v{T[5]}, 12, v{T[1]}
        v_lshl_add_u32 v{T[4]}, v{T[5]}, 1, v{T[4]}
        v_lshrrev_b32 v{T[5]}, 4, v{T[1]}
        v_lshl_add_u32 v{T[4]}, v{T[5]}, 2, v{T[4]}
        v_mad_u32_u24 v{LW[q]}, v{T[4]}, v{T[7]}, v{T[3]}
        """)
    a(f"""
    s_mul_i32 s{sT0}, s{sW4}, 640
    v_lshlrev_b32 v{LE}, 4, v{vL}
    v_add_u32 v{LE}, s{sT0}, v{LE}
    s_lshl_b32 s{sOx}, s{sRot}, 7
    s_mul_i32 s{sOw}, s{sRot}, s{sLd64}
    s_mul_i32 s{sOe}, s{sRot}, 2560
    s_mul_i32 s{sT0}, s{sMt}, 163840
    s_mov_b32 s10, 163840
    s_mov_b32 s11, 0x00020000
    s_mov_b32 s15, 0x00020000
    s_mov_b32 s18, 25600
    s_mov_b32 s19, 0x00020000
    s_cmp_eq_u32 s{sGrp}, 3
    s_cselect_b32 s{sT1}, 0, s{sGrp}
    s_mov_b32 s14, {640*3840}
    s_cmov_b32 s14, {640*1280}
    s_waitcnt lgkmcnt(0)
    s_cselect_b32 s8, s{kBx}, s{kAx}
    s_cselect_b32 s9, s{kBx+1}, s{kAx+1}
    s_cselect_b32 s12, s{kBq}, s{kAw}
    s_cselect_b32 s13, s{kBq+1}, s{kAw+1}
    s_add_u32 s8, s8, s{sT0}
    s_addc_u32 s9, s9, 0
    s_mul_i32 s{sT1}, s{sT1}, 1280
    s_mul_i32 s{sT0}, s{sJ4}, 320
    s_add_u32 s{sT0}, s{sT0}, s{sT1}
    s_add_u32 s12, s12, s{sT0}
    s_addc_u32 s13, s13, 0
    s_sub_u32 s14, s14, s{sT0}
    s_cmp_lt_u32 s{sJ4}, 2
    s_cselect_b32 s16, s{kBk}, s{kBv}
    s_cselect_b32 s17, s{kBk+1}, s{kBv+1}
    s_lshl_b32 s{sT0}, s{sW4}, 12
    s_mul_i32 s{sT1}, s{sW4}, 5120
    s_add_u32 s{sT1}, s{sT1}, {WOFF}
    s_mul_i32 s{sT2}, s{sW4}, 640
    s_add_u32 s{sT2}, s{sT2}, {EOFF}
    s_mov_b32 s{sSt}, 0
    s_mov_b32 s{sC}, 0
    s_cmp_eq_u32 s{sGrp}, 3
    s_cbranch_scc1 L_llB
    """)
    def issue(ext):
        for q in range(4):
            a(f"s_add_u32 m0, s{sT0}, {q*1024}\ns_nop 0\nbuffer_load_dwordx4 v{LX[q]}, s[8:11], s{sOx} offen lds")
        for q in range(5):
            a(f"s_add_u32 m0, s{sT1}, {q*1024}\ns_nop 0\nbuffer_load_dwordx4 v{LW[q]}, s[12:15], s{sOw} offen lds")
        if ext:
            a(f"""
            s_mov_b32 m0, s{sT2}
            s_mov_b32 exec_hi, 0xff
            buffer_load_dwordx4 v{LE}, s[16:19], s{sOe} offen lds
            s_mov_b32 exec_hi, -1
            s_add_u32 s{sOe}, s{sOe}, 2560
            """)
        a(f"""
        s_add_u32 s{sOx}, s{sOx}, 128
        s_add_u32 s{sOw}, s{sOw}, s{sLd64}
        s_cmp_eq_u32 s{sOx}, 1280
        s_cselect_b32 s{sOx}, 0, s{sOx}
        s_cselect_b32 s{sOw}, 0, s{sOw}
        s_cselect_b32 s{sOe}, 0, s{sOe}
        s_add_u32 s{sSt}, s{sSt}, 1
        s_and_b32 s{sSt}, s{sSt}, 3
        s_mov_b32 s{sM}, {ST}
        s_cmp_eq_u32 s{sSt}, 0
        s_cmov_b32 s{sM}, {(-3*ST) & 0xffffffff}
        s_add_u32 s{sT0}, s{sT0}, s{sM}
        s_add_u32 s{sT1}, s{sT1}, s{sM}
        s_add_u32 s{sT2}, s{sT2}, s{sM}
        """)
    for ext in (False, True):
        tag = "B" if ext else "A"
        n = 10 if ext else 9
        a.label(f"L_ll{tag}")
        issue(ext)
        a(f"""
        s_add_u32 s{sC}, s{sC}, 1
        s_cmp_lt_u32 s{sC}, {AHEAD+1}
        s_cbranch_scc1 L_ll{tag}
        s_waitcnt vmcnt({AHEAD*n})
        s_barrier
        s_cmp_lt_u32 s{sC}, 10
        s_cbranch_scc1 L_ll{tag}
        """)
        for c in range(AHEAD):
            a(f"s_waitcnt vmcnt({(AHEAD-1-c)*n})\ns_barrier")
        if not ext: a("s_branch L_ldone")
    a.label("L_ldone")
    a.c("loader waves: ones rows of the V image (2 heads per wave x 16 blocks), then common store setup")
    a(f"""
    s_cmp_lg_u32 s{sGrp}, 2
    s_cbranch_scc1 L_stset
    v_and_b32 v{T[0]}, 31, v{vL}
    v_mul_u32_u24 v{T[0]}, 336, v{T[0]}
    s_mul_i32 s{sT0}, s{sW4}, {2*IH}
    s_add_u32 s{sT0}, s{sT0}, {IMG + 320}
    v_add_u32 v{T[0]}, s{sT0}, v{T[0]}
    v_mov_b32 v{T[2]}, 0x3f803f80
    v_mov_b32 v{T[3]}, 0x3f803f80
    v_mov_b32 v{T[4]}, 0x3f803f80
    v_mov_b32 v{T[5]}, 0x3f803f80
    ds_write_b128 v{T[0]}, {vr(T[2],4)}
    s_branch L_stset
    """)
    assert T[2] % 2 == 0

    a.label("L_comp")
    if CPF:
        a(f"""
        v_lshlrev_b32 v{T[0]}, 7, v0
        v_min_u32 v{T[0]}, L_codeend - {name} - 8, v{T[0]}
        global_load_dword v252, v{T[0]}, s[96:97]
        """)
    a(f"""
    s_lshr_b32 s{sWm}, s{sW}, 1
    s_and_b32 s{sWn}, s{sW}, 1
    v_and_b32 v{T[0]}, 15, v{vL}
    v_lshrrev_b32 v{T[1]}, 4, v{vL}
    v_lshrrev_b32 v{T[2]}, 1, v{T[0]}
    v_xor_b32 v{T[2]}, v{T[2]}, v{T[1]}
    v_xor_b32 v{T[3]}, 4, v{T[2]}
    v_lshlrev_b32 v{T[4]}, 7, v{T[0]}
    v_lshl_add_u32 v{T[2]}, v{T[2]}, 4, v{T[4]}
    v_lshl_add_u32 v{T[3]}, v{T[3]}, 4, v{T[4]}
    s_lshl_b32 s{sT0}, s{sWm}, 13
    v_add_u32 v{bX[0]}, s{sT0}, v{T[2]}
    v_add_u32 v{bX[1]}, s{sT0}, v{T[3]}
    s_and_b32 s{sM}, s{sJ4}, 1
    s_lshl_b32 s{sM}, s{sM}, 1
    s_add_u32 s{sM}, s{sM}, s{sWn}
    s_lshl_b32 s{sT2}, s{sM}, 11
    v_add_u32 v{bXe[0]}, s{sT2}, v{bX[0]}
    v_add_u32 v{bXe[1]}, s{sT2}, v{bX[1]}
    v_lshrrev_b32 v{T[2]}, 2, v{vL}
    v_mul_u32_u24 v{T[2]}, 40, v{vL}
    v_and_b32 v{T[3]}, 3, v{vL}
    s_mul_i32 s{sT0}, s{sWn}, 10240
    v_add_u32 v{bW}, s{sT0}, v{T[2]}
    v_lshrrev_b32 v{T[2]}, 2, v{T[0]}
    v_lshl_add_u32 v{T[2]}, v{T[1]}, 3, v{T[2]}
    v_mul_u32_u24 v{T[2]}, 40, v{T[2]}
    v_lshl_add_u32 v{bE}, v{T[3]}, 3, v{T[2]}
    s_waitcnt lgkmcnt(0)
    s_add_u32 s{sT1}, s2, s{sW}
    s_cmp_lg_u32 s{sT1}, 0
    s_cbranch_scc1 L_nononce
    s_or_b32 s{sT1}, s46, 1
    v_mov_b32 v{vF}, s{sT1}
    v_mov_b32 v{vF+1}, s47
    v_mov_b32 v{T[2]}, 0
    s_mov_b64 exec, 1
    global_store_dwordx2 v{T[2]}, {vr(vF,2)}, s[{kDbg}:{kDbg+1}] sc1
    s_mov_b64 exec, -1
    L_nononce:
    """)
    if TLB:
        a.c("touch one unused line per address-translation granule of the buffers used later (scalar path)")
        gaps = [i * KVS + KV_SET for i in range(0, 33, TLB)] + [Q_OFF + (i + 1) * Q_HEAD - 128 for i in range(0, 64, 2 * TLB)] + [O_OFF - 128]
        for br in range(2): gaps += [O_OFF + br * O_BR + O_TAIL - 128, O_OFF + (br + 1) * O_BR - 128]
        gaps.append(WS_USED)
        tl = [(kWs, g) for g in gaps] + [(kOut, o) for o in range(0, 2048 * 2560, 1 << 20)] + [(kOut, 2048 * 2560 - 64), (kAo, 0), (kAo, 819136), (kBo, 0), (kBo, 819136), (kDbg, 128)]
        for w in range(4):
            a(f"s_cmp_lg_u32 s{sW}, {w}\ns_cbranch_scc1 L_tl{w}")
            for base, off in tl[w::4]:
                a(f"s_mov_b32 s98, {off}\ns_load_dword s99, s[{base}:{base+1}], s98")
            a.label(f"L_tl{w}")
    if LPF:
        a.c("linear touch of this wave's 1/1024 share of both Wo matrices")
        a(f"""
        s_lshl_b32 s{sT0}, s2, 2
        s_add_u32 s{sT0}, s{sT0}, s{sW}
        s_mul_i32 s{sT3}, s{sT0}, 800
        v_min_u32 v{T[2]}, 6, v{vL}
        v_lshl_add_u32 v{T[3]}, v{T[2]}, 7, s{sT3}
        global_load_dword v250, v{T[3]}, s[{kAo}:{kAo+1}]
        global_load_dword v251, v{T[3]}, s[{kBo}:{kBo+1}]
        """)
    for m in range(4):
        for n in range(5):
            for r in (0, 2): a(f"v_pk_mov_b32 {vr(ACC[m][n]+r,2)}, 0, 0")
    for n in range(2):
        for r in range(4): a(f"v_mov_b32 v{ACE[n]+r}, 0")
    a(f"""
    s_cmp_eq_u32 s{sGrp}, 1
    s_mov_b32 s{sScale}, 0x{QSCALE:x}
    s_cmov_b32 s{sScale}, 1.0
    v_mov_b32 v{A1[1]}, s{sScale}
    v_mov_b32 v{A1[2]}, s{sScale}
    s_mul_i32 s{sT0}, s{sMt}, {GROUP}
    s_add_u32 s{sT0}, s{sT0}, {KV_OFF + 32*KVS}
    """)
    srd(12, kWs, f"s{sT0}", GROUP)
    a(f"""
    s_mov_b32 s{sSt}, 0
    s_mov_b32 s{sC}, 0
    s_cmp_eq_u32 s{sGrp}, 2
    s_cbranch_scc1 L_F
    """)
    def addr_T():
        a(f"""
        s_mul_i32 s{sT0}, s{sWn}, {4*IH}
        s_mul_i32 s{sT1}, s{sWm}, 2560
        s_add_u32 s{sT0}, s{sT0}, s{sT1}
        s_add_u32 s{sT0}, s{sT0}, {IMG}
        v_mul_u32_u24 v{T[3]}, {IH}, v{T[1]}
        v_add_u32 v{T[3]}, s{sT0}, v{T[3]}
        v_lshl_add_u32 v{A0[0]}, v{T[0]}, 4, v{T[3]}
        v_lshl_add_u32 v{A0[1]}, v{T[0]}, 3, v{T[3]}
        """)
    def addr_F():
        a(f"""
        s_mul_i32 s{sT0}, s{sWn}, {4*IH}
        s_mul_i32 s{sT1}, s{sWm}, 2688
        s_add_u32 s{sT0}, s{sT0}, s{sT1}
        s_add_u32 s{sT0}, s{sT0}, {IMG}
        v_lshrrev_b32 v{T[5]}, 1, v{T[1]}
        v_mul_u32_u24 v{T[5]}, 336, v{T[5]}
        v_and_b32 v{T[6]}, 1, v{T[1]}
        v_lshl_add_u32 v{T[5]}, v{T[6]}, 3, v{T[5]}
        v_lshrrev_b32 v{T[3]}, 2, v{T[0]}
        v_mul_u32_u24 v{T[3]}, {IH}, v{T[3]}
        v_and_b32 v{T[4]}, 3, v{T[0]}
        v_lshl_add_u32 v{T[3]}, v{T[4]}, 4, v{T[3]}
        v_add3_u32 v{A0[0]}, v{T[3]}, v{T[5]}, s{sT0}
        """)
    def addr_E(kind):
        a(f"""
        s_lshl_b32 s{sT0}, s{sWm}, 1
        s_lshr_b32 s{sT1}, s{sM}, 1
        s_add_u32 s{sT0}, s{sT0}, s{sT1}
        s_mul_i32 s{sT0}, s{sT0}, {TILE}
        s_and_b32 s{sT1}, s{sM}, 1
        v_and_b32 v{T[4]}, 1, v{T[1]}
        v_lshrrev_b32 v{T[5]}, 1, v{T[1]}
        """)
        if kind == "K":
            a(f"""
            s_lshl_b32 s{sT2}, s{sT1}, 8
            s_add_u32 s{sT2}, s{sT2}, s{sT0}
            v_lshlrev_b32 v{T[6]}, 9, v{T[4]}
            v_lshl_add_u32 v{T[6]}, v{T[5]}, 3, v{T[6]}
            v_lshl_add_u32 v{T[6]}, v{T[0]}, 4, v{T[6]}
            v_add_u32 v{AE[0]}, s{sT2}, v{T[6]}
            s_lshl_b32 s{sT2}, s{sT1}, 7
            s_add_u32 s{sT2}, s{sT2}, s{sT0}
            s_add_u32 s{sT2}, s{sT2}, 1024
            v_lshlrev_b32 v{T[6]}, 20, v{T[1]}
            v_lshl_add_u32 v{T[6]}, v{T[0]}, 3, v{T[6]}
            v_add_u32 v{AE[1]}, s{sT2}, v{T[6]}
            """)
        else:
            a(f"""
            s_mul_i32 s{sT2}, s{sT1}, 672
            s_add_u32 s{sT2}, s{sT2}, s{sT0}
            s_add_u32 s{sT2}, s{sT2}, 1280
            v_mul_u32_u24 v{T[6]}, 336, v{T[5]}
            v_lshl_add_u32 v{T[6]}, v{T[4]}, 3, v{T[6]}
            v_lshl_add_u32 v{T[6]}, v{T[0]}, 4, v{T[6]}
            v_add_u32 v{AE[0]}, s{sT2}, v{T[6]}
            v_cmp_lt_u32 vcc, 4, v{T[0]}
            v_add_u32 v{T[6]}, 256, v{AE[0]}
            v_mov_b32 v{T[7]}, {BIG}
            v_cndmask_b32 v{AE[1]}, v{T[6]}, v{T[7]}, vcc
            """)
    def reads(b, ks, ext):
        r = [f"ds_read_b128 {vr(FX[b][0],4)}, v{aX[ks]}"]
        for tn in range(5):
            for hr in range(2):
                r.append(f"ds_read_b64_tr_b16 {vr(FW[b][tn]+2*hr,2)}, v{aW} offset:{WOFF + ks*5120 + hr*2560 + tn*8}")
        for tm in range(1, 4):
            r.append(f"ds_read_b128 {vr(FX[b][tm],4)}, v{aX[ks]} offset:{tm*2048}")
        if ext:
            r.append(f"ds_read_b128 {vr(FXe[b],4)}, v{aXe[ks]}")
            for tn in range(2):
                for hr in range(2):
                    r.append(f"ds_read_b64_tr_b16 {vr(FE[b][tn]+2*hr,2)}, v{aE} offset:{EOFF + ks*1280 + hr*160 + tn*32}")
        return r
    def mf(d, x, w, orient):
        A_, B_ = (w, x) if orient == "T" else (x, w)
        return f"v_mfma_f32_16x16x32_bf16 {vr(d,4)}, {vr(A_,4)}, {vr(B_,4)}, {vr(d,4)}"
    def mfmas(b, orient, ext):
        m = [mf(ACC[tm][tn], FX[b][tm], FW[b][tn], orient) for tm in range(4) for tn in range(5)]
        if ext: m += [mf(ACE[tn], FXe[b], FE[b][tn], "T" if ext == "K" else "F") for tn in range(2)]
        return m
    def setaddr(ext):
        a(f"v_add_u32 v{aX[0]}, s{sSt}, v{bX[0]}")
        a(f"v_add_u32 v{aW}, s{sSt}, v{bW}")
        a(f"v_add_u32 v{aX[1]}, s{sSt}, v{bX[1]}")
        if ext:
            a(f"v_add_u32 v{aXe[0]}, s{sSt}, v{bXe[0]}")
            a(f"v_add_u32 v{aXe[1]}, s{sSt}, v{bXe[1]}")
            a(f"v_add_u32 v{aE}, s{sSt}, v{bE}")
        a(f"s_add_u32 s{sSt}, s{sSt}, {ST}\ns_cmp_eq_u32 s{sSt}, {ST*NST}\ns_cselect_b32 s{sSt}, 0, s{sSt}")
    def variant(tag, orient, ext):
        L = f"L_{tag}"
        setaddr(ext)
        mark(0)
        a("s_barrier")
        mark(1)
        for r in reads(0, 0, ext): a(r)
        a(f"s_branch {L}_mid")
        a.raw(".p2align 6")
        a.label(f"{L}_loop")
        a("s_barrier")
        lstamp("gs")
        interleave(a, mfmas(1, orient, ext), reads(0, 0, ext))
        a.label(f"{L}_mid")
        a("s_waitcnt lgkmcnt(0)")
        interleave(a, mfmas(0, orient, ext), reads(1, 1, ext))
        setaddr(ext)
        a(f"s_add_u32 s{sC}, s{sC}, 1\ns_cmp_lt_u32 s{sC}, 10\ns_waitcnt lgkmcnt(0)\ns_cbranch_scc1 {L}_loop")
        for m in mfmas(1, orient, ext): a(m)
        mark(2)
        P = FX[0][0]; k = 0
        for tm in range(4):
            for tn in range(5):
                c = ACC[tm][tn]; p = P + 2 * (k % 8); k += 1
                if orient == "T":
                    for r in (0, 2): a(f"v_pk_mul_f32 {vr(c+r,2)}, {vr(c+r,2)}, {vr(A1[1],2)}")
                a(f"v_cvt_pk_bf16_f32 v{c}, v{c}, v{c+1}")
                a(f"v_cvt_pk_bf16_f32 v{c+1}, v{c+2}, v{c+3}")
                if orient == "T":
                    if tn < 4: a(f"ds_write_b64 v{A0[0]}, {vr(c,2)} offset:{(tm>>1)*1280 + (tm&1)*256 + (tn&1)*512 + (tn>>1)*8}")
                    else: a(f"ds_write_b64 v{A0[1]}, {vr(c,2)} offset:{(tm>>1)*1280 + 1024 + (tm&1)*128}")
                else:
                    a(f"ds_write_b64 v{A0[0]}, {vr(c,2)} offset:{tm*672 + tn*64}")
        if ext:
            if ext == "V":
                a(f"v_and_b32 v{T[0]}, 15, v{vL}\nv_cmp_eq_u32 vcc, 4, v{T[0]}\nv_mov_b32 v{T[6]}, 0x3f803f80")
            for tn in range(2):
                c = ACE[tn]
                a(f"v_cvt_pk_bf16_f32 v{c}, v{c}, v{c+1}")
                a(f"v_cvt_pk_bf16_f32 v{c+1}, v{c+2}, v{c+3}")
                if ext == "V" and tn == 1:
                    a(f"v_cndmask_b32 v{c}, v{c}, v{T[6]}, vcc\nv_cndmask_b32 v{c+1}, v{c+1}, v{T[6]}, vcc")
                a(f"buffer_store_dwordx2 {vr(c,2)}, v{AE[tn]}, s[12:15], 0 offen {SS}")
        a("s_branch L_stset")
    def store_setup():
        a(f"""
        s_cmp_eq_u32 s{sGrp}, 2
        s_cselect_b32 s{sCT}, 1, 0
        s_cselect_b32 s{sT3}, 1280, 0
        s_cmp_eq_u32 s{sGrp}, 1
        s_cselect_b32 s{sT0}, 1, s{sCT}
        s_cmp_eq_u32 s{sT0}, 1
        s_mov_b32 s{sHS}, {Q_HEAD}
        s_cmov_b32 s{sHS}, {KVS}
        s_mov_b32 s{sTS}, 1280
        s_cmov_b32 s{sTS}, {TILE}
        s_mov_b32 s{sT0}, {Q_OFF}
        s_cmov_b32 s{sT0}, {KV_OFF}
        s_add_u32 s{sT0}, s{sT0}, s{sT3}
        s_cmp_eq_u32 s{sGrp}, 3
        s_cselect_b32 s{sT1}, 32, 0
        s_lshl_b32 s{sT2}, s{sJ4}, 3
        s_add_u32 s{sT1}, s{sT1}, s{sT2}
        s_add_u32 s{sT1}, s{sT1}, s{sW}
        s_mul_i32 s{sT1}, s{sT1}, s{sHS}
        s_add_u32 s{sT0}, s{sT0}, s{sT1}
        s_lshl_b32 s{sT1}, s{sTS}, 2
        s_mul_i32 s{sT2}, s{sT1}, s{sMt}
        s_add_u32 s{sT0}, s{sT0}, s{sT2}
        s_sub_u32 s{sT1}, s{sT1}, s{sT3}
        """)
        srd(8, kWs, f"s{sT0}", f"s{sT1}")
        a(f"""
        s_cmp_eq_u32 s{sCT}, 1
        s_mov_b32 s{sCT}, 80
        s_cmov_b32 s{sCT}, 84
        s_mov_b32 s{sT0}, 820
        s_cmov_b32 s{sT0}, 781
        s_lshl_b32 s{sT2}, s{sCT}, 4
        s_sub_u32 s{sT2}, s{sTS}, s{sT2}
        """)
        for q in range(6):
            a(f"""
            v_add_u32 v{T[0]}, {64*q}, v{vL}
            v_mul_u32_u24 v{T[1]}, s{sT0}, v{T[0]}
            v_lshrrev_b32 v{T[1]}, 16, v{T[1]}
            v_lshlrev_b32 v{T[0]}, 4, v{T[0]}
            v_mad_u32_u24 v{SO[q]}, v{T[1]}, s{sT2}, v{T[0]}
            """)
        a(f"""
        s_lshl_b32 s{sFl}, s{sGrp}, 2
        s_add_u32 s{sFl}, s{sFl}, s{sJ4}
        s_lshl_b32 s{sFl}, s{sFl}, 4
        s_add_u32 s{sFl}, s{sFl}, s{sMt}
        s_lshl_b32 s{sFl}, s{sFl}, 3
        s_add_u32 s{sFl}, s{sFl}, {F1}
        """)
    def pre():
        a(f"v_and_b32 v{T[0]}, 15, v{vL}\nv_lshrrev_b32 v{T[1]}, 4, v{vL}")
    pre(); addr_T()
    a(f"s_cmp_eq_u32 s{sGrp}, 3\ns_cbranch_scc1 L_B")
    variant("T", "T", None)
    a.label("L_B")
    a(f"s_cmp_lt_u32 s{sJ4}, 2\ns_cbranch_scc0 L_BV")
    addr_E("K"); variant("TK", "T", "K")
    a.label("L_BV")
    addr_E("V"); variant("TV", "T", "V")
    a.label("L_F")
    pre(); addr_F(); variant("F", "F", None)
    a.label("L_stset")
    store_setup()
    a.label("L_stgo")
    SD = FX[0][0]
    a(f"""
    s_mul_i32 s{sT0}, s{sW}, {IH}
    s_add_u32 s{sT0}, s{sT0}, {IMG}
    v_lshl_add_u32 v{T[0]}, v{vL}, 4, s{sT0}
    s_waitcnt lgkmcnt(0)
    s_barrier
    """)
    for q in range(6): a(f"ds_read_b128 {vr(SD+4*q,4)}, v{T[0]} offset:{q*1024}")
    for q in range(5):
        a(f"s_waitcnt lgkmcnt({5-q})\nbuffer_store_dwordx4 {vr(SD+4*q,4)}, v{SO[q]}, s[8:11], 0 offen {SS}")
    a(f"""
    s_cmp_lg_u32 s{sGrp}, 2
    s_waitcnt lgkmcnt(0)
    s_cbranch_scc1 L_no6
    buffer_store_dwordx4 {vr(SD+20,4)}, v{SO[5]}, s[8:11], 0 offen {SS}
    L_no6:
    """)
    mark(3)

    R = RegAlloc(BASE)
    vK = [R.alloc("aK0"), R.alloc("aK1")]; vK1 = [R.alloc("aKa"), R.alloc("aKb")]; vV = [R.alloc("aV0"), R.alloc("aV1")]
    vIdx = R.alloc("idx"); vD = R.alloc("dma"); vM = [R.alloc("Ma"), R.alloc("Mb")]
    vOst = R.alloc("ost"); vOst2 = R.alloc("ost2"); vP = R.alloc("pk", 4, 2)
    R.n = max(R.n, SD + 24)
    Q0 = [R.alloc(f"Q0{s}", 4, 4) for s in range(2)]
    Q1 = [R.alloc(f"Q1{s}", 2, 2) for s in range(2)]
    K0 = [R.alloc(f"K0{i}", 4, 4) for i in range(2)]
    K1 = [R.alloc(f"K1{i}", 2, 2) for i in range(2)]
    V = [[R.alloc(f"V{i}{j}", 4, 4) for j in range(2)] for i in range(2)]
    S = [[R.alloc(f"S{s}{p}", 16, 4) for p in range(2)] for s in range(2)]
    O = [R.alloc(f"O{s}", 16, 4) for s in range(2)]
    assert R.n <= SO[0]
    nvmax.append(R.n)
    sHead, sTok, sBr, sOff, sF3, sGo = 28, 29, 30, 31, 32, 33
    R = RegAlloc(O[1] + 16)
    OW = [[R.alloc(f"OW{p}{q}") for q in range(5)] for p in range(2)]
    oM = R.alloc("oM"); oT = R.alloc("oT"); oF = R.alloc("oF"); oW = [R.alloc(f"oW{i}") for i in range(3)]; oS = [R.alloc("oS0"), R.alloc("oS1")]
    nvmax.append(R.n)
    R = RegAlloc(BASE)
    OF = [R.alloc(f"OF{k}", 4, 4) for k in range(16)]
    OT = [R.alloc(f"OT{k}", 2, 2) for k in range(8)]
    WB = [[[R.alloc(f"WB{b}{h}{t}", 4, 4) for t in range(5)] for h in range(2)] for b in range(2)]
    WT = [[R.alloc(f"WT{b}{t}", 2, 2) for t in range(5)] for b in range(2)]
    assert R.n <= OW[0][0]
    OC = [228 + 4 * t for t in range(5)]
    WL = GROUP
    sNt, sDone, sRdy, sBo, sTo = 34, 35, 36, 37, 40
    for q in range(5):
        a(f"v_add_u32 v{T[0]}, {64*q}, v{vL}")
        divc(T[1], T[2], T[0], 10, 6554, 16)
        a(f"""
        v_lshrrev_b32 v{T[4]}, 4, v{T[1]}
        v_and_b32 v{T[5]}, 3, v{T[1]}
        v_bfe_u32 v{T[6]}, v{T[1]}, 3, 1
        v_mul_u32_u24 v{T[6]}, 20, v{T[6]}
        v_and_b32 v{T[7]}, 4, v{T[1]}
        v_add3_u32 v{T[6]}, v{T[6]}, v{T[7]}, v{T[5]}
        v_lshl_add_u32 v{T[6]}, v{T[4]}, 3, v{T[6]}
        v_mul_u32_u24 v{T[6]}, 1280, v{T[6]}
        v_lshl_add_u32 v{OW[0][q]}, v{T[2]}, 4, v{T[6]}
        v_lshrrev_b32 v{T[6]}, 2, v{T[1]}
        v_mul_u32_u24 v{T[6]}, 20, v{T[6]}
        v_add3_u32 v{T[6]}, v{T[6]}, v{T[5]}, 16
        v_mul_u32_u24 v{T[6]}, 1280, v{T[6]}
        v_lshl_add_u32 v{OW[1][q]}, v{T[2]}, 4, v{T[6]}
        """)
    a(f"""
    s_and_b32 s{sT0}, s2, 7
    s_lshr_b32 s{sT1}, s2, 3
    s_lshr_b32 s{sBo}, s{sT0}, 2
    s_and_b32 s{sT0}, s{sT0}, 3
    s_lshl_b32 s{sT0}, s{sT0}, 2
    s_and_b32 s{sT2}, s{sT1}, 3
    s_add_u32 s{sT0}, s{sT0}, s{sT2}
    s_lshr_b32 s{sNt}, s{sT1}, 2
    s_lshl_b32 s{sTo}, s{sT0}, 7
    s_lshl_b32 s{sT0}, s{sW}, 4
    s_add_u32 s{sTo}, s{sTo}, s{sT0}
    v_and_b32 v{T[4]}, 15, v{vL}
    v_lshrrev_b32 v{T[1]}, 4, v{vL}
    v_add_u32 v{T[5]}, s{sTo}, v{T[4]}
    v_lshlrev_b32 v{oM}, 15, v{T[1]}
    v_lshl_add_u32 v{oM}, v{T[5]}, 4, v{oM}
    v_lshlrev_b32 v{oT}, 14, v{T[1]}
    v_lshl_add_u32 v{oT}, v{T[5]}, 3, v{oT}
    v_lshrrev_b32 v{T[6]}, 2, v{vL}
    v_mul_u32_u24 v{T[6]}, 160, v{T[6]}
    v_and_b32 v{T[7]}, 3, v{vL}
    v_lshl_add_u32 v{oW[1]}, v{T[7]}, 3, v{T[6]}
    v_add_u32 v{oW[1]}, {WL}, v{oW[1]}
    v_mul_u32_u24 v{T[4]}, 2560, v{T[4]}
    v_lshl_add_u32 v{oS[1]}, v{T[1]}, 3, v{T[4]}
    v_and_b32 v{T[6]}, 1, v{T[1]}
    v_lshl_add_u32 v{T[6]}, v{T[6]}, 5, v{T[4]}
    v_lshrrev_b32 v{T[1]}, 1, v{T[1]}
    v_lshl_add_u32 v{oS[0]}, v{T[1]}, 4, v{T[6]}
    s_lshl_b32 s{sT0}, s{sNt}, 11
    s_lshl_b32 s{sT1}, s{sBo}, 10
    s_add_u32 s{sT0}, s{sT0}, s{sT1}
    s_lshr_b32 s{sT1}, s{sTo}, 9
    s_lshl_b32 s{sT1}, s{sT1}, 8
    s_add_u32 s{sT0}, s{sT0}, s{sT1}
    s_add_u32 s{sT0}, s{sT0}, {F3}
    v_and_b32 v{oF}, 31, v{vL}
    v_lshl_add_u32 v{oF}, v{oF}, 3, s{sT0}
    s_cmp_eq_u32 s{sBo}, 0
    s_cselect_b32 s{sT0}, s{kAo}, s{kBo}
    s_cselect_b32 s{sT1}, s{kAo+1}, s{kBo+1}
    s_mul_i32 s{sT2}, s{sNt}, 160
    s_add_u32 s92, s{sT0}, s{sT2}
    s_addc_u32 s93, s{sT1}, 0
    s_sub_u32 s94, {640*1280}, s{sT2}
    s_mov_b32 s95, 0x00020000
    """)
    a(f"""
    s_and_b32 s{sT0}, s2, 7
    s_lshr_b32 s{sT1}, s2, 3
    s_lshr_b32 s{sBr}, s{sT1}, 4
    s_bfe_u32 s{sT2}, s{sT1}, 0x20002
    s_lshl_b32 s{sHead}, s{sT0}, 2
    s_add_u32 s{sHead}, s{sHead}, s{sT2}
    s_and_b32 s{sT3}, s{sT1}, 3
    s_lshl_b32 s{sTok}, s{sT3}, 9
    s_lshl_b32 s{sT1}, s{sW}, 6
    s_add_u32 s{sTok}, s{sTok}, s{sT1}
    v_and_b32 v{T[0]}, 31, v{vL}
    v_lshrrev_b32 v{T[1]}, 5, v{vL}
    v_lshlrev_b32 v{vK[0]}, 4, v{vL}
    v_lshlrev_b32 v{vD}, 4, v{vL}
    v_lshlrev_b32 v{vK1[0]}, 3, v{T[0]}
    v_lshl_add_u32 v{vK1[0]}, v{T[1]}, 2, v{vK1[0]}
    v_cmp_eq_u32 vcc, 24, v{T[0]}
    v_mov_b32 v{T[3]}, 20
    v_mov_b32 v{T[4]}, {BIG}
    v_cndmask_b32 v{T[2]}, v{T[0]}, v{T[3]}, vcc
    v_mul_u32_u24 v{vV[0]}, 336, v{T[1]}
    v_lshl_add_u32 v{vV[0]}, v{T[2]}, 4, v{vV[0]}
    v_cmp_lt_u32 vcc, 20, v{T[2]}
    v_mov_b32 v{vIdx}, 0xdddddddd
    v_mov_b32 v{K1[0]+1}, 0x3f80
    v_cndmask_b32 v{vV[0]}, v{vV[0]}, v{T[4]}, vcc
    v_cmp_eq_u32 vcc, 20, v{T[0]}
    v_mov_b32 v{K1[1]+1}, 0x3f80
    v_mov_b32 v{Q1[0]+1}, 0
    v_cndmask_b32 v{vV[0]}, v{vV[0]}, v{T[4]}, vcc
    v_mov_b32 v{Q1[1]+1}, 0
    v_add_u32 v{vK[1]}, {3*GROUP}, v{vK[0]}
    v_add_u32 v{vK1[1]}, {3*GROUP}, v{vK1[0]}
    v_add_u32 v{vV[1]}, {3*GROUP}, v{vV[0]}
    s_mul_i32 s{sT1}, s{sBr}, {O_BR}
    s_add_u32 s{sT1}, s{sT1}, {O_OFF}
    """)
    srd(16, kWs, f"s{sT1}", O_BR)
    a(f"""
    s_lshl_b32 s{sT2}, s{sHead}, 16
    s_lshl_b32 s{sT1}, s{sTok}, 4
    s_add_u32 s{sT2}, s{sT2}, s{sT1}
    v_lshlrev_b32 v{vOst}, 15, v{T[1]}
    v_lshl_add_u32 v{vOst}, v{T[0]}, 4, v{vOst}
    v_add_u32 v{vOst}, s{sT2}, v{vOst}
    s_lshl_b32 s{sT2}, s{sHead}, 14
    s_lshl_b32 s{sT1}, s{sTok}, 3
    s_add_u32 s{sT2}, s{sT2}, s{sT1}
    s_add_u32 s{sT2}, s{sT2}, {O_TAIL}
    v_lshlrev_b32 v{vOst2}, 3, v{T[0]}
    v_lshl_add_u32 v{vOst2}, v{T[1]}, 24, v{vOst2}
    v_add_u32 v{vOst2}, s{sT2}, v{vOst2}
    s_lshl_b32 s{sF3}, s{sBr}, 10
    s_lshl_b32 s{sT1}, s{sT3}, 8
    s_add_u32 s{sF3}, s{sF3}, s{sT1}
    s_lshl_b32 s{sT1}, s{sHead}, 3
    s_add_u32 s{sF3}, s{sF3}, s{sT1}
    s_add_u32 s{sF3}, s{sF3}, {F3}
    """)
    a.c("flag addresses to poll (T5): B: slots 12..15 ; A: lanes 0-15 K slot, 16-31 V slot, 32-63 Q slot (own 4 mt)")
    a(f"""
    s_lshr_b32 s{sT1}, s{sHead}, 3
    s_lshl_b32 s{sT1}, s{sT1}, 7
    v_and_b32 v{T[2]}, 15, v{vL}
    v_lshrrev_b32 v{T[3]}, 4, v{vL}
    v_add_u32 v{T[3]}, 1, v{T[3]}
    v_lshlrev_b32 v{T[3]}, 9, v{T[3]}
    v_lshl_add_u32 v{T[3]}, v{T[2]}, 3, v{T[3]}
    v_and_b32 v{T[2]}, 3, v{vL}
    s_lshl_b32 s{sT2}, s{sT3}, 5
    v_lshl_add_u32 v{T[2]}, v{T[2]}, 3, s{sT2}
    v_cmp_gt_u32 vcc, 32, v{vL}
    v_lshlrev_b32 v{T[4]}, 3, v{vL}
    v_add_u32 v{T[4]}, {12*128}, v{T[4]}
    v_cndmask_b32 v{T[5]}, v{T[2]}, v{T[3]}, vcc
    v_add_u32 v{T[5]}, s{sT1}, v{T[5]}
    s_cmp_eq_u32 s{sBr}, 0
    s_cselect_b64 vcc, -1, 0
    s_and_b32 s{sT1}, s2, {NR-1}
    s_lshl_b32 s{sT1}, s{sT1}, 11
    s_add_u32 s{sT1}, s{sT1}, {F1}
    v_cndmask_b32 v{T[5]}, v{T[4]}, v{T[5]}, vcc
    v_add_u32 v{T[5]}, s{sT1}, v{T[5]}
    """)
    for s in range(2):
        for r in range(16): a(f"v_mov_b32 v{O[s]+r}, 0")
    for r in range(8, 16): a(f"v_mov_b32 v{S[1][1]+r}, 0")
    for r in range(4): a(f"v_mov_b32 v{V[1][1]+r}, 0")
    a(f"""
    s_cmp_eq_u32 s{sBr}, 0
    s_cselect_b32 s{sT1}, s{sHead}, 32
    s_mul_i32 s{sT1}, s{sT1}, {KVS}
    s_lshl_b32 s{sT2}, s{sBr}, 5
    s_add_u32 s{sT2}, s{sT2}, s{sHead}
    s_mul_i32 s{sT2}, s{sT2}, {Q_HEAD}
    s_mul_i32 s{sT3}, s{sTok}, 40
    s_add_u32 s{sT2}, s{sT2}, s{sT3}
    s_add_u32 s{sT2}, s{sT2}, {Q_OFF}
    """)
    get_nonce()
    srd(8, kWs, f"s{sT1}", KV_SET)
    srd(12, kWs, f"s{sT2}", 2560)
    a(f"""
    s_barrier
    s_cmp_lg_u32 s{sW}, 0
    s_cbranch_scc1 L_f1w
    """)
    put_flag(sFl, 11, NR)
    if PRE: a(f"s_sleep {PRE}")
    mark(4)
    a(f"""
    s_mov_b32 s{sSpin}, {SPIN}
    L_f1l:
    global_load_dwordx2 {vr(vF,2)}, v{T[5]}, s[{kWs}:{kWs+1}] sc1
    s_waitcnt vmcnt(0)
    v_cmp_ne_u64 vcc, s[{sN}:{sN+1}], {vr(vF,2)}
    s_sub_u32 s{sSpin}, s{sSpin}, 1
    s_cbranch_scc1 L_f1w
    s_cbranch_vccz L_f1w
    s_sleep {SL1}
    s_branch L_f1l
    L_f1w:
    s_barrier
    """)
    mark(5)
    if not EARLY:
      for s in range(2):
        a(f"buffer_load_dwordx4 {vr(Q0[s],4)}, v{vK[0]}, s[12:15], 0 offen offset:{1280*s} {SC}")
        a(f"buffer_load_dword v{Q1[s]}, v{vK1[0]}, s[12:15], 0 offen offset:{1280*s+1024} {SC}")
    a(f"s_lshl_b32 s{sOff}, s{sW}, 10")
    dma = f"buffer_load_dwordx4 v{vD}, s[8:11], s{sOff} offen {SC} lds"
    kd = f"s_mov_b32 m0, s{sOff}\ns_nop 0\n{dma}\ns_add_u32 s{sOff}, s{sOff}, 8192"
    for k in range(1 if EARLY else 4): a(kd)
    if EARLY:
      for s in range(2):
        a(f"buffer_load_dwordx4 {vr(Q0[s],4)}, v{vK[0]}, s[12:15], 0 offen offset:{1280*s} {SC}")
        a(f"buffer_load_dword v{Q1[s]}, v{vK1[0]}, s[12:15], 0 offen offset:{1280*s+1024} {SC}")
      a(kd)
    def qk1(s, Tt): p = Tt % 2; return f"v_mfma_f32_32x32x16_bf16 {vr(S[s][p],16)}, {vr(K0[p],4)}, {vr(Q0[s],4)}, 0"
    def qk2(s, Tt): p = Tt % 2; return f"v_mfma_f32_32x32x8_bf16 {vr(S[s][p],16)}, {vr(K1[p],2)}, {vr(Q1[s],2)}, {vr(S[s][p],16)}"
    def pv(s, Tt, h): p = Tt % 2; return f"v_smfmac_f32_32x32x32_bf16 {vr(O[s],16)}, {vr(V[p][h],4)}, {vr(S[s][p]+8*h,8)}, v{vIdx}"
    def rowmax(first):
        for s in range(2):
            x = S[s][0]
            if first:
                a(f"v_max3_f32 v{vM[s]}, v{x}, v{x+1}, v{x+2}")
                for r in range(3, 15, 2): a(f"v_max3_f32 v{vM[s]}, v{x+r}, v{x+r+1}, v{vM[s]}")
                a(f"v_max_f32 v{vM[s]}, v{x+15}, v{vM[s]}")
            else:
                for r in range(0, 16, 2): a(f"v_max3_f32 v{vM[s]}, v{x+r}, v{x+r+1}, v{vM[s]}")
    def crossmax():
        a(f"""
        v_mov_b32 v{T[0]}, v{vM[0]}
        v_mov_b32 v{T[1]}, v{vM[1]}
        s_nop 1
        v_permlane32_swap_b32 v{T[0]}, v{vM[0]}
        v_permlane32_swap_b32 v{T[1]}, v{vM[1]}
        s_nop 1
        v_max_f32 v{vM[0]}, v{vM[0]}, v{T[0]}
        v_max_f32 v{vM[1]}, v{vM[1]}, v{T[1]}
        """)
    a(f"s_waitcnt vmcnt({1 if EARLY else 3})\ns_barrier")
    mark(6)
    a(f"""
    ds_read_b128 {vr(K0[0],4)}, v{vK[0]}
    ds_read_b32 v{K1[0]}, v{vK1[0]} offset:1024
    ds_read_b128 {vr(K0[1],4)}, v{vK[0]} offset:{TILE}
    ds_read_b32 v{K1[1]}, v{vK1[0]} offset:{TILE+1024}
    ds_read_b128 {vr(V[0][0],4)}, v{vV[0]} offset:1280
    ds_read_b128 {vr(V[0][1],4)}, v{vV[0]} offset:{1280+672}
    s_waitcnt lgkmcnt(4)
    {qk1(0,0)}
    {qk2(0,0)}
    {qk1(1,0)}
    {qk2(1,0)}
    v_cmp_gt_u32 vcc, 32, v{vL}
    {kd + chr(10) + kd + chr(10) + "s_nop 0" if EARLY else "s_nop 8"}
    """)
    rowmax(True)
    crossmax()
    for s in range(2):
        a(f"""
        v_sub_f32 v{T[2]}, 0, v{vM[s]}
        v_and_b32 v{T[3]}, 0xffff0000, v{T[2]}
        v_sub_f32 v{T[4]}, v{T[2]}, v{T[3]}
        v_and_b32 v{T[4]}, 0xffff0000, v{T[4]}
        v_cndmask_b32 v{T[5]}, v{T[4]}, v{T[3]}, vcc
        v_lshrrev_b32 v{Q1[s]+1}, 16, v{T[5]}
        v_add_f32 v{vP+2*s}, v{T[3]}, v{T[4]}
        v_add_f32 v{vP+2*s+1}, v{T[3]}, v{T[4]}
        """)
    for s in range(2):
        for r in range(0, 16, 2): a(f"v_pk_add_f32 {vr(S[s][0]+r,2)}, {vr(S[s][0]+r,2)}, {vr(vP+2*s,2)}")
    a(f"""
    s_mov_b32 s{sC}, 0
    s_setprio 1
    s_waitcnt vmcnt(2) lgkmcnt(0)
    s_barrier
    """)
    mark(7)
    def body(first):
        for t in range(16):
            Tt = 16 + t
            def ad(regs, tl, o):
                return f"v{regs[1]} offset:{(tl-12)*TILE+o}" if 12 <= tl < 16 else f"v{regs[0]} offset:{tl*TILE+o}"
            for s in range(2):
                X = S[s][Tt % 2]
                e = lambda i: a(f"v_exp_f32 v{X+i}, v{X+i}")
                e(0); e(1)
                if s == 0:
                    a(pv(1, Tt - 1, 1))
                    a(f"ds_read_b128 {vr(V[(Tt+1)%2][0],4)}, {ad(vV,t+1,1280)}")
                else:
                    a(pv(0, Tt, 1))
                    if first: a(f"s_mov_b32 m0, s{sOff}")
                    if stamp and "as" in DBG and t % 4 == 0: a("s_memtime s[88:89]")
                    a(f"ds_read_b128 {vr(V[(Tt+1)%2][1],4)}, {ad(vV,t+1,1952)}")
                e(2); e(3); e(4); e(5)
                a(qk1(s, Tt + 1))
                if s == 0: a(f"ds_read_b128 {vr(K0[Tt%2],4)}, {ad(vK,t+2,0)}")
                elif first: a(dma)
                elif t == 15: a(f"s_add_u32 s{sC}, s{sC}, 1")
                e(6); e(7); e(8); e(9)
                a(pv(s, Tt, 0))
                if s == 0:
                    a("s_waitcnt lgkmcnt(2)")
                    a(f"ds_read_b32 v{K1[Tt%2]}, {ad(vK1,t+2,1024)}")
                else:
                    if first: a(f"s_add_u32 s{sOff}, s{sOff}, 8192")
                    if stamp and "as" in DBG and t % 4 == 0:
                        a(f"s_waitcnt lgkmcnt(0)\ns_sub_u32 s88, s88, s48\ns_mov_b32 m0, s63\ns_add_u32 s63, s63, 1\nv_writelane_b32 v255, s88, m0")
                    a("s_waitcnt lgkmcnt(1)")
                    if not first and t == BT:
                        a(f"s_cmp_eq_u32 s{sC}, 3\ns_cbranch_scc1 L_bal\nL_balr:")
                e(10); e(11); e(12); e(13)
                a(qk2(s, Tt + 1))
                e(14); e(15)
            if first and t % 4 == 3:
                a("s_waitcnt vmcnt(4)\ns_barrier")
    def bump():
        for r in (vK, vK1, vV): a(f"v_add_u32 v{r[0]}, {4*GROUP}, v{r[0]}")
        a(f"""
        s_cmp_eq_u32 s{sC}, 3
        s_mov_b32 s{sT0}, {4*GROUP}
        s_cmov_b32 s{sT0}, {(4*GROUP - 15*GROUP) & 0xffffffff}
        """)
        for r in (vK, vK1, vV): a(f"v_add_u32 v{r[1]}, s{sT0}, v{r[1]}")
    a.raw(".p2align 6")
    body(True)
    a.c("group 15 -> slot 0 (all waves are past group 0)")
    a(f"""
    s_lshl_b32 s{sT0}, s{sW}, 11
    s_min_u32 s{sT1}, s{sT0}, {GROUP-1024}
    s_mov_b32 m0, s{sT1}
    s_add_u32 s{sOff}, s{sT1}, {15*GROUP}
    {dma}
    s_add_u32 s{sT0}, s{sT0}, 1024
    s_min_u32 s{sT1}, s{sT0}, {GROUP-1024}
    s_mov_b32 m0, s{sT1}
    s_add_u32 s{sOff}, s{sT1}, {15*GROUP}
    {dma}
    s_mov_b32 s{sC}, 1
    """)
    bump()
    a.raw(".p2align 6")
    a.label("L_loop")
    body(False)
    a(f"""
    s_cmp_eq_u32 s{sC}, 4
    s_cbranch_scc1 L_adone
    """)
    bump()
    a(f"""
    s_cmp_lg_u32 s{sC}, 2
    s_cbranch_scc1 L_loop
    s_waitcnt vmcnt(0)
    s_barrier
    s_cmp_eq_u32 s{sHi}, 0
    s_cbranch_scc1 L_wpf
    s_setprio 2
    s_branch L_loop
    L_adone:
    s_setprio 3
    s_waitcnt lgkmcnt(0)
    {pv(1, 31, 1)}
    """)
    mark(8)
    lo, hi = 0x2b800000, 0x5d800000
    if force_fallback: lo = 0x7f000000
    lb = lambda s: f"v_mov_b32 v{O[s]+13}, v{O[s]+12}\ns_nop 1\nv_permlane32_swap_b32 v{O[s]+12}, v{O[s]+13}\ns_nop 1"
    for s in range(2):
        a(lb(s))
        a(f"v_mov_b32 v{T[s]}, v{O[s]+12}")
        for r in range(12): a(f"v_fma_f32 v{T[s]}, v{O[s]+r}, 0, v{T[s]}")
    a(f"""
    v_cmp_le_f32 vcc, 0x{lo:x}, v{T[0]}
    s_mov_b64 s[{sM0}:{sM1}], vcc
    v_cmp_le_f32 vcc, 0x{lo:x}, v{T[1]}
    s_and_b64 s[{sM0}:{sM1}], s[{sM0}:{sM1}], vcc
    v_cmp_ge_f32 vcc, 0x{hi:x}, v{T[0]}
    s_and_b64 s[{sM0}:{sM1}], s[{sM0}:{sM1}], vcc
    v_cmp_ge_f32 vcc, 0x{hi:x}, v{T[1]}
    s_and_b64 s[{sM0}:{sM1}], s[{sM0}:{sM1}], vcc
    s_cmp_eq_u64 s[{sM0}:{sM1}], -1
    s_cbranch_scc0 L_fallback
    L_store:
    v_rcp_f32 v{vP}, v{O[0]+12}
    v_rcp_f32 v{vP+2}, v{O[1]+12}
    v_mov_b32 v{vP+1}, v{vP}
    v_mov_b32 v{vP+3}, v{vP+2}
    """)
    for s in range(2):
        for r in range(0, 12, 2): a(f"v_pk_mul_f32 {vr(O[s]+r,2)}, {vr(O[s]+r,2)}, {vr(vP+2*s,2)}")
        for r in range(6): a(f"v_cvt_pk_bf16_f32 v{S[s][0]+r}, v{O[s]+2*r}, v{O[s]+2*r+1}")
        a(f"buffer_store_dwordx4 {vr(S[s][0],4)}, v{vOst}, s[16:19], 0 offen offset:{512*s} {SS}")
        a(f"buffer_store_dwordx2 {vr(S[s][0]+4,2)}, v{vOst2}, s[16:19], 0 offen offset:{256*s} {SS}")

    sU = [3, 4, 5, 6, 7, 12, 13, 14]
    def blk(pat):
        for q in range(5):
            a(f"s_add_u32 m0, s{sT0}, {WL + q*1024}\ns_nop 0\nbuffer_load_dwordx4 v{OW[pat][q]}, s[92:95], s{sT1} offen lds")
    a(f"""
    s_mul_i32 s{sT0}, s{sBo}, {O_BR}
    s_add_u32 s{sT0}, s{sT0}, {O_OFF}
    """)
    srd(8, kWs, f"s{sT0}", O_BR)
    a(f"""
    s_mov_b32 s{sRdy}, 0
    s_mov_b32 s{sDone}, 0
    s_mov_b32 s{sSpin}, {SPIN}
    s_waitcnt vmcnt(0)
    s_barrier
    s_cmp_lg_u32 s{sW}, 7
    s_cbranch_scc1 L_nf3
    """)
    put_flag(sF3, 11)
    a.label("L_nf3")
    mark(9)
    a(f"""
    s_mul_i32 s{sT0}, s{sTo}, 2560
    s_mul_i32 s{sT1}, s{sBo}, 1280
    s_add_u32 s{sT0}, s{sT0}, s{sT1}
    s_mul_i32 s{sT1}, s{sNt}, 160
    s_add_u32 s{sT0}, s{sT0}, s{sT1}
    s_sub_u32 s{sT1}, {2048*2560}, s{sT0}
    """)
    srd(16, kOut, f"s{sT0}", f"s{sT1}")
    a(f"""
    s_cmp_ge_u32 s{sW}, 6
    s_cbranch_scc1 L_ow3
    s_cmp_ge_u32 s{sW}, 4
    s_cbranch_scc1 L_ow2
    s_mul_i32 s{sT0}, s{sW}, 5120
    s_add_u32 s{sT0}, s{sT0}, {16*5120}
    s_mul_i32 s{sT1}, s{sW}, {160*1280}
    """)
    blk(1)
    a(f"""
    s_branch L_ow3
    L_ow2:
    s_add_u32 s{sT2}, s{sW}, 10
    s_mul_i32 s{sT0}, s{sT2}, 5120
    s_mul_i32 s{sT1}, s{sT2}, {40*1280}
    """)
    blk(0)
    a.label("L_ow3")
    def issue(p):
        a(f"""
        s_andn2_b32 s{sT0}, s{sRdy}, s{sDone}
        s_cbranch_scc1 L_is{p}
        L_ip{p}:
        global_load_dwordx2 {vr(vF,2)}, v{oF}, s[{kWs}:{kWs+1}] sc1
        s_waitcnt vmcnt(0)
        v_cmp_eq_u64 vcc, s[{sN}:{sN+1}], {vr(vF,2)}
        s_sub_u32 s{sSpin}, s{sSpin}, 1
        s_cselect_b32 vcc_lo, -1, vcc_lo
        s_lshr_b32 s{sT0}, vcc_lo, 1
        s_and_b32 s{sT0}, s{sT0}, vcc_lo
        s_lshr_b32 s{sT1}, s{sT0}, 2
        s_and_b32 s{sT0}, s{sT0}, s{sT1}
        s_and_b32 s{sRdy}, s{sT0}, 0x11111111
        s_andn2_b32 s{sT0}, s{sRdy}, s{sDone}
        s_cbranch_scc0 L_ip{p}
        L_is{p}:
        s_ff1_i32_b32 s{sU[p]}, s{sT0}
        s_bitset1_b32 s{sDone}, s{sU[p]}
        s_lshl_b32 s{sT0}, s{sU[p]}, 16
        s_add_u32 s{sT1}, s{sT0}, {4*32768}
        s_lshl_b32 s{sT2}, s{sU[p]}, 14
        s_add_u32 s{sT2}, s{sT2}, {O_TAIL}
        buffer_load_dwordx2 {vr(OT[p],2)}, v{oT}, s[8:11], s{sT2} offen {SC}
        buffer_load_dwordx4 {vr(OF[2*p],4)}, v{oM}, s[8:11], s{sT0} offen {SC}
        buffer_load_dwordx4 {vr(OF[2*p+1],4)}, v{oM}, s[8:11], s{sT1} offen {SC}
        """)
    def wreads(p):
        b = p % 2
        a(f"""
        s_mul_i32 s{sT0}, s{sU[p]}, 2560
        s_mul_i32 s{sT1}, s{sU[p]}, 640
        s_add_u32 s{sT1}, s{sT1}, {16*5120}
        v_add_u32 v{oW[0]}, s{sT0}, v{oW[1]}
        v_add_u32 v{oW[2]}, s{sT1}, v{oW[1]}
        """)
        r = [f"ds_read_b64_tr_b16 {vr(WT[b][t],2)}, v{oW[2]} offset:{32*t}" for t in range(5)]
        r += [f"ds_read_b64_tr_b16 {vr(WB[b][h][t]+2*hr,2)}, v{oW[0]} offset:{h*5120 + hr*2560 + 32*t}" for h in range(2) for t in range(5) for hr in range(2)]
        return r
    issue(0)
    a("s_barrier")
    for p in range(1, LA): issue(p)
    for i, x in enumerate(wreads(0)):
        if i in (12, 20): a("s_waitcnt lgkmcnt(4)")
        a(x)
    for p in range(8):
        b = p % 2
        lstamp("os")
        a(f"s_waitcnt vmcnt({3*min(LA-1, 7-p)}) lgkmcnt(0)")
        nx = wreads(p + 1) if p < 7 else []
        mm = [f"v_mfma_f32_16x16x16_bf16 {vr(OC[t],4)}, {vr(WT[b][t],2)}, {vr(OT[p],2)}, {vr(OC[t],4) if p else 0}" for t in range(5)]
        mm += [f"v_mfma_f32_16x16x32_bf16 {vr(OC[t],4)}, {vr(WB[b][h][t],4)}, {vr(OF[2*p+h],4)}, {vr(OC[t],4)}" for h in range(2) for t in range(5)]
        for i, m in enumerate(mm):
            a(m)
            if nx and i in (6, 10): a("s_waitcnt lgkmcnt(4)")
            for _ in range(2):
                if nx: a(nx.pop(0))
        if p + LA < 8: issue(p + LA)
    a("s_nop 3")
    mark(11)
    for t in range(5):
        p = OF[0] + 2 * t
        a(f"v_cvt_pk_bf16_f32 v{p}, v{OC[t]}, v{OC[t]+1}")
        a(f"v_cvt_pk_bf16_f32 v{p+1}, v{OC[t]+2}, v{OC[t]+3}")
        if t % 2 == 1:
            a(f"s_nop 1\nv_permlane16_swap_b32 v{p-2}, v{p}\nv_permlane16_swap_b32 v{p-1}, v{p+1}")
            a(f"buffer_store_dwordx4 {vr(p-2,4)}, v{oS[0]}, s[16:19], 0 offen offset:{64*(t//2)} {OS}")
    a(f"buffer_store_dwordx2 {vr(OF[0]+8,2)}, v{oS[1]}, s[16:19], 0 offen offset:128 {OS}")
    mark(12)
    stamp_end()
    a.label("L_end")
    a("s_endpgm")
    def blk(pat):
        for q in range(5):
            a(f"s_add_u32 m0, s{sT0}, {WL + q*1024}\ns_nop 0\nbuffer_load_dwordx4 v{OW[pat][q]}, s[92:95], s{sT1} offen lds")
    a(f"""
    L_wpf:
    s_mov_b32 s{sT2}, s{sW}
    L_wpl:
    s_mul_i32 s{sT0}, s{sT2}, 5120
    s_mul_i32 s{sT1}, s{sT2}, {40*1280}
    """)
    blk(0)
    a(f"""
    s_add_u32 s{sT2}, s{sT2}, 4
    s_cmp_lt_u32 s{sT2}, 14
    s_cbranch_scc1 L_wpl
    s_branch L_loop
    """)
    a.label("L_bal")
    a("s_setprio 0\ns_branch L_balr")

    a.label("L_fallback")
    for r in (vK, vK1, vV): a(f"v_subrev_u32 v{r[0]}, {12*GROUP}, v{r[0]}")
    a(f"""
    v_mov_b32 v{Q1[0]+1}, 0
    v_mov_b32 v{Q1[1]+1}, 0
    v_mov_b32 v{vM[0]}, 0xff800000
    v_mov_b32 v{vM[1]}, 0xff800000
    s_mov_b32 s{sGo}, 0
    L_fb1:
    buffer_load_dwordx4 {vr(K0[0],4)}, v{vK[0]}, s[8:11], s{sGo} offen {SC}
    buffer_load_dword v{K1[0]}, v{vK1[0]}, s[8:11], s{sGo} offen offset:1024 {SC}
    s_waitcnt vmcnt(0)
    {qk1(0,0)}
    {qk2(0,0)}
    {qk1(1,0)}
    {qk2(1,0)}
    s_add_u32 s{sGo}, s{sGo}, {TILE}
    s_nop 8
    """)
    rowmax(False)
    a(f"s_cmp_lt_u32 s{sGo}, {KV_SET}\ns_cbranch_scc1 L_fb1")
    crossmax()
    for s in range(2):
        for r in range(16): a(f"v_mov_b32 v{O[s]+r}, 0")
    a(f"""
    s_mov_b32 s{sGo}, 0
    L_fb2:
    buffer_load_dwordx4 {vr(K0[0],4)}, v{vK[0]}, s[8:11], s{sGo} offen {SC}
    buffer_load_dword v{K1[0]}, v{vK1[0]}, s[8:11], s{sGo} offen offset:1024 {SC}
    buffer_load_dwordx4 {vr(V[0][0],4)}, v{vV[0]}, s[8:11], s{sGo} offen offset:1280 {SC}
    buffer_load_dwordx4 {vr(V[0][1],4)}, v{vV[0]}, s[8:11], s{sGo} offen offset:{1280+672} {SC}
    s_waitcnt vmcnt(0)
    {qk1(0,0)}
    {qk2(0,0)}
    {qk1(1,0)}
    {qk2(1,0)}
    s_add_u32 s{sGo}, s{sGo}, {TILE}
    s_nop 8
    """)
    for s in range(2):
        for r in range(16): a(f"v_sub_f32 v{S[s][0]+r}, v{S[s][0]+r}, v{vM[s]}")
        for r in range(16): a(f"v_exp_f32 v{S[s][0]+r}, v{S[s][0]+r}")
    a(f"""
    s_nop 1
    {pv(0,0,0)}
    {pv(0,0,1)}
    {pv(1,0,0)}
    {pv(1,0,1)}
    s_cmp_lt_u32 s{sGo}, {KV_SET}
    s_cbranch_scc1 L_fb2
    s_nop 15
    {lb(0)}
    {lb(1)}
    s_branch L_store
    L_codeend:
    """)
    print("nv per phase", nvmax)
    kernel_desc(a, name, 256, 102)

if __name__ == "__main__":
    import sys
    NAME = "concat_heads__mha_block__grouped_kv_mqa__prompt"
    ref = open(f"cdna_kernels/{NAME}.s.ref").read().split("\n")
    hdr = [l for l in ref if l.startswith(";") and "@launch" not in l]
    opts = eval("dict(" + (sys.argv[2] if len(sys.argv) > 2 else "") + ")")
    a = Asm()
    a.raw('.amdgcn_target "amdgcn-amd-amdhsa--gfx950"')
    gen(a, NAME + "_kernel", **opts)
    out = "\n".join(hdr) + f"\n; @launch grid=(256,1,1) block=(512,1,1) lds={LDS}\n" + a.text()
    dst = sys.argv[1] if len(sys.argv) > 1 else f"cdna_kernels/{NAME}.s"
    open(dst, "w").write(out)
```

```python
import struct
from common import Asm, vr, RegAlloc, kernel_header, kernel_desc

def f32bits(x): return struct.unpack("<I", struct.pack("<f", x))[0]
QSCALE = f32bits((20 ** -0.5) * 1.4426950408889634)

TILE = 2624; GROUP = 4 * TILE; KV_SET = 16 * GROUP
KV_OFF = 0
KVS = KV_SET + 128
Q_OFF = KV_OFF + 33 * KVS
Q_HEAD = 64 * 1280 + 128
O_OFF = Q_OFF + 64 * Q_HEAD
O_TAIL = 64 * 32768 + 128
O_BR = O_TAIL + 32 * 16384 + 128
F1 = O_OFF + 2 * O_BR
F3 = F1 + 64 * 2048
WS_USED = F3 + 8 * 2048
ST_OFF = 16 << 20
assert WS_USED <= ST_OFF
LDS = 163840
BIG = 0x100000
SPIN = 1000000
kAx, kAw, kAo, kBx, kBq, kBk, kBv, kBo, kOut, kDbg, kWs = 64, 66, 68, 70, 72, 74, 76, 78, 80, 82, 84
sN = 86

def interleave(a, mf, rd):
    rd = list(rd); n = len(mf)
    for i, m in enumerate(mf):
        a(m)
        k = 2 if len(rd) > (n - i - 3) else 1
        for _ in range(k):
            if rd: a(rd.pop(0))
    for r in rd: a(r)

def gen(a, name, stamp=False, force_fallback=False, SC="sc1", DBG="", AHEAD=1, ROT=True, LPF=0, SL1=0, SL3=8, SL4=1, BAL=11, CPF=False, UPR=2, LA=3, TICK=False, TST=5, SS=None, NR=8, PRE=0, EARLY=True, BT=9, ESP=True, OS='', TLB=0, PP=False, MINR=2):
    SS = SS or SC
    vL = 1
    T = list(range(2, 10))
    vF = 10
    BASE = 12
    sW, sI, sT0, sT1, sT2, sT3, sC = 20, 21, 23, 24, 25, 26, 27
    sW4, sHi, sSpin, sFl, sM0, sM1 = 22, 38, 43, 39, 44, 45
    nvmax = []
    uid = [0]
    def mark(i):
        if "rs" in DBG:
            a(f"s_memrealtime s[88:89]\ns_waitcnt lgkmcnt(0)\ns_mov_b32 s{50+i}, s88")
            return
        if "rt" in DBG:
            a(f"s_memrealtime s[88:89]\ns_waitcnt lgkmcnt(0)\ns_mov_b32 s{50+i}, s88")
            return
        if stamp: a(f"s_memtime s[88:89]\ns_waitcnt lgkmcnt(0)\ns_sub_u32 s{50+i}, s88, s48")
    def lstamp(tag):
        if stamp and tag in DBG:
            a(f"s_memtime s[88:89]\ns_waitcnt lgkmcnt(0)\ns_sub_u32 s88, s88, s48\ns_mov_b32 m0, s63\ns_add_u32 s63, s63, 1\ns_min_u32 s63, s63, 15\nv_writelane_b32 v255, s88, m0")
    def stamp_end():
        if "rt" in DBG:
            a(f"s_cmp_lg_u32 s{sW}, 0\ns_cbranch_scc1 L_end\ns_waitcnt vmcnt(0)\ns_memrealtime s[88:89]\ns_waitcnt lgkmcnt(0)\ns_mov_b32 s60, s88\ns_mov_b32 s63, s46\nv_mov_b32 v2, 0")
            for i in range(14):
                a(f"s_sub_u32 s88, s{50+i}, s{sN}\ns_add_u32 s88, s88, 1000\nv_writelane_b32 v2, s88, {i}")
            a(f"v_lshlrev_b32 v3, 2, v{vL}\ns_mov_b64 exec, 0x3fff\nglobal_atomic_umax v3, v2, s[{kDbg}:{kDbg+1}] offset:8 sc1")
            return
        if not stamp: return
        Z = 64
        a(f"""
        s_waitcnt vmcnt(0) lgkmcnt(0)
        s_memrealtime s[90:91]
        s_memtime s[88:89]
        s_waitcnt lgkmcnt(0)
        s_sub_u32 s88, s88, s48
        v_mov_b32 v{Z}, s46
        v_mov_b32 v{Z+1}, s90
        v_mov_b32 v{Z+2}, s88
        """)
        for i in range(13): a(f"v_mov_b32 v{Z+3+i}, s{50+i}")
        a(f"""
        s_lshl_b32 s88, s2, 3
        s_add_u32 s88, s88, s{sW}
        s_lshl_b32 s88, s88, 6
        s_add_u32 s88, s88, {ST_OFF}
        v_mov_b32 v{T[0]}, s88
        s_add_u32 s88, s88, 262144
        v_lshl_add_u32 v{T[1]}, v{vL}, 2, s88
        s_mov_b64 exec, 0xffff
        global_store_dword v{T[1]}, v255, s[{kWs}:{kWs+1}]
        s_mov_b64 exec, 1
        """)
        for i in range(4): a(f"global_store_dwordx4 v{T[0]}, {vr(Z+4*i,4)}, s[{kWs}:{kWs+1}] offset:{16*i}")
    def srd(d, base, off, size):
        a(f"""
        s_add_u32 s{d}, s{base}, {off}
        s_addc_u32 s{d+1}, s{base+1}, 0
        s_mov_b32 s{d+2}, {size}
        s_mov_b32 s{d+3}, 0x00020000
        """)
    def divc(vq, vrem, vn, d, mul, sh):
        a(f"v_mul_u32_u24 v{vq}, {mul}, v{vn}")
        a(f"v_lshrrev_b32 v{vq}, {sh}, v{vq}")
        a(f"v_mul_u32_u24 v{vrem}, {d}, v{vq}")
        a(f"v_sub_u32 v{vrem}, v{vn}, v{vrem}")
    def get_nonce():
        uid[0] += 1; u = uid[0]
        a(f"""
        v_mov_b32 v{T[0]}, 0
        s_mov_b32 s{sSpin}, {SPIN}
        L_gn{u}:
        global_load_dwordx2 {vr(vF,2)}, v{T[0]}, s[{kDbg}:{kDbg+1}] sc1
        s_waitcnt vmcnt(0)
        v_readfirstlane_b32 s{sN}, v{vF}
        v_readfirstlane_b32 s{sN+1}, v{vF+1}
        s_sub_u32 s{sSpin}, s{sSpin}, 1
        s_cbranch_scc1 L_gd{u}
        s_cmp_eq_u32 s{sN}, 0
        s_cbranch_scc1 L_gn{u}
        L_gd{u}:
        """)
    def put_flag(flag_sgpr, shift, nr=8):
        a(f"""
        v_lshl_add_u32 v{T[0]}, v{vL}, {shift}, s{flag_sgpr}
        v_mov_b32 v{T[2]}, s{sN}
        v_mov_b32 v{T[3]}, s{sN+1}
        s_mov_b32 exec_lo, {(1 << min(nr, 32)) - 1}
        s_mov_b32 exec_hi, {-1 if nr == 64 else 0}
        global_store_dwordx2 v{T[0]}, {vr(T[2],2)}, s[{kWs}:{kWs+1}] sc1
        s_mov_b64 exec, -1
        """)

    kernel_header(a, name)
    sMt, sGrp, sJ4, sLd, sSt, sHS, sScale = 28, 29, 30, 31, 32, 33, 34
    sOx, sOw, sOe, sM, sLd64, sWm, sWn, sRot, sTS, sCT = 35, 36, 37, 40, 41, 42, 92, 93, 94, 95
    a(f"""
    s_getpc_b64 s[96:97]
    s_cmp_ge_u32 s2, 256
    s_cbranch_scc1 L_end
    s_load_dwordx16 s[64:79], s[0:1], 0
    s_load_dwordx4 s[80:83], s[0:1], 64
    s_load_dwordx2 s[84:85], s[0:1], 80
    s_memrealtime s[46:47]
    {"s_memtime s[48:49]" if stamp else ""}
    {"s_mov_b32 s63, 0" if stamp else ""}
    v_lshrrev_b32 v{T[0]}, 6, v0
    v_and_b32 v{vL}, 63, v0
    s_getreg_b32 s{sT1}, hwreg(HW_REG_XCC_ID, 0, 3)
    v_readfirstlane_b32 s{sW}, v{T[0]}
    """)
    if TICK:
        a.c("logical workgroup id = (die, ticket on that die's counter); a full die spills to the next counter")
        a(f"""
        v_mov_b32 v{T[2]}, {LDS - 16}
        s_cmp_lg_u32 s{sW}, 0
        s_cbranch_scc1 L_tk2
        v_mov_b32 v{T[1]}, 1
        s_mov_b32 s{sT3}, 16
        s_mov_b64 exec, 1
        s_waitcnt lgkmcnt(0)
        L_tk:
        s_lshl_b32 s{sT2}, s{sT1}, {TST}
        v_mov_b32 v{T[0]}, s{sT2}
        global_atomic_add v{T[3]}, v{T[0]}, v{T[1]}, s[{kDbg}:{kDbg+1}] offset:16 sc0 sc1
        s_waitcnt vmcnt(0)
        v_readfirstlane_b32 s{sT2}, v{T[3]}
        s_sub_u32 s{sT3}, s{sT3}, 1
        s_cbranch_scc1 L_tk1
        s_cmp_lt_u32 s{sT2}, 32
        s_cbranch_scc1 L_tk1
        s_add_u32 s{sT1}, s{sT1}, 1
        s_and_b32 s{sT1}, s{sT1}, 7
        s_branch L_tk
        L_tk1:
        s_lshl_b32 s{sT2}, s{sT2}, 3
        s_add_u32 s{sT2}, s{sT2}, s{sT1}
        v_mov_b32 v{T[3]}, s{sT2}
        ds_write_b32 v{T[2]}, v{T[3]}
        s_mov_b64 exec, -1
        s_waitcnt lgkmcnt(0)
        L_tk2:
        s_barrier
        ds_read_b32 v{T[3]}, v{T[2]}
        s_waitcnt lgkmcnt(0)
        v_readfirstlane_b32 s2, v{T[3]}
        s_nop 3
        s_and_b32 s2, s2, 255
        """)
        mark(10)
    a(f"""
    s_and_b32 s{sT0}, s2, 7
    s_lshr_b32 s{sT1}, s2, 3
    s_lshr_b32 s{sGrp}, s{sT0}, 1
    s_and_b32 s{sMt}, s{sT0}, 1
    s_lshl_b32 s{sMt}, s{sMt}, 3
    s_and_b32 s{sT2}, s{sT1}, 7
    s_add_u32 s{sMt}, s{sMt}, s{sT2}
    s_lshr_b32 s{sJ4}, s{sT1}, 3
    s_and_b32 s{sW4}, s{sW}, 3
    s_lshr_b32 s{sHi}, s{sW}, 2
    s_cmp_ge_u32 s{sW}, 4
    s_cbranch_scc0 L_comp
    """)
    ST = 39424; NST = 4; WOFF = 16384; EOFF = 36864
    IMG = 2 * ST; IH = 5376
    R = RegAlloc(BASE)
    bX = [R.alloc(f"bX{k}") for k in range(2)]; bW = R.alloc("bW"); bE = R.alloc("bE"); bXe = [R.alloc(f"bXe{k}") for k in range(2)]
    aX = [R.alloc(f"aX{k}") for k in range(2)]; aW = R.alloc("aW"); aE = R.alloc("aE"); aXe = [R.alloc(f"aXe{k}") for k in range(2)]
    A0 = [R.alloc(f"A0{i}") for i in range(5)]; A1 = [R.alloc(f"A1{i}") for i in range(5)]
    assert A1[1] % 2 == 0
    AE = [R.alloc(f"AE{i}") for i in range(2)]
    FX = [[R.alloc(f"FX{b}{i}", 4, 4) for i in range(4)] for b in range(2)]
    FW = [[R.alloc(f"FW{b}{i}", 4, 4) for i in range(5)] for b in range(2)]
    FXe = [R.alloc(f"FXe{b}", 4, 4) for b in range(2)]
    FE = [[R.alloc(f"FE{b}{i}", 4, 4) for i in range(2)] for b in range(2)]
    ACC = [[R.alloc(f"C{m}{n}", 4, 4) for n in range(5)] for m in range(4)]
    ACE = [R.alloc(f"CE{n}", 4, 4) for n in range(2)]
    SO = [R.alloc(f"SO{q}") for q in range(6)]
    nvmax.append(R.n)
    LX = [FX[0][0] + i for i in range(4)]; LW = [FX[0][1] + i for i in range(5)]; LE = FX[0][3]
    a(f"""
    s_setprio 2
    s_cmp_eq_u32 s{sGrp}, 3
    s_mov_b32 s{sLd}, 3840
    s_cmov_b32 s{sLd}, 1280
    s_mul_i32 s{sRot}, s{sJ4}, 3
    s_add_u32 s{sRot}, s{sRot}, s{sT2}
    s_cmp_ge_u32 s{sRot}, 10
    s_cselect_b32 s{sT0}, 10, 0
    s_sub_u32 s{sRot}, s{sRot}, s{sT0}
    {"" if ROT is True else f"s_mov_b32 s{sRot}, 0" if not ROT else f"s_and_b32 s{sRot}, s{sRot}, {ROT[0]}"+chr(10)+f"s_mul_i32 s{sRot}, s{sRot}, {ROT[1]}"}
    v_lshrrev_b32 v{T[0]}, 3, v{vL}
    s_lshl_b32 s{sT0}, s{sW4}, 5
    v_add_u32 v{T[0]}, s{sT0}, v{T[0]}
    v_mul_u32_u24 v{T[0]}, 1280, v{T[0]}
    v_and_b32 v{T[1]}, 7, v{vL}
    v_lshrrev_b32 v{T[2]}, 4, v{vL}
    v_xor_b32 v{T[1]}, v{T[1]}, v{T[2]}
    v_xor_b32 v{T[2]}, 4, v{T[1]}
    v_lshl_add_u32 v{LX[0]}, v{T[1]}, 4, v{T[0]}
    v_lshl_add_u32 v{LX[1]}, v{T[2]}, 4, v{T[0]}
    v_add_u32 v{LX[1]}, 10240, v{LX[1]}
    v_add_u32 v{LX[2]}, 20480, v{LX[0]}
    v_add_u32 v{LX[3]}, 20480, v{LX[1]}
    s_lshl_b32 s{sLd64}, s{sLd}, 6
    s_lshr_b32 s{sT0}, s{sW4}, 1
    s_mul_i32 s{sT0}, s{sT0}, 160
    s_and_b32 s{sT1}, s{sW4}, 1
    s_mul_i32 s{sT1}, s{sT1}, s{sLd}
    s_lshl_b32 s{sT1}, s{sT1}, 5
    s_add_u32 s{sM}, s{sT0}, s{sT1}
    v_mov_b32 v{T[7]}, s{sLd}
    """)
    for q in range(5):
        a(f"v_add_u32 v{T[0]}, {q*64}, v{vL}")
        divc(T[1], T[2], T[0], 10, 6554, 16)
        a(f"""
        v_lshl_add_u32 v{T[3]}, v{T[2]}, 4, s{sM}
        v_and_b32 v{T[4]}, 3, v{T[1]}
        v_and_b32 v{T[5]}, 12, v{T[1]}
        v_lshl_add_u32 v{T[4]}, v{T[5]}, 1, v{T[4]}
        v_lshrrev_b32 v{T[5]}, 4, v{T[1]}
        v_lshl_add_u32 v{T[4]}, v{T[5]}, 2, v{T[4]}
        v_mad_u32_u24 v{LW[q]}, v{T[4]}, v{T[7]}, v{T[3]}
        """)
    a(f"""
    s_mul_i32 s{sT0}, s{sW4}, 768
    v_lshlrev_b32 v{LE}, 4, v{vL}
    v_add_u32 v{LE}, s{sT0}, v{LE}
    s_lshl_b32 s{sOx}, s{sRot}, 7
    s_mul_i32 s{sOw}, s{sRot}, s{sLd64}
    s_mul_i32 s{sOe}, s{sRot}, 2560
    s_mul_i32 s{sT0}, s{sMt}, 163840
    s_mov_b32 s10, 163840
    s_mov_b32 s11, 0x00020000
    s_mov_b32 s15, 0x00020000
    s_mov_b32 s18, 25600
    s_mov_b32 s19, 0x00020000
    s_cmp_eq_u32 s{sGrp}, 3
    s_cselect_b32 s{sT1}, 0, s{sGrp}
    s_mov_b32 s14, {640*3840}
    s_cmov_b32 s14, {640*1280}
    s_waitcnt lgkmcnt(0)
    s_cselect_b32 s8, s{kBx}, s{kAx}
    s_cselect_b32 s9, s{kBx+1}, s{kAx+1}
    s_cselect_b32 s12, s{kBq}, s{kAw}
    s_cselect_b32 s13, s{kBq+1}, s{kAw+1}
    s_add_u32 s8, s8, s{sT0}
    s_addc_u32 s9, s9, 0
    s_mul_i32 s{sT1}, s{sT1}, 1280
    s_mul_i32 s{sT0}, s{sJ4}, 320
    s_add_u32 s{sT0}, s{sT0}, s{sT1}
    s_add_u32 s12, s12, s{sT0}
    s_addc_u32 s13, s13, 0
    s_sub_u32 s14, s14, s{sT0}
    s_cmp_lt_u32 s{sJ4}, 2
    s_cselect_b32 s16, s{kBk}, s{kBv}
    s_cselect_b32 s17, s{kBk+1}, s{kBv+1}
    s_lshl_b32 s{sT0}, s{sW4}, 12
    s_mul_i32 s{sT1}, s{sW4}, 5120
    s_add_u32 s{sT1}, s{sT1}, {WOFF}
    s_mul_i32 s{sT2}, s{sW4}, 768
    s_add_u32 s{sT2}, s{sT2}, {EOFF}
    s_mov_b32 s{sSt}, 0
    s_mov_b32 s{sC}, 0
    s_cmp_eq_u32 s{sGrp}, 3
    s_cbranch_scc1 L_llB
    """)
    def issue(ext):
        for q in range(4):
            a(f"s_add_u32 m0, s{sT0}, {q*1024}\ns_nop 0\nbuffer_load_dwordx4 v{LX[q]}, s[8:11], s{sOx} offen lds")
        for q in range(5):
            a(f"s_add_u32 m0, s{sT1}, {q*1024}\ns_nop 0\nbuffer_load_dwordx4 v{LW[q]}, s[12:15], s{sOw} offen lds")
        if ext:
            a(f"""
            s_mov_b32 m0, s{sT2}
            s_cmp_eq_u32 s{sW4}, 3
            s_cbranch_scc1 L_ne
            buffer_load_dwordx4 v{LE}, s[16:19], s{sOe} offen lds
            L_ne:
            s_add_u32 s{sOe}, s{sOe}, 2560
            """)
        a(f"""
        s_add_u32 s{sOx}, s{sOx}, 128
        s_add_u32 s{sOw}, s{sOw}, s{sLd64}
        s_cmp_eq_u32 s{sOx}, 1280
        s_cselect_b32 s{sOx}, 0, s{sOx}
        s_cselect_b32 s{sOw}, 0, s{sOw}
        s_cselect_b32 s{sOe}, 0, s{sOe}
        s_add_u32 s{sSt}, s{sSt}, 1
        s_and_b32 s{sSt}, s{sSt}, 3
        s_mov_b32 s{sM}, {ST}
        s_cmp_eq_u32 s{sSt}, 0
        s_cmov_b32 s{sM}, {(-3*ST) & 0xffffffff}
        s_add_u32 s{sT0}, s{sT0}, s{sM}
        s_add_u32 s{sT1}, s{sT1}, s{sM}
        s_add_u32 s{sT2}, s{sT2}, s{sM}
        """)
    for ext in (False, True):
        tag = "B" if ext else "A"
        n = 9
        a.label(f"L_ll{tag}")
        issue(ext)
        a(f"""
        s_add_u32 s{sC}, s{sC}, 1
        s_cmp_lt_u32 s{sC}, {AHEAD+1}
        s_cbranch_scc1 L_ll{tag}
        s_waitcnt vmcnt({AHEAD*n})
        s_barrier
        s_cmp_lt_u32 s{sC}, 10
        s_cbranch_scc1 L_ll{tag}
        """)
        for c in range(AHEAD):
            a(f"s_waitcnt vmcnt({(AHEAD-1-c)*n})\ns_barrier")
        if not ext: a("s_branch L_ldone")
    a.label("L_ldone")
    a(f"s_cmp_lg_u32 s{sW}, 4\ns_cbranch_scc1 L_nn")
    get_nonce()
    a(f"v_mov_b32 v{T[0]}, {LDS - 32}\nds_write_b64 v{T[0]}, {vr(vF,2)}\nL_nn:")
    a.c("loader waves: ones rows of the V image (2 heads per wave x 16 blocks), then common store setup")
    a(f"""
    s_cmp_lg_u32 s{sGrp}, 2
    s_cbranch_scc1 L_stset
    v_and_b32 v{T[0]}, 31, v{vL}
    v_mul_u32_u24 v{T[0]}, 336, v{T[0]}
    s_mul_i32 s{sT0}, s{sW4}, {2*IH}
    s_add_u32 s{sT0}, s{sT0}, {IMG + 320}
    v_add_u32 v{T[0]}, s{sT0}, v{T[0]}
    v_mov_b32 v{T[2]}, 0x3f803f80
    v_mov_b32 v{T[3]}, 0x3f803f80
    v_mov_b32 v{T[4]}, 0x3f803f80
    v_mov_b32 v{T[5]}, 0x3f803f80
    ds_write_b128 v{T[0]}, {vr(T[2],4)}
    s_branch L_stset
    """)
    assert T[2] % 2 == 0

    a.label("L_comp")
    if CPF:
        a(f"""
        v_lshlrev_b32 v{T[0]}, 7, v0
        v_min_u32 v{T[0]}, L_codeend - {name} - 8, v{T[0]}
        global_load_dword v252, v{T[0]}, s[96:97]
        """)
    a(f"""
    s_lshr_b32 s{sWm}, s{sW}, 1
    s_and_b32 s{sWn}, s{sW}, 1
    v_and_b32 v{T[0]}, 15, v{vL}
    v_lshrrev_b32 v{T[1]}, 4, v{vL}
    v_lshrrev_b32 v{T[2]}, 1, v{T[0]}
    v_xor_b32 v{T[2]}, v{T[2]}, v{T[1]}
    v_xor_b32 v{T[3]}, 4, v{T[2]}
    v_lshlrev_b32 v{T[4]}, 7, v{T[0]}
    v_lshl_add_u32 v{T[2]}, v{T[2]}, 4, v{T[4]}
    v_lshl_add_u32 v{T[3]}, v{T[3]}, 4, v{T[4]}
    s_lshl_b32 s{sT0}, s{sWm}, 13
    v_add_u32 v{bX[0]}, s{sT0}, v{T[2]}
    v_add_u32 v{bX[1]}, s{sT0}, v{T[3]}
    s_and_b32 s{sM}, s{sJ4}, 1
    s_lshl_b32 s{sM}, s{sM}, 1
    s_add_u32 s{sM}, s{sM}, s{sWn}
    s_lshl_b32 s{sT2}, s{sM}, 11
    v_add_u32 v{bXe[0]}, s{sT2}, v{bX[0]}
    v_add_u32 v{bXe[1]}, s{sT2}, v{bX[1]}
    v_lshrrev_b32 v{T[2]}, 2, v{vL}
    v_mul_u32_u24 v{T[2]}, 40, v{vL}
    v_and_b32 v{T[3]}, 3, v{vL}
    s_mul_i32 s{sT0}, s{sWn}, 10240
    v_add_u32 v{bW}, s{sT0}, v{T[2]}
    v_lshrrev_b32 v{T[2]}, 2, v{T[0]}
    v_lshl_add_u32 v{T[2]}, v{T[1]}, 3, v{T[2]}
    v_mul_u32_u24 v{T[2]}, 40, v{T[2]}
    v_lshl_add_u32 v{bE}, v{T[3]}, 3, v{T[2]}
    s_waitcnt lgkmcnt(0)
    s_add_u32 s{sT1}, s2, s{sW}
    s_cmp_lg_u32 s{sT1}, 0
    s_cbranch_scc1 L_nononce
    s_or_b32 s{sT1}, s46, 1
    v_mov_b32 v{vF}, s{sT1}
    v_mov_b32 v{vF+1}, s47
    v_mov_b32 v{T[2]}, 0
    s_mov_b64 exec, 1
    global_store_dwordx2 v{T[2]}, {vr(vF,2)}, s[{kDbg}:{kDbg+1}] sc1
    s_mov_b64 exec, -1
    L_nononce:
    """)
    if TLB:
        a.c("touch one unused line per address-translation granule of the buffers used later (scalar path)")
        gaps = [i * KVS + KV_SET for i in range(0, 33, TLB)] + [Q_OFF + (i + 1) * Q_HEAD - 128 for i in range(0, 64, 2 * TLB)] + [O_OFF - 128]
        for br in range(2): gaps += [O_OFF + br * O_BR + O_TAIL - 128, O_OFF + (br + 1) * O_BR - 128]
        gaps.append(WS_USED)
        tl = [(kWs, g) for g in gaps] + [(kOut, o) for o in range(0, 2048 * 2560, 1 << 20)] + [(kOut, 2048 * 2560 - 64), (kAo, 0), (kAo, 819136), (kBo, 0), (kBo, 819136), (kDbg, 128)]
        for w in range(4):
            a(f"s_cmp_lg_u32 s{sW}, {w}\ns_cbranch_scc1 L_tl{w}")
            for base, off in tl[w::4]:
                a(f"s_mov_b32 s98, {off}\ns_load_dword s99, s[{base}:{base+1}], s98")
            a.label(f"L_tl{w}")
    if LPF:
        a.c("linear touch of this wave's 1/1024 share of both Wo matrices")
        a(f"""
        s_lshl_b32 s{sT0}, s2, 2
        s_add_u32 s{sT0}, s{sT0}, s{sW}
        s_mul_i32 s{sT3}, s{sT0}, 800
        v_min_u32 v{T[2]}, 6, v{vL}
        v_lshl_add_u32 v{T[3]}, v{T[2]}, 7, s{sT3}
        global_load_dword v250, v{T[3]}, s[{kAo}:{kAo+1}]
        global_load_dword v251, v{T[3]}, s[{kBo}:{kBo+1}]
        """)
    for m in range(4):
        for n in range(5):
            for r in (0, 2): a(f"v_pk_mov_b32 {vr(ACC[m][n]+r,2)}, 0, 0")
    for n in range(2):
        for r in range(4): a(f"v_mov_b32 v{ACE[n]+r}, 0")
    a(f"""
    s_cmp_eq_u32 s{sGrp}, 1
    s_mov_b32 s{sScale}, 0x{QSCALE:x}
    s_cmov_b32 s{sScale}, 1.0
    v_mov_b32 v{A1[1]}, s{sScale}
    v_mov_b32 v{A1[2]}, s{sScale}
    """)
    a(f"""
    s_mov_b32 s{sSt}, 0
    s_mov_b32 s{sC}, 0
    s_cmp_eq_u32 s{sGrp}, 2
    s_cbranch_scc1 L_F
    """)
    def addr_T():
        a(f"""
        s_mul_i32 s{sT0}, s{sWn}, {4*IH}
        s_mul_i32 s{sT1}, s{sWm}, 2560
        s_add_u32 s{sT0}, s{sT0}, s{sT1}
        s_add_u32 s{sT0}, s{sT0}, {IMG}
        v_mul_u32_u24 v{T[3]}, {IH}, v{T[1]}
        v_add_u32 v{T[3]}, s{sT0}, v{T[3]}
        v_lshl_add_u32 v{A0[0]}, v{T[0]}, 4, v{T[3]}
        v_lshl_add_u32 v{A0[1]}, v{T[0]}, 3, v{T[3]}
        """)
    def addr_F():
        a(f"""
        s_mul_i32 s{sT0}, s{sWn}, {4*IH}
        s_mul_i32 s{sT1}, s{sWm}, 2688
        s_add_u32 s{sT0}, s{sT0}, s{sT1}
        s_add_u32 s{sT0}, s{sT0}, {IMG}
        v_lshrrev_b32 v{T[5]}, 1, v{T[1]}
        v_mul_u32_u24 v{T[5]}, 336, v{T[5]}
        v_and_b32 v{T[6]}, 1, v{T[1]}
        v_lshl_add_u32 v{T[5]}, v{T[6]}, 3, v{T[5]}
        v_lshrrev_b32 v{T[3]}, 2, v{T[0]}
        v_mul_u32_u24 v{T[3]}, {IH}, v{T[3]}
        v_and_b32 v{T[4]}, 3, v{T[0]}
        v_lshl_add_u32 v{T[3]}, v{T[4]}, 4, v{T[3]}
        v_add3_u32 v{A0[0]}, v{T[3]}, v{T[5]}, s{sT0}
        """)
    EIMG = IMG + 8 * IH + 1024
    def addr_E(kind):
        a(f"""
        s_lshl_b32 s{sT0}, s{sWm}, 11
        s_add_u32 s{sT0}, s{sT0}, {EIMG}
        v_and_b32 v{T[4]}, 1, v{T[1]}
        v_lshrrev_b32 v{T[5]}, 1, v{T[1]}
        """)
        if kind == "K":
            a(f"""
            s_lshl_b32 s{sT2}, s{sWn}, 8
            s_add_u32 s{sT2}, s{sT2}, s{sT0}
            v_lshlrev_b32 v{T[6]}, 9, v{T[4]}
            v_lshl_add_u32 v{T[6]}, v{T[5]}, 3, v{T[6]}
            v_lshl_add_u32 v{T[6]}, v{T[0]}, 4, v{T[6]}
            v_add_u32 v{AE[0]}, s{sT2}, v{T[6]}
            s_lshl_b32 s{sT2}, s{sWn}, 7
            s_add_u32 s{sT2}, s{sT2}, s{sT0}
            s_add_u32 s{sT2}, s{sT2}, 1024
            v_lshlrev_b32 v{T[6]}, 20, v{T[1]}
            v_lshl_add_u32 v{T[6]}, v{T[0]}, 3, v{T[6]}
            v_add_u32 v{AE[1]}, s{sT2}, v{T[6]}
            """)
        else:
            a(f"""
            s_mul_i32 s{sT2}, s{sWn}, 672
            s_add_u32 s{sT2}, s{sT2}, s{sT0}
            v_mul_u32_u24 v{T[6]}, 336, v{T[5]}
            v_lshl_add_u32 v{T[6]}, v{T[4]}, 3, v{T[6]}
            v_lshl_add_u32 v{T[6]}, v{T[0]}, 4, v{T[6]}
            v_add_u32 v{AE[0]}, s{sT2}, v{T[6]}
            v_cmp_lt_u32 vcc, 4, v{T[0]}
            v_add_u32 v{T[6]}, 256, v{AE[0]}
            v_mov_b32 v{T[7]}, {BIG}
            v_cndmask_b32 v{AE[1]}, v{T[6]}, v{T[7]}, vcc
            """)
    def reads(b, ks, ext):
        r = [f"ds_read_b128 {vr(FX[b][0],4)}, v{aX[ks]}"]
        for tn in range(5):
            for hr in range(2):
                r.append(f"ds_read_b64_tr_b16 {vr(FW[b][tn]+2*hr,2)}, v{aW} offset:{WOFF + ks*5120 + hr*2560 + tn*8}")
        for tm in range(1, 4):
            r.append(f"ds_read_b128 {vr(FX[b][tm],4)}, v{aX[ks]} offset:{tm*2048}")
        if ext:
            r.append(f"ds_read_b128 {vr(FXe[b],4)}, v{aXe[ks]}")
            for tn in range(2):
                for hr in range(2):
                    r.append(f"ds_read_b64_tr_b16 {vr(FE[b][tn]+2*hr,2)}, v{aE} offset:{EOFF + ks*1280 + hr*160 + tn*32}")
        return r
    def mf(d, x, w, orient):
        A_, B_ = (w, x) if orient == "T" else (x, w)
        return f"v_mfma_f32_16x16x32_bf16 {vr(d,4)}, {vr(A_,4)}, {vr(B_,4)}, {vr(d,4)}"
    def mfmas(b, orient, ext):
        m = [mf(ACC[tm][tn], FX[b][tm], FW[b][tn], orient) for tm in range(4) for tn in range(5)]
        if ext: m += [mf(ACE[tn], FXe[b], FE[b][tn], "T" if ext == "K" else "F") for tn in range(2)]
        return m
    def setaddr(ext):
        a(f"v_add_u32 v{aX[0]}, s{sSt}, v{bX[0]}")
        a(f"v_add_u32 v{aW}, s{sSt}, v{bW}")
        a(f"v_add_u32 v{aX[1]}, s{sSt}, v{bX[1]}")
        if ext:
            a(f"v_add_u32 v{aXe[0]}, s{sSt}, v{bXe[0]}")
            a(f"v_add_u32 v{aXe[1]}, s{sSt}, v{bXe[1]}")
            a(f"v_add_u32 v{aE}, s{sSt}, v{bE}")
        a(f"s_add_u32 s{sSt}, s{sSt}, {ST}\ns_cmp_eq_u32 s{sSt}, {ST*NST}\ns_cselect_b32 s{sSt}, 0, s{sSt}")
    def variant(tag, orient, ext):
        L = f"L_{tag}"
        setaddr(ext)
        mark(0)
        a("s_barrier")
        mark(1)
        for r in reads(0, 0, ext): a(r)
        a(f"s_branch {L}_mid")
        a.raw(".p2align 6")
        a.label(f"{L}_loop")
        a("s_barrier")
        lstamp("gs")
        interleave(a, mfmas(1, orient, ext), reads(0, 0, ext))
        a.label(f"{L}_mid")
        a("s_waitcnt lgkmcnt(0)")
        interleave(a, mfmas(0, orient, ext), reads(1, 1, ext))
        setaddr(ext)
        a(f"s_add_u32 s{sC}, s{sC}, 1\ns_cmp_lt_u32 s{sC}, 10\ns_waitcnt lgkmcnt(0)\ns_cbranch_scc1 {L}_loop")
        for m in mfmas(1, orient, ext): a(m)
        mark(2)
        P = FX[0][0]; k = 0
        for tm in range(4):
            for tn in range(5):
                c = ACC[tm][tn]; p = P + 2 * (k % 8); k += 1
                if orient == "T":
                    for r in (0, 2): a(f"v_pk_mul_f32 {vr(c+r,2)}, {vr(c+r,2)}, {vr(A1[1],2)}")
                a(f"v_cvt_pk_bf16_f32 v{c}, v{c}, v{c+1}")
                a(f"v_cvt_pk_bf16_f32 v{c+1}, v{c+2}, v{c+3}")
                if orient == "T":
                    if tn < 4: a(f"ds_write_b64 v{A0[0]}, {vr(c,2)} offset:{(tm>>1)*1280 + (tm&1)*256 + (tn&1)*512 + (tn>>1)*8}")
                    else: a(f"ds_write_b64 v{A0[1]}, {vr(c,2)} offset:{(tm>>1)*1280 + 1024 + (tm&1)*128}")
                else:
                    a(f"ds_write_b64 v{A0[0]}, {vr(c,2)} offset:{tm*672 + tn*64}")
        if ext:
            if ext == "V":
                a(f"v_and_b32 v{T[0]}, 15, v{vL}\nv_cmp_eq_u32 vcc, 4, v{T[0]}\nv_mov_b32 v{T[6]}, 0x3f803f80")
            for tn in range(2):
                c = ACE[tn]
                a(f"v_cvt_pk_bf16_f32 v{c}, v{c}, v{c+1}")
                a(f"v_cvt_pk_bf16_f32 v{c+1}, v{c+2}, v{c+3}")
                if ext == "V" and tn == 1:
                    a(f"v_cndmask_b32 v{c}, v{c}, v{T[6]}, vcc\nv_cndmask_b32 v{c+1}, v{c+1}, v{T[6]}, vcc")
                a(f"ds_write_b64 v{AE[tn]}, {vr(c,2)}")
        a("s_branch L_stset")
    def store_setup():
        a(f"""
        s_cmp_eq_u32 s{sGrp}, 2
        s_cselect_b32 s{sCT}, 1, 0
        s_cselect_b32 s{sT3}, 1280, 0
        s_cmp_eq_u32 s{sGrp}, 1
        s_cselect_b32 s{sT0}, 1, s{sCT}
        s_cmp_eq_u32 s{sT0}, 1
        s_mov_b32 s{sHS}, {Q_HEAD}
        s_cmov_b32 s{sHS}, {KVS}
        s_mov_b32 s{sTS}, 1280
        s_cmov_b32 s{sTS}, {TILE}
        s_mov_b32 s{sT0}, {Q_OFF}
        s_cmov_b32 s{sT0}, {KV_OFF}
        s_add_u32 s{sT0}, s{sT0}, s{sT3}
        s_cmp_eq_u32 s{sGrp}, 3
        s_cselect_b32 s{sT1}, 32, 0
        s_lshl_b32 s{sT2}, s{sJ4}, 3
        s_add_u32 s{sT1}, s{sT1}, s{sT2}
        s_add_u32 s{sT1}, s{sT1}, s{sW}
        s_mul_i32 s{sT1}, s{sT1}, s{sHS}
        s_add_u32 s{sT0}, s{sT0}, s{sT1}
        s_lshl_b32 s{sT1}, s{sTS}, 2
        s_mul_i32 s{sT2}, s{sT1}, s{sMt}
        s_add_u32 s{sT0}, s{sT0}, s{sT2}
        s_sub_u32 s{sT1}, s{sT1}, s{sT3}
        """)
        srd(8, kWs, f"s{sT0}", f"s{sT1}")
        a(f"""
        s_cmp_eq_u32 s{sCT}, 1
        s_mov_b32 s{sCT}, 80
        s_cmov_b32 s{sCT}, 84
        s_mov_b32 s{sT0}, 820
        s_cmov_b32 s{sT0}, 781
        s_lshl_b32 s{sT2}, s{sCT}, 4
        s_sub_u32 s{sT2}, s{sTS}, s{sT2}
        """)
        for q in range(6):
            a(f"""
            v_add_u32 v{T[0]}, {64*q}, v{vL}
            v_mul_u32_u24 v{T[1]}, s{sT0}, v{T[0]}
            v_lshrrev_b32 v{T[1]}, 16, v{T[1]}
            v_lshlrev_b32 v{T[0]}, 4, v{T[0]}
            v_mad_u32_u24 v{SO[q]}, v{T[1]}, s{sT2}, v{T[0]}
            """)
        a(f"""
        s_lshl_b32 s{sFl}, s{sGrp}, 2
        s_add_u32 s{sFl}, s{sFl}, s{sJ4}
        s_lshl_b32 s{sFl}, s{sFl}, 4
        s_add_u32 s{sFl}, s{sFl}, s{sMt}
        s_lshl_b32 s{sFl}, s{sFl}, 3
        s_add_u32 s{sFl}, s{sFl}, {F1}
        """)
    def pre():
        a(f"v_and_b32 v{T[0]}, 15, v{vL}\nv_lshrrev_b32 v{T[1]}, 4, v{vL}")
    pre(); addr_T()
    a(f"s_cmp_eq_u32 s{sGrp}, 3\ns_cbranch_scc1 L_B")
    variant("T", "T", None)
    a.label("L_B")
    a(f"s_cmp_lt_u32 s{sJ4}, 2\ns_cbranch_scc0 L_BV")
    addr_E("K"); variant("TK", "T", "K")
    a.label("L_BV")
    addr_E("V"); variant("TV", "T", "V")
    a.label("L_F")
    pre(); addr_F(); variant("F", "F", None)
    a.label("L_stset")
    store_setup()
    a.label("L_stgo")
    SD = FX[0][0]
    a(f"""
    s_mul_i32 s{sT0}, s{sW}, {IH}
    s_add_u32 s{sT0}, s{sT0}, {IMG}
    v_lshl_add_u32 v{T[0]}, v{vL}, 4, s{sT0}
    s_waitcnt lgkmcnt(0)
    s_barrier
    """)
    a(f"""
    v_mov_b32 v{T[1]}, {LDS - 32}
    ds_read_b64 {vr(vF,2)}, v{T[1]}
    s_cmp_lg_u32 s{sGrp}, 3
    s_cbranch_scc1 L_noe
    s_cmp_eq_u32 s{sHi}, 0
    s_cbranch_scc1 L_noe
    s_lshl_b32 s{sT0}, s{sW4}, 10
    s_add_u32 s{sT0}, s{sT0}, {EIMG}
    v_lshl_add_u32 v{T[1]}, v{vL}, 4, s{sT0}
    ds_read_b128 {vr(SD+20,4)}, v{T[1]}
    s_and_b32 s{sT1}, s{sW4}, 2
    s_and_b32 s{sT2}, s{sJ4}, 1
    s_add_u32 s{sT1}, s{sT1}, s{sT2}
    s_lshl_b32 s{sT2}, s{sMt}, 2
    s_add_u32 s{sT1}, s{sT1}, s{sT2}
    s_mul_i32 s{sT1}, s{sT1}, {TILE}
    s_add_u32 s{sT1}, s{sT1}, {KV_OFF + 32*KVS}
    s_cmp_lt_u32 s{sJ4}, 2
    s_cselect_b32 s{sT2}, 0, 1280
    s_mov_b32 s{sT3}, 1344
    s_cmov_b32 s{sT3}, 1280
    s_add_u32 s{sT1}, s{sT1}, s{sT2}
    """)
    srd(12, kWs, f"s{sT1}", f"s{sT3}")
    a(f"""
    s_and_b32 s{sT0}, s{sW4}, 1
    s_lshl_b32 s{sT0}, s{sT0}, 10
    v_lshl_add_u32 v{T[1]}, v{vL}, 4, s{sT0}
    s_waitcnt lgkmcnt(0)
    buffer_store_dwordx4 {vr(SD+20,4)}, v{T[1]}, s[12:15], 0 offen {SS}
    L_noe:
    """)
    for q in range(5): a(f"ds_read_b128 {vr(SD+4*q,4)}, v{T[0]} offset:{q*1024}")
    for q in range(5):
        a(f"s_waitcnt lgkmcnt({4-q})\nbuffer_store_dwordx4 {vr(SD+4*q,4)}, v{SO[q]}, s[8:11], 0 offen {SS}")
    a(f"""
    s_cmp_lg_u32 s{sGrp}, 2
    s_cbranch_scc1 L_no6
    ds_read_b128 {vr(SD+20,4)}, v{T[0]} offset:5120
    s_waitcnt lgkmcnt(0)
    buffer_store_dwordx4 {vr(SD+20,4)}, v{SO[5]}, s[8:11], 0 offen {SS}
    L_no6:
    """)
    mark(3)

    R = RegAlloc(BASE)
    vK = [R.alloc("aK0"), R.alloc("aK1")]; vK1 = [R.alloc("aKa"), R.alloc("aKb")]; vV = [R.alloc("aV0"), R.alloc("aV1")]
    vIdx = R.alloc("idx"); vD = R.alloc("dma"); vM = [R.alloc("Ma"), R.alloc("Mb")]
    vOst = R.alloc("ost"); vOst2 = R.alloc("ost2"); vP = R.alloc("pk", 4, 2)
    R.n = max(R.n, SD + 24)
    Q0 = [R.alloc(f"Q0{s}", 4, 4) for s in range(2)]
    Q1 = [R.alloc(f"Q1{s}", 2, 2) for s in range(2)]
    K0 = [R.alloc(f"K0{i}", 4, 4) for i in range(2)]
    K1 = [R.alloc(f"K1{i}", 2, 2) for i in range(2)]
    V = [[R.alloc(f"V{i}{j}", 4, 4) for j in range(2)] for i in range(2)]
    S = [[R.alloc(f"S{s}{p}", 16, 4) for p in range(2)] for s in range(2)]
    O = [R.alloc(f"O{s}", 16, 4) for s in range(2)]
    assert R.n <= SO[0]
    nvmax.append(R.n)
    sHead, sTok, sBr, sOff, sF3, sGo = 28, 29, 30, 31, 32, 33
    R = RegAlloc(O[1] + 16)
    OW = [[R.alloc(f"OW{p}{q}") for q in range(5)] for p in range(2)]
    oM = R.alloc("oM"); oT = R.alloc("oT"); oF = R.alloc("oF"); oW = [R.alloc(f"oW{i}") for i in range(3)]; oS = [R.alloc("oS0"), R.alloc("oS1")]
    nvmax.append(R.n)
    R = RegAlloc(BASE)
    OF = [R.alloc(f"OF{k}", 4, 4) for k in range(16)]
    OT = [R.alloc(f"OT{k}", 2, 2) for k in range(8)]
    WB = [[[R.alloc(f"WB{b}{h}{t}", 4, 4) for t in range(5)] for h in range(2)] for b in range(2)]
    WT4 = [R.alloc(f"WT{t}", 4, 4) for t in range(5)]
    WT = [[WT4[t] + 2 * b for t in range(5)] for b in range(2)]
    assert OT[0] % 4 == 0
    assert R.n <= OW[0][0]
    OC = [228 + 4 * t for t in range(5)]
    WL = GROUP
    sNt, sDone, sRdy, sBo, sTo = 34, 35, 36, 37, 40
    for q in range(5):
        a(f"v_add_u32 v{T[0]}, {64*q}, v{vL}")
        divc(T[1], T[2], T[0], 10, 6554, 16)
        a(f"""
        v_lshrrev_b32 v{T[4]}, 4, v{T[1]}
        v_and_b32 v{T[5]}, 3, v{T[1]}
        v_bfe_u32 v{T[6]}, v{T[1]}, 3, 1
        v_mul_u32_u24 v{T[6]}, 20, v{T[6]}
        v_and_b32 v{T[7]}, 4, v{T[1]}
        v_add3_u32 v{T[6]}, v{T[6]}, v{T[7]}, v{T[5]}
        v_lshl_add_u32 v{T[6]}, v{T[4]}, 3, v{T[6]}
        v_mul_u32_u24 v{T[6]}, 1280, v{T[6]}
        v_lshl_add_u32 v{OW[0][q]}, v{T[2]}, 4, v{T[6]}
        v_lshrrev_b32 v{T[6]}, 2, v{T[1]}
        v_mul_u32_u24 v{T[6]}, 20, v{T[6]}
        v_add3_u32 v{T[6]}, v{T[6]}, v{T[5]}, 16
        v_mul_u32_u24 v{T[6]}, 1280, v{T[6]}
        v_lshl_add_u32 v{OW[1][q]}, v{T[2]}, 4, v{T[6]}
        """)
    a(f"""
    s_and_b32 s{sT0}, s2, 7
    s_lshr_b32 s{sT1}, s2, 3
    s_lshr_b32 s{sBo}, s{sT0}, 2
    s_and_b32 s{sT0}, s{sT0}, 3
    s_lshl_b32 s{sT0}, s{sT0}, 2
    s_and_b32 s{sT2}, s{sT1}, 3
    s_add_u32 s{sT0}, s{sT0}, s{sT2}
    s_lshr_b32 s{sNt}, s{sT1}, 2
    s_lshl_b32 s{sTo}, s{sT0}, 7
    s_lshl_b32 s{sT0}, s{sW}, 4
    s_add_u32 s{sTo}, s{sTo}, s{sT0}
    v_and_b32 v{T[4]}, 15, v{vL}
    v_lshrrev_b32 v{T[1]}, 4, v{vL}
    v_add_u32 v{T[5]}, s{sTo}, v{T[4]}
    v_lshlrev_b32 v{oM}, 15, v{T[1]}
    v_lshl_add_u32 v{oM}, v{T[5]}, 4, v{oM}
    v_lshlrev_b32 v{oT}, 14, v{T[1]}
    v_lshl_add_u32 v{oT}, v{T[5]}, 3, v{oT}
    v_lshrrev_b32 v{T[6]}, 2, v{vL}
    v_mul_u32_u24 v{T[6]}, 160, v{T[6]}
    v_and_b32 v{T[7]}, 3, v{vL}
    v_lshl_add_u32 v{oW[1]}, v{T[7]}, 3, v{T[6]}
    v_add_u32 v{oW[1]}, {WL}, v{oW[1]}
    v_mul_u32_u24 v{T[4]}, 2560, v{T[4]}
    v_lshl_add_u32 v{oS[1]}, v{T[1]}, 3, v{T[4]}
    v_and_b32 v{T[6]}, 1, v{T[1]}
    v_lshl_add_u32 v{T[6]}, v{T[6]}, 5, v{T[4]}
    v_lshrrev_b32 v{T[1]}, 1, v{T[1]}
    v_lshl_add_u32 v{oS[0]}, v{T[1]}, 4, v{T[6]}
    s_lshl_b32 s{sT0}, s{sNt}, 11
    s_lshl_b32 s{sT1}, s{sBo}, 10
    s_add_u32 s{sT0}, s{sT0}, s{sT1}
    s_lshr_b32 s{sT1}, s{sTo}, 9
    s_lshl_b32 s{sT1}, s{sT1}, 8
    s_add_u32 s{sT0}, s{sT0}, s{sT1}
    s_add_u32 s{sT0}, s{sT0}, {F3}
    v_and_b32 v{oF}, 31, v{vL}
    v_lshl_add_u32 v{oF}, v{oF}, 3, s{sT0}
    s_cmp_eq_u32 s{sBo}, 0
    s_cselect_b32 s{sT0}, s{kAo}, s{kBo}
    s_cselect_b32 s{sT1}, s{kAo+1}, s{kBo+1}
    s_mul_i32 s{sT2}, s{sNt}, 160
    s_add_u32 s92, s{sT0}, s{sT2}
    s_addc_u32 s93, s{sT1}, 0
    s_sub_u32 s94, {640*1280}, s{sT2}
    s_mov_b32 s95, 0x00020000
    """)
    a(f"""
    s_and_b32 s{sT0}, s2, 7
    s_lshr_b32 s{sT1}, s2, 3
    s_lshr_b32 s{sBr}, s{sT1}, 4
    s_bfe_u32 s{sT2}, s{sT1}, 0x20002
    s_lshl_b32 s{sHead}, s{sT0}, 2
    s_add_u32 s{sHead}, s{sHead}, s{sT2}
    s_and_b32 s{sT3}, s{sT1}, 3
    s_lshl_b32 s{sTok}, s{sT3}, 9
    s_lshl_b32 s{sT1}, s{sW}, 6
    s_add_u32 s{sTok}, s{sTok}, s{sT1}
    v_and_b32 v{T[0]}, 31, v{vL}
    v_lshrrev_b32 v{T[1]}, 5, v{vL}
    v_lshlrev_b32 v{vK[0]}, 4, v{vL}
    v_lshlrev_b32 v{vD}, 4, v{vL}
    v_lshlrev_b32 v{vK1[0]}, 3, v{T[0]}
    v_lshl_add_u32 v{vK1[0]}, v{T[1]}, 2, v{vK1[0]}
    v_cmp_eq_u32 vcc, 24, v{T[0]}
    v_mov_b32 v{T[3]}, 20
    v_mov_b32 v{T[4]}, {BIG}
    v_cndmask_b32 v{T[2]}, v{T[0]}, v{T[3]}, vcc
    v_mul_u32_u24 v{vV[0]}, 336, v{T[1]}
    v_lshl_add_u32 v{vV[0]}, v{T[2]}, 4, v{vV[0]}
    v_cmp_lt_u32 vcc, 20, v{T[2]}
    v_mov_b32 v{vIdx}, 0xdddddddd
    v_mov_b32 v{K1[0]+1}, 0x3f80
    v_cndmask_b32 v{vV[0]}, v{vV[0]}, v{T[4]}, vcc
    v_cmp_eq_u32 vcc, 20, v{T[0]}
    v_mov_b32 v{K1[1]+1}, 0x3f80
    v_mov_b32 v{Q1[0]+1}, 0
    v_cndmask_b32 v{vV[0]}, v{vV[0]}, v{T[4]}, vcc
    v_mov_b32 v{Q1[1]+1}, 0
    v_add_u32 v{vK[1]}, {3*GROUP}, v{vK[0]}
    v_add_u32 v{vK1[1]}, {3*GROUP}, v{vK1[0]}
    v_add_u32 v{vV[1]}, {3*GROUP}, v{vV[0]}
    s_mul_i32 s{sT1}, s{sBr}, {O_BR}
    s_add_u32 s{sT1}, s{sT1}, {O_OFF}
    """)
    srd(16, kWs, f"s{sT1}", O_BR)
    a(f"""
    s_lshl_b32 s{sT2}, s{sHead}, 16
    s_lshl_b32 s{sT1}, s{sTok}, 4
    s_add_u32 s{sT2}, s{sT2}, s{sT1}
    v_lshlrev_b32 v{vOst}, 15, v{T[1]}
    v_lshl_add_u32 v{vOst}, v{T[0]}, 4, v{vOst}
    v_add_u32 v{vOst}, s{sT2}, v{vOst}
    s_lshl_b32 s{sT2}, s{sHead}, 14
    s_lshl_b32 s{sT1}, s{sTok}, 3
    s_add_u32 s{sT2}, s{sT2}, s{sT1}
    s_add_u32 s{sT2}, s{sT2}, {O_TAIL}
    v_lshlrev_b32 v{vOst2}, 3, v{T[0]}
    v_lshl_add_u32 v{vOst2}, v{T[1]}, 24, v{vOst2}
    v_add_u32 v{vOst2}, s{sT2}, v{vOst2}
    s_lshl_b32 s{sF3}, s{sBr}, 10
    s_lshl_b32 s{sT1}, s{sT3}, 8
    s_add_u32 s{sF3}, s{sF3}, s{sT1}
    s_lshl_b32 s{sT1}, s{sHead}, 3
    s_add_u32 s{sF3}, s{sF3}, s{sT1}
    s_add_u32 s{sF3}, s{sF3}, {F3}
    """)
    a.c("flag addresses to poll (T5): B: slots 12..15 ; A: lanes 0-15 K slot, 16-31 V slot, 32-63 Q slot (own 4 mt)")
    a(f"""
    s_lshr_b32 s{sT1}, s{sHead}, 3
    s_lshl_b32 s{sT1}, s{sT1}, 7
    v_and_b32 v{T[2]}, 15, v{vL}
    v_lshrrev_b32 v{T[3]}, 4, v{vL}
    v_add_u32 v{T[3]}, 1, v{T[3]}
    v_lshlrev_b32 v{T[3]}, 9, v{T[3]}
    v_lshl_add_u32 v{T[3]}, v{T[2]}, 3, v{T[3]}
    v_and_b32 v{T[2]}, 3, v{vL}
    s_lshl_b32 s{sT2}, s{sT3}, 5
    v_lshl_add_u32 v{T[2]}, v{T[2]}, 3, s{sT2}
    v_cmp_gt_u32 vcc, 32, v{vL}
    v_lshlrev_b32 v{T[4]}, 3, v{vL}
    v_add_u32 v{T[4]}, {12*128}, v{T[4]}
    v_cndmask_b32 v{T[5]}, v{T[2]}, v{T[3]}, vcc
    v_add_u32 v{T[5]}, s{sT1}, v{T[5]}
    s_cmp_eq_u32 s{sBr}, 0
    s_cselect_b64 vcc, -1, 0
    s_and_b32 s{sT1}, s2, {NR-1}
    s_lshl_b32 s{sT1}, s{sT1}, 11
    s_add_u32 s{sT1}, s{sT1}, {F1}
    v_cndmask_b32 v{T[5]}, v{T[4]}, v{T[5]}, vcc
    v_add_u32 v{T[5]}, s{sT1}, v{T[5]}
    """)
    for s in range(2):
        for r in range(16): a(f"v_mov_b32 v{O[s]+r}, 0")
    for r in range(8, 16): a(f"v_mov_b32 v{S[1][1]+r}, 0")
    for r in range(4): a(f"v_mov_b32 v{V[1][1]+r}, 0")
    a(f"""
    s_cmp_eq_u32 s{sBr}, 0
    s_cselect_b32 s{sT1}, s{sHead}, 32
    s_mul_i32 s{sT1}, s{sT1}, {KVS}
    s_lshl_b32 s{sT2}, s{sBr}, 5
    s_add_u32 s{sT2}, s{sT2}, s{sHead}
    s_mul_i32 s{sT2}, s{sT2}, {Q_HEAD}
    s_mul_i32 s{sT3}, s{sTok}, 40
    s_add_u32 s{sT2}, s{sT2}, s{sT3}
    s_add_u32 s{sT2}, s{sT2}, {Q_OFF}
    """)
    a(f"v_readfirstlane_b32 s{sN}, v{vF}\nv_readfirstlane_b32 s{sN+1}, v{vF+1}\ns_waitcnt vmcnt(0)")
    srd(8, kWs, f"s{sT1}", KV_SET)
    srd(12, kWs, f"s{sT2}", 2560)
    a(f"""
    s_barrier
    s_cmp_lg_u32 s{sW}, 0
    s_cbranch_scc1 L_f1w
    """)
    put_flag(sFl, 11, NR)
    if PRE: a(f"s_sleep {PRE}")
    mark(4)
    a(f"""
    s_mov_b32 s{sSpin}, {SPIN}
    {f"global_load_dwordx2 {vr(vP,2)}, v{T[5]}, s[{kWs}:{kWs+1}] sc1"+chr(10)+"s_sleep 8" if PP else ""}
    L_f1l:
    global_load_dwordx2 {vr(vF,2)}, v{T[5]}, s[{kWs}:{kWs+1}] sc1
    """)
    if PP:
        a(f"""
        s_waitcnt vmcnt(1)
        v_cmp_ne_u64 vcc, s[{sN}:{sN+1}], {vr(vP,2)}
        s_cbranch_vccz L_f1w
        global_load_dwordx2 {vr(vP,2)}, v{T[5]}, s[{kWs}:{kWs+1}] sc1
        """)
    a(f"""
    s_waitcnt vmcnt({1 if PP else 0})
    v_cmp_ne_u64 vcc, s[{sN}:{sN+1}], {vr(vF,2)}
    s_sub_u32 s{sSpin}, s{sSpin}, 1
    s_cbranch_scc1 L_f1w
    s_cbranch_vccnz L_f1l
    L_f1w:
    s_barrier
    """)
    mark(5)
    if not EARLY:
      for s in range(2):
        a(f"buffer_load_dwordx4 {vr(Q0[s],4)}, v{vK[0]}, s[12:15], 0 offen offset:{1280*s} {SC}")
        a(f"buffer_load_dword v{Q1[s]}, v{vK1[0]}, s[12:15], 0 offen offset:{1280*s+1024} {SC}")
    a(f"s_lshl_b32 s{sOff}, s{sW}, 10")
    dma = f"buffer_load_dwordx4 v{vD}, s[8:11], s{sOff} offen {SC} lds"
    kd = f"s_mov_b32 m0, s{sOff}\ns_nop 0\n{dma}\ns_add_u32 s{sOff}, s{sOff}, 8192"
    for k in range(1 if EARLY else 4): a(kd)
    if EARLY:
      for s in range(2):
        a(f"buffer_load_dwordx4 {vr(Q0[s],4)}, v{vK[0]}, s[12:15], 0 offen offset:{1280*s} {SC}")
        a(f"buffer_load_dword v{Q1[s]}, v{vK1[0]}, s[12:15], 0 offen offset:{1280*s+1024} {SC}")
      a(kd)
    def qk1(s, Tt): p = Tt % 2; return f"v_mfma_f32_32x32x16_bf16 {vr(S[s][p],16)}, {vr(K0[p],4)}, {vr(Q0[s],4)}, 0"
    def qk2(s, Tt): p = Tt % 2; return f"v_mfma_f32_32x32x8_bf16 {vr(S[s][p],16)}, {vr(K1[p],2)}, {vr(Q1[s],2)}, {vr(S[s][p],16)}"
    def pv(s, Tt, h): p = Tt % 2; return f"v_smfmac_f32_32x32x32_bf16 {vr(O[s],16)}, {vr(V[p][h],4)}, {vr(S[s][p]+8*h,8)}, v{vIdx}"
    def rowmax(first):
        for s in range(2):
            x = S[s][0]
            if first:
                a(f"v_max3_f32 v{vM[s]}, v{x}, v{x+1}, v{x+2}")
                for r in range(3, 15, 2): a(f"v_max3_f32 v{vM[s]}, v{x+r}, v{x+r+1}, v{vM[s]}")
                a(f"v_max_f32 v{vM[s]}, v{x+15}, v{vM[s]}")
            else:
                for r in range(0, 16, 2): a(f"v_max3_f32 v{vM[s]}, v{x+r}, v{x+r+1}, v{vM[s]}")
    def crossmax():
        a(f"""
        v_mov_b32 v{T[0]}, v{vM[0]}
        v_mov_b32 v{T[1]}, v{vM[1]}
        s_nop 1
        v_permlane32_swap_b32 v{T[0]}, v{vM[0]}
        v_permlane32_swap_b32 v{T[1]}, v{vM[1]}
        s_nop 1
        v_max_f32 v{vM[0]}, v{vM[0]}, v{T[0]}
        v_max_f32 v{vM[1]}, v{vM[1]}, v{T[1]}
        """)
    a(f"s_waitcnt vmcnt({1 if EARLY else 3})\ns_barrier")
    mark(6)
    a(f"""
    ds_read_b128 {vr(K0[0],4)}, v{vK[0]}
    ds_read_b32 v{K1[0]}, v{vK1[0]} offset:1024
    ds_read_b128 {vr(K0[1],4)}, v{vK[0]} offset:{TILE}
    ds_read_b32 v{K1[1]}, v{vK1[0]} offset:{TILE+1024}
    ds_read_b128 {vr(V[0][0],4)}, v{vV[0]} offset:1280
    ds_read_b128 {vr(V[0][1],4)}, v{vV[0]} offset:{1280+672}
    s_waitcnt lgkmcnt(4)
    {qk1(0,0)}
    {qk2(0,0)}
    {qk1(1,0)}
    {qk2(1,0)}
    v_cmp_gt_u32 vcc, 32, v{vL}
    {kd + chr(10) + kd + chr(10) + "s_nop 0" if EARLY else "s_nop 8"}
    """)
    rowmax(True)
    crossmax()
    for s in range(2):
        a(f"""
        v_sub_f32 v{T[2]}, 0, v{vM[s]}
        v_and_b32 v{T[3]}, 0xffff0000, v{T[2]}
        v_sub_f32 v{T[4]}, v{T[2]}, v{T[3]}
        v_and_b32 v{T[4]}, 0xffff0000, v{T[4]}
        v_cndmask_b32 v{T[5]}, v{T[4]}, v{T[3]}, vcc
        v_lshrrev_b32 v{Q1[s]+1}, 16, v{T[5]}
        v_add_f32 v{vP+2*s}, v{T[3]}, v{T[4]}
        v_add_f32 v{vP+2*s+1}, v{T[3]}, v{T[4]}
        """)
    for s in range(2):
        for r in range(0, 16, 2): a(f"v_pk_add_f32 {vr(S[s][0]+r,2)}, {vr(S[s][0]+r,2)}, {vr(vP+2*s,2)}")
    a(f"""
    s_mov_b32 s{sC}, 0
    s_setprio 1
    s_waitcnt vmcnt(2) lgkmcnt(0)
    s_barrier
    """)
    mark(7)
    def body(first):
        for t in range(16):
            Tt = 16 + t
            def ad(regs, tl, o):
                return f"v{regs[1]} offset:{(tl-12)*TILE+o}" if 12 <= tl < 16 else f"v{regs[0]} offset:{tl*TILE+o}"
            for s in range(2):
                X = S[s][Tt % 2]
                e = lambda i: a(f"v_exp_f32 v{X+i}, v{X+i}")
                e(0); e(1)
                if s == 0:
                    a(pv(1, Tt - 1, 1))
                    a(f"ds_read_b128 {vr(V[(Tt+1)%2][0],4)}, {ad(vV,t+1,1280)}")
                else:
                    a(pv(0, Tt, 1))
                    if first: a(f"s_mov_b32 m0, s{sOff}")
                    if stamp and "as" in DBG and t % 4 == 0: a("s_memtime s[88:89]")
                    a(f"ds_read_b128 {vr(V[(Tt+1)%2][1],4)}, {ad(vV,t+1,1952)}")
                e(2); e(3); e(4); e(5)
                a(qk1(s, Tt + 1))
                if s == 0: a(f"ds_read_b128 {vr(K0[Tt%2],4)}, {ad(vK,t+2,0)}")
                elif first: a(dma)
                elif t == 15: a(f"s_add_u32 s{sC}, s{sC}, 1")
                e(6); e(7); e(8); e(9)
                a(pv(s, Tt, 0))
                if s == 0:
                    a("s_waitcnt lgkmcnt(2)")
                    a(f"ds_read_b32 v{K1[Tt%2]}, {ad(vK1,t+2,1024)}")
                else:
                    if first: a(f"s_add_u32 s{sOff}, s{sOff}, 8192")
                    if stamp and "as" in DBG and t % 4 == 0:
                        a(f"s_waitcnt lgkmcnt(0)\ns_sub_u32 s88, s88, s48\ns_mov_b32 m0, s63\ns_add_u32 s63, s63, 1\nv_writelane_b32 v255, s88, m0")
                    a("s_waitcnt lgkmcnt(1)")
                    if not first and t == BT:
                        a(f"s_cmp_eq_u32 s{sC}, 3\ns_cbranch_scc1 L_bal\nL_balr:")
                e(10); e(11); e(12); e(13)
                a(qk2(s, Tt + 1))
                e(14); e(15)
            if first and t % 4 == 3:
                a("s_waitcnt vmcnt(4)\ns_barrier")
    def bump():
        for r in (vK, vK1, vV): a(f"v_add_u32 v{r[0]}, {4*GROUP}, v{r[0]}")
        a(f"""
        s_cmp_eq_u32 s{sC}, 3
        s_mov_b32 s{sT0}, {4*GROUP}
        s_cmov_b32 s{sT0}, {(4*GROUP - 15*GROUP) & 0xffffffff}
        """)
        for r in (vK, vK1, vV): a(f"v_add_u32 v{r[1]}, s{sT0}, v{r[1]}")
    a.raw(".p2align 6")
    body(True)
    a.c("group 15 -> slot 0 (all waves are past group 0)")
    a(f"""
    s_lshl_b32 s{sT0}, s{sW}, 11
    s_min_u32 s{sT1}, s{sT0}, {GROUP-1024}
    s_mov_b32 m0, s{sT1}
    s_add_u32 s{sOff}, s{sT1}, {15*GROUP}
    {dma}
    s_add_u32 s{sT0}, s{sT0}, 1024
    s_min_u32 s{sT1}, s{sT0}, {GROUP-1024}
    s_mov_b32 m0, s{sT1}
    s_add_u32 s{sOff}, s{sT1}, {15*GROUP}
    {dma}
    s_mov_b32 s{sC}, 1
    """)
    bump()
    a.raw(".p2align 6")
    a.label("L_loop")
    body(False)
    a(f"""
    s_cmp_eq_u32 s{sC}, 4
    s_cbranch_scc1 L_adone
    """)
    bump()
    a(f"""
    s_cmp_lg_u32 s{sC}, 2
    s_cbranch_scc1 L_loop
    s_waitcnt vmcnt(0)
    s_barrier
    s_cmp_eq_u32 s{sHi}, 0
    s_cbranch_scc1 L_wpf
    s_setprio 2
    s_branch L_loop
    L_adone:
    s_setprio 3
    s_waitcnt lgkmcnt(0)
    {pv(1, 31, 1)}
    """)
    mark(8)
    lo, hi = 0x2b800000, 0x5d800000
    if force_fallback: lo = 0x7f000000
    lb = lambda s: f"v_mov_b32 v{O[s]+13}, v{O[s]+12}\ns_nop 1\nv_permlane32_swap_b32 v{O[s]+12}, v{O[s]+13}\ns_nop 1"
    for s in range(2):
        a(lb(s))
        a(f"v_mov_b32 v{T[s]}, v{O[s]+12}")
        for r in range(12): a(f"v_fma_f32 v{T[s]}, v{O[s]+r}, 0, v{T[s]}")
    a(f"""
    v_cmp_le_f32 vcc, 0x{lo:x}, v{T[0]}
    s_mov_b64 s[{sM0}:{sM1}], vcc
    v_cmp_le_f32 vcc, 0x{lo:x}, v{T[1]}
    s_and_b64 s[{sM0}:{sM1}], s[{sM0}:{sM1}], vcc
    v_cmp_ge_f32 vcc, 0x{hi:x}, v{T[0]}
    s_and_b64 s[{sM0}:{sM1}], s[{sM0}:{sM1}], vcc
    v_cmp_ge_f32 vcc, 0x{hi:x}, v{T[1]}
    s_and_b64 s[{sM0}:{sM1}], s[{sM0}:{sM1}], vcc
    s_cmp_eq_u64 s[{sM0}:{sM1}], -1
    s_cbranch_scc0 L_fallback
    L_store:
    v_rcp_f32 v{vP}, v{O[0]+12}
    v_rcp_f32 v{vP+2}, v{O[1]+12}
    v_mov_b32 v{vP+1}, v{vP}
    v_mov_b32 v{vP+3}, v{vP+2}
    """)
    for s in range(2):
        for r in range(0, 12, 2): a(f"v_pk_mul_f32 {vr(O[s]+r,2)}, {vr(O[s]+r,2)}, {vr(vP+2*s,2)}")
        for r in range(6): a(f"v_cvt_pk_bf16_f32 v{S[s][0]+r}, v{O[s]+2*r}, v{O[s]+2*r+1}")
        a(f"buffer_store_dwordx4 {vr(S[s][0],4)}, v{vOst}, s[16:19], 0 offen offset:{512*s} {SS}")
        a(f"buffer_store_dwordx2 {vr(S[s][0]+4,2)}, v{vOst2}, s[16:19], 0 offen offset:{256*s} {SS}")

    sU = [3, 4, 5, 6, 7, 12, 13, 14]
    def blk(pat):
        for q in range(5):
            a(f"s_add_u32 m0, s{sT0}, {WL + q*1024}\ns_nop 0\nbuffer_load_dwordx4 v{OW[pat][q]}, s[92:95], s{sT1} offen lds")
    a(f"""
    s_mul_i32 s{sT0}, s{sBo}, {O_BR}
    s_add_u32 s{sT0}, s{sT0}, {O_OFF}
    """)
    srd(8, kWs, f"s{sT0}", O_BR)
    a(f"""
    s_mov_b32 s{sDone}, 0
    s_mov_b32 s{sSpin}, {SPIN}
    s_barrier
    s_cmp_ge_u32 s{sW}, 6
    s_cbranch_scc1 L_ow4
    s_cmp_ge_u32 s{sW}, 4
    s_cbranch_scc1 L_ow2
    s_mul_i32 s{sT0}, s{sW}, 5120
    s_add_u32 s{sT0}, s{sT0}, {16*5120}
    s_mul_i32 s{sT1}, s{sW}, {160*1280}
    """)
    blk(1)
    a(f"""
    s_branch L_ow3
    L_ow2:
    s_add_u32 s{sT2}, s{sW}, 10
    s_mul_i32 s{sT0}, s{sT2}, 5120
    s_mul_i32 s{sT1}, s{sT2}, {40*1280}
    """)
    blk(0)
    a(f"""
    L_ow3:
    s_waitcnt vmcnt(5)
    s_branch L_ow5
    L_ow4:
    s_waitcnt vmcnt(0)
    L_ow5:
    s_barrier
    s_cmp_lg_u32 s{sW}, 7
    s_cbranch_scc1 L_nf3
    """)
    put_flag(sF3, 11)
    mark(9)
    a(f"""
    L_tp:
    global_load_dwordx2 {vr(vF,2)}, v{oF}, s[{kWs}:{kWs+1}] sc1
    s_waitcnt vmcnt(0)
    v_cmp_eq_u64 vcc, s[{sN}:{sN+1}], {vr(vF,2)}
    s_sub_u32 s{sSpin}, s{sSpin}, 1
    s_cselect_b32 vcc_lo, -1, vcc_lo
    s_lshr_b32 s{sT0}, vcc_lo, 1
    s_and_b32 s{sT0}, s{sT0}, vcc_lo
    s_lshr_b32 s{sT1}, s{sT0}, 2
    s_and_b32 s{sT0}, s{sT0}, s{sT1}
    s_and_b32 s{sRdy}, s{sT0}, 0x11111111
    s_bcnt1_i32_b32 s{sT0}, s{sRdy}
    s_cmp_lt_u32 s{sT0}, {MINR}
    s_cbranch_scc1 L_tp
    v_mov_b32 v{T[0]}, {LDS - 32}
    v_mov_b32 v{T[1]}, s{sRdy}
    ds_write_b32 v{T[0]}, v{T[1]}
    L_nf3:
    s_mul_i32 s{sT0}, s{sTo}, 2560
    s_mul_i32 s{sT1}, s{sBo}, 1280
    s_add_u32 s{sT0}, s{sT0}, s{sT1}
    s_mul_i32 s{sT1}, s{sNt}, 160
    s_add_u32 s{sT0}, s{sT0}, s{sT1}
    s_sub_u32 s{sT1}, {2048*2560}, s{sT0}
    """)
    srd(16, kOut, f"s{sT0}", f"s{sT1}")
    a(f"""
    v_mov_b32 v{T[0]}, {LDS - 32}
    s_waitcnt vmcnt(0) lgkmcnt(0)
    s_barrier
    ds_read_b32 v{T[1]}, v{T[0]}
    s_waitcnt lgkmcnt(0)
    v_readfirstlane_b32 s{sRdy}, v{T[1]}
    s_nop 3
    """)
    def issue(p):
        a(f"""
        s_andn2_b32 s{sT0}, s{sRdy}, s{sDone}
        s_cbranch_scc1 L_is{p}
        L_ip{p}:
        global_load_dwordx2 {vr(vF,2)}, v{oF}, s[{kWs}:{kWs+1}] sc1
        s_waitcnt vmcnt(0)
        v_cmp_eq_u64 vcc, s[{sN}:{sN+1}], {vr(vF,2)}
        s_sub_u32 s{sSpin}, s{sSpin}, 1
        s_cselect_b32 vcc_lo, -1, vcc_lo
        s_lshr_b32 s{sT0}, vcc_lo, 1
        s_and_b32 s{sT0}, s{sT0}, vcc_lo
        s_lshr_b32 s{sT1}, s{sT0}, 2
        s_and_b32 s{sT0}, s{sT0}, s{sT1}
        s_and_b32 s{sRdy}, s{sT0}, 0x11111111
        s_andn2_b32 s{sT0}, s{sRdy}, s{sDone}
        s_cbranch_scc0 L_ip{p}
        L_is{p}:
        s_ff1_i32_b32 s{sU[p]}, s{sT0}
        s_bitset1_b32 s{sDone}, s{sU[p]}
        s_lshl_b32 s{sT0}, s{sU[p]}, 16
        s_add_u32 s{sT1}, s{sT0}, {4*32768}
        s_lshl_b32 s{sT2}, s{sU[p]}, 14
        s_add_u32 s{sT2}, s{sT2}, {O_TAIL}
        buffer_load_dwordx2 {vr(OT[p],2)}, v{oT}, s[8:11], s{sT2} offen {SC}
        buffer_load_dwordx4 {vr(OF[2*p],4)}, v{oM}, s[8:11], s{sT0} offen {SC}
        buffer_load_dwordx4 {vr(OF[2*p+1],4)}, v{oM}, s[8:11], s{sT1} offen {SC}
        """)
    def wreads(p):
        b = p % 2
        a(f"""
        s_mul_i32 s{sT0}, s{sU[p]}, 2560
        s_mul_i32 s{sT1}, s{sU[p]}, 640
        s_add_u32 s{sT1}, s{sT1}, {16*5120}
        v_add_u32 v{oW[0]}, s{sT0}, v{oW[1]}
        v_add_u32 v{oW[2]}, s{sT1}, v{oW[1]}
        """)
        r = [f"ds_read_b64_tr_b16 {vr(WT[b][t],2)}, v{oW[2]} offset:{32*t}" for t in range(5)]
        r += [f"ds_read_b64_tr_b16 {vr(WB[b][h][t]+2*hr,2)}, v{oW[0]} offset:{h*5120 + hr*2560 + 32*t}" for h in range(2) for t in range(5) for hr in range(2)]
        return r
    mark(10)
    for p in range(LA): issue(p)
    for i, x in enumerate(wreads(0)):
        if i in (12, 20): a("s_waitcnt lgkmcnt(4)")
        a(x)
    for p in range(8):
        b = p % 2
        lstamp("os")
        a(f"s_waitcnt vmcnt({3*min(LA-1, 7-p)}) lgkmcnt(0)")
        nx = wreads(p + 1) if p < 7 else []
        mm = [f"v_mfma_f32_16x16x32_bf16 {vr(OC[t],4)}, {vr(WT4[t],4)}, {vr(OT[p-1],4)}, {vr(OC[t],4)}" for t in range(5)] if b else []
        mm += [f"v_mfma_f32_16x16x32_bf16 {vr(OC[t],4)}, {vr(WB[b][h][t],4)}, {vr(OF[2*p+h],4)}, {vr(OC[t],4) if (p, h) != (0, 0) else 0}" for h in range(2) for t in range(5)]
        nx = nx[5:] + nx[:5]
        k = 2 if b else 3
        for i, m in enumerate(mm):
            a(m)
            if nx and i in ((6, 10) if b else (4, 7)): a("s_waitcnt lgkmcnt(3)")
            for _ in range(k):
                if nx: a(nx.pop(0))
        assert not nx
        if p + LA < 8: issue(p + LA)
    a("s_nop 3")
    mark(11)
    for t in range(5):
        p = OF[0] + 2 * t
        a(f"v_cvt_pk_bf16_f32 v{p}, v{OC[t]}, v{OC[t]+1}")
        a(f"v_cvt_pk_bf16_f32 v{p+1}, v{OC[t]+2}, v{OC[t]+3}")
        if t % 2 == 1:
            a(f"s_nop 1\nv_permlane16_swap_b32 v{p-2}, v{p}\nv_permlane16_swap_b32 v{p-1}, v{p+1}")
            a(f"buffer_store_dwordx4 {vr(p-2,4)}, v{oS[0]}, s[16:19], 0 offen offset:{64*(t//2)} {OS}")
    a(f"buffer_store_dwordx2 {vr(OF[0]+8,2)}, v{oS[1]}, s[16:19], 0 offen offset:128 {OS}")
    mark(12)
    stamp_end()
    a.label("L_end")
    a("s_endpgm")
    def blk(pat):
        for q in range(5):
            a(f"s_add_u32 m0, s{sT0}, {WL + q*1024}\ns_nop 0\nbuffer_load_dwordx4 v{OW[pat][q]}, s[92:95], s{sT1} offen lds")
    a(f"""
    L_wpf:
    s_mov_b32 s{sT2}, s{sW}
    L_wpl:
    s_mul_i32 s{sT0}, s{sT2}, 5120
    s_mul_i32 s{sT1}, s{sT2}, {40*1280}
    """)
    blk(0)
    a(f"""
    s_add_u32 s{sT2}, s{sT2}, 4
    s_cmp_lt_u32 s{sT2}, 14
    s_cbranch_scc1 L_wpl
    s_mov_b32 s{sT0}, {LDS}
    s_mul_i32 s{sT1}, s{sW}, {160*1280}
    """)
    blk(1)
    a(f"""
    s_cmp_ge_u32 s{sT2}, 16
    s_cbranch_scc1 L_loop
    s_mul_i32 s{sT1}, s{sT2}, {40*1280}
    """)
    blk(0)
    a("s_branch L_loop")
    a.label("L_bal")
    a("s_setprio 0\ns_branch L_balr")

    a.label("L_fallback")
    for r in (vK, vK1, vV): a(f"v_subrev_u32 v{r[0]}, {12*GROUP}, v{r[0]}")
    a(f"""
    v_mov_b32 v{Q1[0]+1}, 0
    v_mov_b32 v{Q1[1]+1}, 0
    v_mov_b32 v{vM[0]}, 0xff800000
    v_mov_b32 v{vM[1]}, 0xff800000
    s_mov_b32 s{sGo}, 0
    L_fb1:
    buffer_load_dwordx4 {vr(K0[0],4)}, v{vK[0]}, s[8:11], s{sGo} offen {SC}
    buffer_load_dword v{K1[0]}, v{vK1[0]}, s[8:11], s{sGo} offen offset:1024 {SC}
    s_waitcnt vmcnt(0)
    {qk1(0,0)}
    {qk2(0,0)}
    {qk1(1,0)}
    {qk2(1,0)}
    s_add_u32 s{sGo}, s{sGo}, {TILE}
    s_nop 8
    """)
    rowmax(False)
    a(f"s_cmp_lt_u32 s{sGo}, {KV_SET}\ns_cbranch_scc1 L_fb1")
    crossmax()
    for s in range(2):
        for r in range(16): a(f"v_mov_b32 v{O[s]+r}, 0")
    a(f"""
    s_mov_b32 s{sGo}, 0
    L_fb2:
    buffer_load_dwordx4 {vr(K0[0],4)}, v{vK[0]}, s[8:11], s{sGo} offen {SC}
    buffer_load_dword v{K1[0]}, v{vK1[0]}, s[8:11], s{sGo} offen offset:1024 {SC}
    buffer_load_dwordx4 {vr(V[0][0],4)}, v{vV[0]}, s[8:11], s{sGo} offen offset:1280 {SC}
    buffer_load_dwordx4 {vr(V[0][1],4)}, v{vV[0]}, s[8:11], s{sGo} offen offset:{1280+672} {SC}
    s_waitcnt vmcnt(0)
    {qk1(0,0)}
    {qk2(0,0)}
    {qk1(1,0)}
    {qk2(1,0)}
    s_add_u32 s{sGo}, s{sGo}, {TILE}
    s_nop 8
    """)
    for s in range(2):
        for r in range(16): a(f"v_sub_f32 v{S[s][0]+r}, v{S[s][0]+r}, v{vM[s]}")
        for r in range(16): a(f"v_exp_f32 v{S[s][0]+r}, v{S[s][0]+r}")
    a(f"""
    s_nop 1
    {pv(0,0,0)}
    {pv(0,0,1)}
    {pv(1,0,0)}
    {pv(1,0,1)}
    s_cmp_lt_u32 s{sGo}, {KV_SET}
    s_cbranch_scc1 L_fb2
    s_nop 15
    {lb(0)}
    {lb(1)}
    s_branch L_store
    L_codeend:
    """)
    print("nv per phase", nvmax)
    kernel_desc(a, name, 256, 102)

if __name__ == "__main__":
    import sys
    NAME = "concat_heads__mha_block__grouped_kv_mqa__prompt"
    ref = open(f"cdna_kernels/{NAME}.s.ref").read().split("\n")
    hdr = [l for l in ref if l.startswith(";") and "@launch" not in l]
    opts = eval("dict(" + (sys.argv[2] if len(sys.argv) > 2 else "") + ")")
    a = Asm()
    a.raw('.amdgcn_target "amdgcn-amd-amdhsa--gfx950"')
    gen(a, NAME + "_kernel", **opts)
    out = "\n".join(hdr) + f"\n; @launch grid=(256,1,1) block=(512,1,1) lds={LDS}\n" + a.text()
    dst = sys.argv[1] if len(sys.argv) > 1 else f"cdna_kernels/{NAME}.s"
    open(dst, "w").write(out)
```

```python
import struct
from common import Asm, vr, RegAlloc, kernel_header, kernel_desc

def f32bits(x): return struct.unpack("<I", struct.pack("<f", x))[0]
QSCALE = f32bits((20 ** -0.5) * 1.4426950408889634)

TILE = 2624; GROUP = 4 * TILE; KV_SET = 16 * GROUP
KV_OFF = 0
KVS = KV_SET + 128
Q_OFF = KV_OFF + 33 * KVS
Q_HEAD = 64 * 1280 + 128
O_OFF = Q_OFF + 64 * Q_HEAD
O_TAIL = 64 * 32768 + 128
O_BR = O_TAIL + 32 * 16384 + 128
F1 = O_OFF + 2 * O_BR
F3 = F1 + 64 * 2048
WS_USED = F3 + 8 * 2048
ST_OFF = 16 << 20
assert WS_USED <= ST_OFF
LDS = 163840
BIG = 0x100000
SPIN = 1000000
kAx, kAw, kAo, kBx, kBq, kBk, kBv, kBo, kOut, kDbg, kWs = 64, 66, 68, 70, 72, 74, 76, 78, 80, 82, 84
sN = 86

def interleave(a, mf, rd):
    rd = list(rd); n = len(mf)
    for i, m in enumerate(mf):
        a(m)
        k = 2 if len(rd) > (n - i - 3) else 1
        for _ in range(k):
            if rd: a(rd.pop(0))
    for r in rd: a(r)

def gen(a, name, stamp=False, force_fallback=False, SC="sc1", DBG="", AHEAD=1, ROT=True, LPF=0, SL1=0, SL3=8, SL4=1, BAL=11, CPF=False, UPR=2, LA=3, TICK=False, TST=5, SS=None, NR=8, PRE=0, EARLY=True, BT=9, ESP=True, OS='', TLB=0, PP=False, MINR=2, BT1=11, SPF=17, SPL=0, EPF=0):
    SS = SS or SC
    vL = 1
    T = list(range(2, 10))
    vF = 10
    BASE = 12
    sW, sI, sT0, sT1, sT2, sT3, sC = 20, 21, 23, 24, 25, 26, 27
    sW4, sHi, sSpin, sFl, sM0, sM1 = 22, 38, 43, 39, 44, 45
    nvmax = []
    uid = [0]
    def mark(i):
        if "rs" in DBG:
            a(f"s_memrealtime s[88:89]\ns_waitcnt lgkmcnt(0)\ns_mov_b32 s{50+i}, s88")
            return
        if "rt" in DBG:
            a(f"s_memrealtime s[88:89]\ns_waitcnt lgkmcnt(0)\ns_mov_b32 s{50+i}, s88")
            return
        if stamp: a(f"s_memtime s[88:89]\ns_waitcnt lgkmcnt(0)\ns_sub_u32 s{50+i}, s88, s48")
    def lstamp(tag):
        if stamp and tag in DBG:
            a(f"s_memtime s[88:89]\ns_waitcnt lgkmcnt(0)\ns_sub_u32 s88, s88, s48\ns_mov_b32 m0, s63\ns_add_u32 s63, s63, 1\ns_min_u32 s63, s63, 15\nv_writelane_b32 v255, s88, m0")
    def stamp_end():
        if "rt" in DBG:
            a(f"s_cmp_lg_u32 s{sW}, 0\ns_cbranch_scc1 L_end\ns_waitcnt vmcnt(0)\ns_memrealtime s[88:89]\ns_waitcnt lgkmcnt(0)\ns_mov_b32 s60, s88\ns_mov_b32 s63, s46\nv_mov_b32 v2, 0")
            for i in range(14):
                a(f"s_sub_u32 s88, s{50+i}, s{sN}\ns_add_u32 s88, s88, 1000\nv_writelane_b32 v2, s88, {i}")
            a(f"v_lshlrev_b32 v3, 2, v{vL}\ns_mov_b64 exec, 0x3fff\nglobal_atomic_umax v3, v2, s[{kDbg}:{kDbg+1}] offset:8 sc1")
            return
        if not stamp: return
        Z = 64
        a(f"""
        s_waitcnt vmcnt(0) lgkmcnt(0)
        s_memrealtime s[90:91]
        s_memtime s[88:89]
        s_waitcnt lgkmcnt(0)
        s_sub_u32 s88, s88, s48
        v_mov_b32 v{Z}, s46
        v_mov_b32 v{Z+1}, s90
        v_mov_b32 v{Z+2}, s88
        """)
        for i in range(13): a(f"v_mov_b32 v{Z+3+i}, s{50+i}")
        a(f"""
        s_lshl_b32 s88, s2, 3
        s_add_u32 s88, s88, s{sW}
        s_lshl_b32 s88, s88, 6
        s_add_u32 s88, s88, {ST_OFF}
        v_mov_b32 v{T[0]}, s88
        s_add_u32 s88, s88, 262144
        v_lshl_add_u32 v{T[1]}, v{vL}, 2, s88
        s_mov_b64 exec, 0xffff
        global_store_dword v{T[1]}, v255, s[{kWs}:{kWs+1}]
        s_mov_b64 exec, 1
        """)
        for i in range(4): a(f"global_store_dwordx4 v{T[0]}, {vr(Z+4*i,4)}, s[{kWs}:{kWs+1}] offset:{16*i}")
    def srd(d, base, off, size):
        a(f"""
        s_add_u32 s{d}, s{base}, {off}
        s_addc_u32 s{d+1}, s{base+1}, 0
        s_mov_b32 s{d+2}, {size}
        s_mov_b32 s{d+3}, 0x00020000
        """)
    def divc(vq, vrem, vn, d, mul, sh):
        a(f"v_mul_u32_u24 v{vq}, {mul}, v{vn}")
        a(f"v_lshrrev_b32 v{vq}, {sh}, v{vq}")
        a(f"v_mul_u32_u24 v{vrem}, {d}, v{vq}")
        a(f"v_sub_u32 v{vrem}, v{vn}, v{vrem}")
    def get_nonce():
        uid[0] += 1; u = uid[0]
        a(f"""
        v_mov_b32 v{T[0]}, 0
        s_mov_b32 s{sSpin}, {SPIN}
        L_gn{u}:
        global_load_dwordx2 {vr(vF,2)}, v{T[0]}, s[{kDbg}:{kDbg+1}] sc1
        s_waitcnt vmcnt(0)
        v_readfirstlane_b32 s{sN}, v{vF}
        v_readfirstlane_b32 s{sN+1}, v{vF+1}
        s_sub_u32 s{sSpin}, s{sSpin}, 1
        s_cbranch_scc1 L_gd{u}
        s_cmp_eq_u32 s{sN}, 0
        s_cbranch_scc1 L_gn{u}
        L_gd{u}:
        """)
    def put_flag(flag_sgpr, shift, nr=8):
        a(f"""
        v_lshl_add_u32 v{T[0]}, v{vL}, {shift}, s{flag_sgpr}
        v_mov_b32 v{T[2]}, s{sN}
        v_mov_b32 v{T[3]}, s{sN+1}
        s_mov_b32 exec_lo, {(1 << min(nr, 32)) - 1}
        s_mov_b32 exec_hi, {-1 if nr == 64 else 0}
        global_store_dwordx2 v{T[0]}, {vr(T[2],2)}, s[{kWs}:{kWs+1}] sc1
        s_mov_b64 exec, -1
        """)

    kernel_header(a, name)
    sMt, sGrp, sJ4, sLd, sSt, sHS, sScale = 28, 29, 30, 31, 32, 33, 34
    sOx, sOw, sOe, sM, sLd64, sWm, sWn, sRot, sTS, sCT = 35, 36, 37, 40, 41, 42, 92, 93, 94, 95
    a(f"""
    s_getpc_b64 s[96:97]
    s_cmp_ge_u32 s2, 256
    s_cbranch_scc1 L_end
    s_load_dwordx16 s[64:79], s[0:1], 0
    s_load_dwordx4 s[80:83], s[0:1], 64
    s_load_dwordx2 s[84:85], s[0:1], 80
    {chr(10).join(f"s_load_dword s99, s[96:97], {128*(i+1)}" for i in range(EPF))}
    s_memrealtime s[46:47]
    {"s_memtime s[48:49]" if stamp else ""}
    {"s_mov_b32 s63, 0" if stamp else ""}
    v_lshrrev_b32 v{T[0]}, 6, v0
    v_and_b32 v{vL}, 63, v0
    s_getreg_b32 s{sT1}, hwreg(HW_REG_XCC_ID, 0, 3)
    v_readfirstlane_b32 s{sW}, v{T[0]}
    """)
    if TICK:
        a.c("logical workgroup id = (die, ticket on that die's counter); a full die spills to the next counter")
        a(f"""
        v_mov_b32 v{T[2]}, {LDS - 16}
        s_cmp_lg_u32 s{sW}, 0
        s_cbranch_scc1 L_tk2
        v_mov_b32 v{T[1]}, 1
        s_mov_b32 s{sT3}, 16
        s_mov_b64 exec, 1
        s_waitcnt lgkmcnt(0)
        L_tk:
        s_lshl_b32 s{sT2}, s{sT1}, {TST}
        v_mov_b32 v{T[0]}, s{sT2}
        global_atomic_add v{T[3]}, v{T[0]}, v{T[1]}, s[{kDbg}:{kDbg+1}] offset:16 sc0 sc1
        s_waitcnt vmcnt(0)
        v_readfirstlane_b32 s{sT2}, v{T[3]}
        s_sub_u32 s{sT3}, s{sT3}, 1
        s_cbranch_scc1 L_tk1
        s_cmp_lt_u32 s{sT2}, 32
        s_cbranch_scc1 L_tk1
        s_add_u32 s{sT1}, s{sT1}, 1
        s_and_b32 s{sT1}, s{sT1}, 7
        s_branch L_tk
        L_tk1:
        s_lshl_b32 s{sT2}, s{sT2}, 3
        s_add_u32 s{sT2}, s{sT2}, s{sT1}
        v_mov_b32 v{T[3]}, s{sT2}
        ds_write_b32 v{T[2]}, v{T[3]}
        s_mov_b64 exec, -1
        s_waitcnt lgkmcnt(0)
        L_tk2:
        s_barrier
        ds_read_b32 v{T[3]}, v{T[2]}
        s_waitcnt lgkmcnt(0)
        v_readfirstlane_b32 s2, v{T[3]}
        s_nop 3
        s_and_b32 s2, s2, 255
        """)
        mark(10)
    a(f"""
    s_and_b32 s{sT0}, s2, 7
    s_lshr_b32 s{sT1}, s2, 3
    s_lshr_b32 s{sGrp}, s{sT0}, 1
    s_and_b32 s{sMt}, s{sT0}, 1
    s_lshl_b32 s{sMt}, s{sMt}, 3
    s_and_b32 s{sT2}, s{sT1}, 7
    s_add_u32 s{sMt}, s{sMt}, s{sT2}
    s_lshr_b32 s{sJ4}, s{sT1}, 3
    s_and_b32 s{sW4}, s{sW}, 3
    s_lshr_b32 s{sHi}, s{sW}, 2
    s_cmp_ge_u32 s{sW}, 4
    s_cbranch_scc0 L_comp
    """)
    ST = 39424; NST = 4; WOFF = 16384; EOFF = 36864
    IMG = 2 * ST; IH = 5376
    R = RegAlloc(BASE)
    bX = [R.alloc(f"bX{k}") for k in range(2)]; bW = R.alloc("bW"); bE = R.alloc("bE"); bXe = [R.alloc(f"bXe{k}") for k in range(2)]
    aX = [R.alloc(f"aX{k}") for k in range(2)]; aW = R.alloc("aW"); aE = R.alloc("aE"); aXe = [R.alloc(f"aXe{k}") for k in range(2)]
    A0 = [R.alloc(f"A0{i}") for i in range(5)]; A1 = [R.alloc(f"A1{i}") for i in range(5)]
    assert A1[1] % 2 == 0
    AE = [R.alloc(f"AE{i}") for i in range(2)]
    FX = [[R.alloc(f"FX{b}{i}", 4, 4) for i in range(4)] for b in range(2)]
    FW = [[R.alloc(f"FW{b}{i}", 4, 4) for i in range(5)] for b in range(2)]
    FXe = [R.alloc(f"FXe{b}", 4, 4) for b in range(2)]
    FE = [[R.alloc(f"FE{b}{i}", 4, 4) for i in range(2)] for b in range(2)]
    ACC = [[R.alloc(f"C{m}{n}", 4, 4) for n in range(5)] for m in range(4)]
    ACE = [R.alloc(f"CE{n}", 4, 4) for n in range(2)]
    SO = [R.alloc(f"SO{q}") for q in range(6)]
    nvmax.append(R.n)
    LX = [FX[0][0] + i for i in range(4)]; LW = [FX[0][1] + i for i in range(5)]; LE = FX[0][3]
    a(f"""
    s_setprio 2
    s_cmp_eq_u32 s{sGrp}, 3
    s_mov_b32 s{sLd}, 3840
    s_cmov_b32 s{sLd}, 1280
    s_mul_i32 s{sRot}, s{sJ4}, 3
    s_add_u32 s{sRot}, s{sRot}, s{sT2}
    s_cmp_ge_u32 s{sRot}, 10
    s_cselect_b32 s{sT0}, 10, 0
    s_sub_u32 s{sRot}, s{sRot}, s{sT0}
    {"" if ROT is True else f"s_mov_b32 s{sRot}, 0" if not ROT else f"s_and_b32 s{sRot}, s{sRot}, {ROT[0]}"+chr(10)+f"s_mul_i32 s{sRot}, s{sRot}, {ROT[1]}"}
    v_lshrrev_b32 v{T[0]}, 3, v{vL}
    s_lshl_b32 s{sT0}, s{sW4}, 5
    v_add_u32 v{T[0]}, s{sT0}, v{T[0]}
    v_mul_u32_u24 v{T[0]}, 1280, v{T[0]}
    v_and_b32 v{T[1]}, 7, v{vL}
    v_lshrrev_b32 v{T[2]}, 4, v{vL}
    v_xor_b32 v{T[1]}, v{T[1]}, v{T[2]}
    v_xor_b32 v{T[2]}, 4, v{T[1]}
    v_lshl_add_u32 v{LX[0]}, v{T[1]}, 4, v{T[0]}
    v_lshl_add_u32 v{LX[1]}, v{T[2]}, 4, v{T[0]}
    v_add_u32 v{LX[1]}, 10240, v{LX[1]}
    v_add_u32 v{LX[2]}, 20480, v{LX[0]}
    v_add_u32 v{LX[3]}, 20480, v{LX[1]}
    s_lshl_b32 s{sLd64}, s{sLd}, 6
    s_lshr_b32 s{sT0}, s{sW4}, 1
    s_mul_i32 s{sT0}, s{sT0}, 160
    s_and_b32 s{sT1}, s{sW4}, 1
    s_mul_i32 s{sT1}, s{sT1}, s{sLd}
    s_lshl_b32 s{sT1}, s{sT1}, 5
    s_add_u32 s{sM}, s{sT0}, s{sT1}
    v_mov_b32 v{T[7]}, s{sLd}
    """)
    for q in range(5):
        a(f"v_add_u32 v{T[0]}, {q*64}, v{vL}")
        divc(T[1], T[2], T[0], 10, 6554, 16)
        a(f"""
        v_lshl_add_u32 v{T[3]}, v{T[2]}, 4, s{sM}
        v_and_b32 v{T[4]}, 3, v{T[1]}
        v_and_b32 v{T[5]}, 12, v{T[1]}
        v_lshl_add_u32 v{T[4]}, v{T[5]}, 1, v{T[4]}
        v_lshrrev_b32 v{T[5]}, 4, v{T[1]}
        v_lshl_add_u32 v{T[4]}, v{T[5]}, 2, v{T[4]}
        v_mad_u32_u24 v{LW[q]}, v{T[4]}, v{T[7]}, v{T[3]}
        """)
    a(f"""
    s_mul_i32 s{sT0}, s{sW4}, 768
    v_lshlrev_b32 v{LE}, 4, v{vL}
    v_add_u32 v{LE}, s{sT0}, v{LE}
    s_lshl_b32 s{sOx}, s{sRot}, 7
    s_mul_i32 s{sOw}, s{sRot}, s{sLd64}
    s_mul_i32 s{sOe}, s{sRot}, 2560
    s_mul_i32 s{sT0}, s{sMt}, 163840
    s_mov_b32 s10, 163840
    s_mov_b32 s11, 0x00020000
    s_mov_b32 s15, 0x00020000
    s_mov_b32 s18, 25600
    s_mov_b32 s19, 0x00020000
    s_cmp_eq_u32 s{sGrp}, 3
    s_cselect_b32 s{sT1}, 0, s{sGrp}
    s_mov_b32 s14, {640*3840}
    s_cmov_b32 s14, {640*1280}
    s_waitcnt lgkmcnt(0)
    s_cselect_b32 s8, s{kBx}, s{kAx}
    s_cselect_b32 s9, s{kBx+1}, s{kAx+1}
    s_cselect_b32 s12, s{kBq}, s{kAw}
    s_cselect_b32 s13, s{kBq+1}, s{kAw+1}
    s_add_u32 s8, s8, s{sT0}
    s_addc_u32 s9, s9, 0
    s_mul_i32 s{sT1}, s{sT1}, 1280
    s_mul_i32 s{sT0}, s{sJ4}, 320
    s_add_u32 s{sT0}, s{sT0}, s{sT1}
    s_add_u32 s12, s12, s{sT0}
    s_addc_u32 s13, s13, 0
    s_sub_u32 s14, s14, s{sT0}
    s_cmp_lt_u32 s{sJ4}, 2
    s_cselect_b32 s16, s{kBk}, s{kBv}
    s_cselect_b32 s17, s{kBk+1}, s{kBv+1}
    s_lshl_b32 s{sT0}, s{sW4}, 12
    s_mul_i32 s{sT1}, s{sW4}, 5120
    s_add_u32 s{sT1}, s{sT1}, {WOFF}
    s_mul_i32 s{sT2}, s{sW4}, 768
    s_add_u32 s{sT2}, s{sT2}, {EOFF}
    s_mov_b32 s{sSt}, 0
    s_mov_b32 s{sC}, 0
    s_lshl_b32 s98, s{sW4}, 7
    s_add_u32 s98, s98, L_stset - {name}
    s_cmp_eq_u32 s{sGrp}, 3
    s_cbranch_scc1 L_llB
    """)
    def issue(ext):
        for q in range(4):
            a(f"s_add_u32 m0, s{sT0}, {q*1024}\ns_nop 0\nbuffer_load_dwordx4 v{LX[q]}, s[8:11], s{sOx} offen lds")
        for q in range(5):
            a(f"s_add_u32 m0, s{sT1}, {q*1024}\ns_nop 0\nbuffer_load_dwordx4 v{LW[q]}, s[12:15], s{sOw} offen lds")
        if ext:
            a(f"""
            s_mov_b32 m0, s{sT2}
            s_cmp_eq_u32 s{sW4}, 3
            s_cbranch_scc1 L_ne
            buffer_load_dwordx4 v{LE}, s[16:19], s{sOe} offen lds
            L_ne:
            s_add_u32 s{sOe}, s{sOe}, 2560
            """)
        for i in range(SPL):
            a(f"s_min_u32 s100, s98, L_codeend - {name} - 8\ns_load_dword s99, s[96:97], s100\ns_add_u32 s98, s98, 512")
        a(f"""
        s_add_u32 s{sOx}, s{sOx}, 128
        s_add_u32 s{sOw}, s{sOw}, s{sLd64}
        s_cmp_eq_u32 s{sOx}, 1280
        s_cselect_b32 s{sOx}, 0, s{sOx}
        s_cselect_b32 s{sOw}, 0, s{sOw}
        s_cselect_b32 s{sOe}, 0, s{sOe}
        s_add_u32 s{sSt}, s{sSt}, 1
        s_and_b32 s{sSt}, s{sSt}, 3
        s_mov_b32 s{sM}, {ST}
        s_cmp_eq_u32 s{sSt}, 0
        s_cmov_b32 s{sM}, {(-3*ST) & 0xffffffff}
        s_add_u32 s{sT0}, s{sT0}, s{sM}
        s_add_u32 s{sT1}, s{sT1}, s{sM}
        s_add_u32 s{sT2}, s{sT2}, s{sM}
        """)
    for ext in (False, True):
        tag = "B" if ext else "A"
        n = 9
        a.label(f"L_ll{tag}")
        issue(ext)
        a(f"""
        s_add_u32 s{sC}, s{sC}, 1
        s_cmp_lt_u32 s{sC}, {AHEAD+1}
        s_cbranch_scc1 L_ll{tag}
        s_waitcnt vmcnt({AHEAD*n})
        s_barrier
        s_cmp_lt_u32 s{sC}, 10
        s_cbranch_scc1 L_ll{tag}
        """)
        for c in range(AHEAD):
            a(f"s_waitcnt vmcnt({(AHEAD-1-c)*n})\ns_barrier")
        if not ext: a("s_branch L_ldone")
    a.label("L_ldone")
    a(f"s_cmp_lg_u32 s{sW}, 4\ns_cbranch_scc1 L_nn")
    get_nonce()
    a(f"v_mov_b32 v{T[0]}, {LDS - 32}\nds_write_b64 v{T[0]}, {vr(vF,2)}\nL_nn:")
    a.c("loader waves: ones rows of the V image (2 heads per wave x 16 blocks), then common store setup")
    a(f"""
    s_cmp_lg_u32 s{sGrp}, 2
    s_cbranch_scc1 L_stset
    v_and_b32 v{T[0]}, 31, v{vL}
    v_mul_u32_u24 v{T[0]}, 336, v{T[0]}
    s_mul_i32 s{sT0}, s{sW4}, {2*IH}
    s_add_u32 s{sT0}, s{sT0}, {IMG + 320}
    v_add_u32 v{T[0]}, s{sT0}, v{T[0]}
    v_mov_b32 v{T[2]}, 0x3f803f80
    v_mov_b32 v{T[3]}, 0x3f803f80
    v_mov_b32 v{T[4]}, 0x3f803f80
    v_mov_b32 v{T[5]}, 0x3f803f80
    ds_write_b128 v{T[0]}, {vr(T[2],4)}
    s_branch L_stset
    """)
    assert T[2] % 2 == 0

    a.label("L_comp")
    if SPF:
        a.c("pull the projection code on-die through the scalar path before the data burst")
        a(f"s_lshl_b32 s98, s{sW}, 7\ns_add_u32 s98, s98, L_comp - {name}")
        for i in range(SPF):
            a(f"s_load_dword s99, s[96:97], s98\ns_add_u32 s98, s98, 512")
    if CPF:
        a(f"""
        v_lshlrev_b32 v{T[0]}, 7, v0
        v_min_u32 v{T[0]}, L_codeend - {name} - 8, v{T[0]}
        global_load_dword v252, v{T[0]}, s[96:97]
        """)
    a(f"""
    s_lshr_b32 s{sWm}, s{sW}, 1
    s_and_b32 s{sWn}, s{sW}, 1
    v_and_b32 v{T[0]}, 15, v{vL}
    v_lshrrev_b32 v{T[1]}, 4, v{vL}
    v_lshrrev_b32 v{T[2]}, 1, v{T[0]}
    v_xor_b32 v{T[2]}, v{T[2]}, v{T[1]}
    v_xor_b32 v{T[3]}, 4, v{T[2]}
    v_lshlrev_b32 v{T[4]}, 7, v{T[0]}
    v_lshl_add_u32 v{T[2]}, v{T[2]}, 4, v{T[4]}
    v_lshl_add_u32 v{T[3]}, v{T[3]}, 4, v{T[4]}
    s_lshl_b32 s{sT0}, s{sWm}, 13
    v_add_u32 v{bX[0]}, s{sT0}, v{T[2]}
    v_add_u32 v{bX[1]}, s{sT0}, v{T[3]}
    s_and_b32 s{sM}, s{sJ4}, 1
    s_lshl_b32 s{sM}, s{sM}, 1
    s_add_u32 s{sM}, s{sM}, s{sWn}
    s_lshl_b32 s{sT2}, s{sM}, 11
    v_add_u32 v{bXe[0]}, s{sT2}, v{bX[0]}
    v_add_u32 v{bXe[1]}, s{sT2}, v{bX[1]}
    v_lshrrev_b32 v{T[2]}, 2, v{vL}
    v_mul_u32_u24 v{T[2]}, 40, v{vL}
    v_and_b32 v{T[3]}, 3, v{vL}
    s_mul_i32 s{sT0}, s{sWn}, 10240
    v_add_u32 v{bW}, s{sT0}, v{T[2]}
    v_lshrrev_b32 v{T[2]}, 2, v{T[0]}
    v_lshl_add_u32 v{T[2]}, v{T[1]}, 3, v{T[2]}
    v_mul_u32_u24 v{T[2]}, 40, v{T[2]}
    v_lshl_add_u32 v{bE}, v{T[3]}, 3, v{T[2]}
    s_waitcnt lgkmcnt(0)
    s_add_u32 s{sT1}, s2, s{sW}
    s_cmp_lg_u32 s{sT1}, 0
    s_cbranch_scc1 L_nononce
    s_or_b32 s{sT1}, s46, 1
    v_mov_b32 v{vF}, s{sT1}
    v_mov_b32 v{vF+1}, s47
    v_mov_b32 v{T[2]}, 0
    s_mov_b64 exec, 1
    global_store_dwordx2 v{T[2]}, {vr(vF,2)}, s[{kDbg}:{kDbg+1}] sc1
    s_mov_b64 exec, -1
    L_nononce:
    """)
    if TLB:
        a.c("touch one unused line per address-translation granule of the buffers used later (scalar path)")
        gaps = [i * KVS + KV_SET for i in range(0, 33, TLB)] + [Q_OFF + (i + 1) * Q_HEAD - 128 for i in range(0, 64, 2 * TLB)] + [O_OFF - 128]
        for br in range(2): gaps += [O_OFF + br * O_BR + O_TAIL - 128, O_OFF + (br + 1) * O_BR - 128]
        gaps.append(WS_USED)
        tl = [(kWs, g) for g in gaps] + [(kOut, o) for o in range(0, 2048 * 2560, 1 << 20)] + [(kOut, 2048 * 2560 - 64), (kAo, 0), (kAo, 819136), (kBo, 0), (kBo, 819136), (kDbg, 128)]
        for w in range(4):
            a(f"s_cmp_lg_u32 s{sW}, {w}\ns_cbranch_scc1 L_tl{w}")
            for base, off in tl[w::4]:
                a(f"s_mov_b32 s98, {off}\ns_load_dword s99, s[{base}:{base+1}], s98")
            a.label(f"L_tl{w}")
    if LPF:
        a.c("linear touch of this wave's 1/1024 share of both Wo matrices")
        a(f"""
        s_lshl_b32 s{sT0}, s2, 2
        s_add_u32 s{sT0}, s{sT0}, s{sW}
        s_mul_i32 s{sT3}, s{sT0}, 800
        v_min_u32 v{T[2]}, 6, v{vL}
        v_lshl_add_u32 v{T[3]}, v{T[2]}, 7, s{sT3}
        global_load_dword v250, v{T[3]}, s[{kAo}:{kAo+1}]
        global_load_dword v251, v{T[3]}, s[{kBo}:{kBo+1}]
        """)
    for m in range(4):
        for n in range(5):
            for r in (0, 2): a(f"v_pk_mov_b32 {vr(ACC[m][n]+r,2)}, 0, 0")
    for n in range(2):
        for r in range(4): a(f"v_mov_b32 v{ACE[n]+r}, 0")
    a(f"""
    s_cmp_eq_u32 s{sGrp}, 1
    s_mov_b32 s{sScale}, 0x{QSCALE:x}
    s_cmov_b32 s{sScale}, 1.0
    v_mov_b32 v{A1[1]}, s{sScale}
    v_mov_b32 v{A1[2]}, s{sScale}
    """)
    a(f"""
    s_mov_b32 s{sSt}, 0
    s_mov_b32 s{sC}, 0
    s_cmp_eq_u32 s{sGrp}, 2
    s_cbranch_scc1 L_F
    """)
    def addr_T():
        a(f"""
        s_mul_i32 s{sT0}, s{sWn}, {4*IH}
        s_mul_i32 s{sT1}, s{sWm}, 2560
        s_add_u32 s{sT0}, s{sT0}, s{sT1}
        s_add_u32 s{sT0}, s{sT0}, {IMG}
        v_mul_u32_u24 v{T[3]}, {IH}, v{T[1]}
        v_add_u32 v{T[3]}, s{sT0}, v{T[3]}
        v_lshl_add_u32 v{A0[0]}, v{T[0]}, 4, v{T[3]}
        v_lshl_add_u32 v{A0[1]}, v{T[0]}, 3, v{T[3]}
        """)
    def addr_F():
        a(f"""
        s_mul_i32 s{sT0}, s{sWn}, {4*IH}
        s_mul_i32 s{sT1}, s{sWm}, 2688
        s_add_u32 s{sT0}, s{sT0}, s{sT1}
        s_add_u32 s{sT0}, s{sT0}, {IMG}
        v_lshrrev_b32 v{T[5]}, 1, v{T[1]}
        v_mul_u32_u24 v{T[5]}, 336, v{T[5]}
        v_and_b32 v{T[6]}, 1, v{T[1]}
        v_lshl_add_u32 v{T[5]}, v{T[6]}, 3, v{T[5]}
        v_lshrrev_b32 v{T[3]}, 2, v{T[0]}
        v_mul_u32_u24 v{T[3]}, {IH}, v{T[3]}
        v_and_b32 v{T[4]}, 3, v{T[0]}
        v_lshl_add_u32 v{T[3]}, v{T[4]}, 4, v{T[3]}
        v_add3_u32 v{A0[0]}, v{T[3]}, v{T[5]}, s{sT0}
        """)
    EIMG = IMG + 8 * IH + 1024
    def addr_E(kind):
        a(f"""
        s_lshl_b32 s{sT0}, s{sWm}, 11
        s_add_u32 s{sT0}, s{sT0}, {EIMG}
        v_and_b32 v{T[4]}, 1, v{T[1]}
        v_lshrrev_b32 v{T[5]}, 1, v{T[1]}
        """)
        if kind == "K":
            a(f"""
            s_lshl_b32 s{sT2}, s{sWn}, 8
            s_add_u32 s{sT2}, s{sT2}, s{sT0}
            v_lshlrev_b32 v{T[6]}, 9, v{T[4]}
            v_lshl_add_u32 v{T[6]}, v{T[5]}, 3, v{T[6]}
            v_lshl_add_u32 v{T[6]}, v{T[0]}, 4, v{T[6]}
            v_add_u32 v{AE[0]}, s{sT2}, v{T[6]}
            s_lshl_b32 s{sT2}, s{sWn}, 7
            s_add_u32 s{sT2}, s{sT2}, s{sT0}
            s_add_u32 s{sT2}, s{sT2}, 1024
            v_lshlrev_b32 v{T[6]}, 20, v{T[1]}
            v_lshl_add_u32 v{T[6]}, v{T[0]}, 3, v{T[6]}
            v_add_u32 v{AE[1]}, s{sT2}, v{T[6]}
            """)
        else:
            a(f"""
            s_mul_i32 s{sT2}, s{sWn}, 672
            s_add_u32 s{sT2}, s{sT2}, s{sT0}
            v_mul_u32_u24 v{T[6]}, 336, v{T[5]}
            v_lshl_add_u32 v{T[6]}, v{T[4]}, 3, v{T[6]}
            v_lshl_add_u32 v{T[6]}, v{T[0]}, 4, v{T[6]}
            v_add_u32 v{AE[0]}, s{sT2}, v{T[6]}
            v_cmp_lt_u32 vcc, 4, v{T[0]}
            v_add_u32 v{T[6]}, 256, v{AE[0]}
            v_mov_b32 v{T[7]}, {BIG}
            v_cndmask_b32 v{AE[1]}, v{T[6]}, v{T[7]}, vcc
            """)
    def reads(b, ks, ext):
        r = [f"ds_read_b128 {vr(FX[b][0],4)}, v{aX[ks]}"]
        for tn in range(5):
            for hr in range(2):
                r.append(f"ds_read_b64_tr_b16 {vr(FW[b][tn]+2*hr,2)}, v{aW} offset:{WOFF + ks*5120 + hr*2560 + tn*8}")
        for tm in range(1, 4):
            r.append(f"ds_read_b128 {vr(FX[b][tm],4)}, v{aX[ks]} offset:{tm*2048}")
        if ext:
            r.append(f"ds_read_b128 {vr(FXe[b],4)}, v{aXe[ks]}")
            for tn in range(2):
                for hr in range(2):
                    r.append(f"ds_read_b64_tr_b16 {vr(FE[b][tn]+2*hr,2)}, v{aE} offset:{EOFF + ks*1280 + hr*160 + tn*32}")
        return r
    def mf(d, x, w, orient):
        A_, B_ = (w, x) if orient == "T" else (x, w)
        return f"v_mfma_f32_16x16x32_bf16 {vr(d,4)}, {vr(A_,4)}, {vr(B_,4)}, {vr(d,4)}"
    def mfmas(b, orient, ext):
        m = [mf(ACC[tm][tn], FX[b][tm], FW[b][tn], orient) for tm in range(4) for tn in range(5)]
        if ext: m += [mf(ACE[tn], FXe[b], FE[b][tn], "T" if ext == "K" else "F") for tn in range(2)]
        return m
    def setaddr(ext):
        a(f"v_add_u32 v{aX[0]}, s{sSt}, v{bX[0]}")
        a(f"v_add_u32 v{aW}, s{sSt}, v{bW}")
        a(f"v_add_u32 v{aX[1]}, s{sSt}, v{bX[1]}")
        if ext:
            a(f"v_add_u32 v{aXe[0]}, s{sSt}, v{bXe[0]}")
            a(f"v_add_u32 v{aXe[1]}, s{sSt}, v{bXe[1]}")
            a(f"v_add_u32 v{aE}, s{sSt}, v{bE}")
        a(f"s_add_u32 s{sSt}, s{sSt}, {ST}\ns_cmp_eq_u32 s{sSt}, {ST*NST}\ns_cselect_b32 s{sSt}, 0, s{sSt}")
    def variant(tag, orient, ext):
        L = f"L_{tag}"
        setaddr(ext)
        mark(0)
        a("s_barrier")
        mark(1)
        for r in reads(0, 0, ext): a(r)
        a(f"s_branch {L}_mid")
        a.raw(".p2align 6")
        a.label(f"{L}_loop")
        a("s_barrier")
        lstamp("gs")
        interleave(a, mfmas(1, orient, ext), reads(0, 0, ext))
        a.label(f"{L}_mid")
        a("s_waitcnt lgkmcnt(0)")
        interleave(a, mfmas(0, orient, ext), reads(1, 1, ext))
        setaddr(ext)
        a(f"s_add_u32 s{sC}, s{sC}, 1\ns_cmp_lt_u32 s{sC}, 10\ns_waitcnt lgkmcnt(0)\ns_cbranch_scc1 {L}_loop")
        for m in mfmas(1, orient, ext): a(m)
        mark(2)
        P = FX[0][0]; k = 0
        for tm in range(4):
            for tn in range(5):
                c = ACC[tm][tn]; p = P + 2 * (k % 8); k += 1
                if orient == "T":
                    for r in (0, 2): a(f"v_pk_mul_f32 {vr(c+r,2)}, {vr(c+r,2)}, {vr(A1[1],2)}")
                a(f"v_cvt_pk_bf16_f32 v{c}, v{c}, v{c+1}")
                a(f"v_cvt_pk_bf16_f32 v{c+1}, v{c+2}, v{c+3}")
                if orient == "T":
                    if tn < 4: a(f"ds_write_b64 v{A0[0]}, {vr(c,2)} offset:{(tm>>1)*1280 + (tm&1)*256 + (tn&1)*512 + (tn>>1)*8}")
                    else: a(f"ds_write_b64 v{A0[1]}, {vr(c,2)} offset:{(tm>>1)*1280 + 1024 + (tm&1)*128}")
                else:
                    a(f"ds_write_b64 v{A0[0]}, {vr(c,2)} offset:{tm*672 + tn*64}")
        if ext:
            if ext == "V":
                a(f"v_and_b32 v{T[0]}, 15, v{vL}\nv_cmp_eq_u32 vcc, 4, v{T[0]}\nv_mov_b32 v{T[6]}, 0x3f803f80")
            for tn in range(2):
                c = ACE[tn]
                a(f"v_cvt_pk_bf16_f32 v{c}, v{c}, v{c+1}")
                a(f"v_cvt_pk_bf16_f32 v{c+1}, v{c+2}, v{c+3}")
                if ext == "V" and tn == 1:
                    a(f"v_cndmask_b32 v{c}, v{c}, v{T[6]}, vcc\nv_cndmask_b32 v{c+1}, v{c+1}, v{T[6]}, vcc")
                a(f"ds_write_b64 v{AE[tn]}, {vr(c,2)}")
        a("s_branch L_stset")
    def store_setup():
        a(f"""
        s_cmp_eq_u32 s{sGrp}, 2
        s_cselect_b32 s{sCT}, 1, 0
        s_cselect_b32 s{sT3}, 1280, 0
        s_cmp_eq_u32 s{sGrp}, 1
        s_cselect_b32 s{sT0}, 1, s{sCT}
        s_cmp_eq_u32 s{sT0}, 1
        s_mov_b32 s{sHS}, {Q_HEAD}
        s_cmov_b32 s{sHS}, {KVS}
        s_mov_b32 s{sTS}, 1280
        s_cmov_b32 s{sTS}, {TILE}
        s_mov_b32 s{sT0}, {Q_OFF}
        s_cmov_b32 s{sT0}, {KV_OFF}
        s_add_u32 s{sT0}, s{sT0}, s{sT3}
        s_cmp_eq_u32 s{sGrp}, 3
        s_cselect_b32 s{sT1}, 32, 0
        s_lshl_b32 s{sT2}, s{sJ4}, 3
        s_add_u32 s{sT1}, s{sT1}, s{sT2}
        s_add_u32 s{sT1}, s{sT1}, s{sW}
        s_mul_i32 s{sT1}, s{sT1}, s{sHS}
        s_add_u32 s{sT0}, s{sT0}, s{sT1}
        s_lshl_b32 s{sT1}, s{sTS}, 2
        s_mul_i32 s{sT2}, s{sT1}, s{sMt}
        s_add_u32 s{sT0}, s{sT0}, s{sT2}
        s_sub_u32 s{sT1}, s{sT1}, s{sT3}
        """)
        srd(8, kWs, f"s{sT0}", f"s{sT1}")
        a(f"""
        s_cmp_eq_u32 s{sCT}, 1
        s_mov_b32 s{sCT}, 80
        s_cmov_b32 s{sCT}, 84
        s_mov_b32 s{sT0}, 820
        s_cmov_b32 s{sT0}, 781
        s_lshl_b32 s{sT2}, s{sCT}, 4
        s_sub_u32 s{sT2}, s{sTS}, s{sT2}
        """)
        for q in range(6):
            a(f"""
            v_add_u32 v{T[0]}, {64*q}, v{vL}
            v_mul_u32_u24 v{T[1]}, s{sT0}, v{T[0]}
            v_lshrrev_b32 v{T[1]}, 16, v{T[1]}
            v_lshlrev_b32 v{T[0]}, 4, v{T[0]}
            v_mad_u32_u24 v{SO[q]}, v{T[1]}, s{sT2}, v{T[0]}
            """)
        a(f"""
        s_lshl_b32 s{sFl}, s{sGrp}, 2
        s_add_u32 s{sFl}, s{sFl}, s{sJ4}
        s_lshl_b32 s{sFl}, s{sFl}, 4
        s_add_u32 s{sFl}, s{sFl}, s{sMt}
        s_lshl_b32 s{sFl}, s{sFl}, 3
        s_add_u32 s{sFl}, s{sFl}, {F1}
        """)
    def pre():
        a(f"v_and_b32 v{T[0]}, 15, v{vL}\nv_lshrrev_b32 v{T[1]}, 4, v{vL}")
    pre(); addr_T()
    a(f"s_cmp_eq_u32 s{sGrp}, 3\ns_cbranch_scc1 L_B")
    variant("T", "T", None)
    a.label("L_B")
    a(f"s_cmp_lt_u32 s{sJ4}, 2\ns_cbranch_scc0 L_BV")
    addr_E("K"); variant("TK", "T", "K")
    a.label("L_BV")
    addr_E("V"); variant("TV", "T", "V")
    a.label("L_F")
    pre(); addr_F(); variant("F", "F", None)
    a.label("L_stset")
    store_setup()
    a.label("L_stgo")
    SD = FX[0][0]
    a(f"""
    s_mul_i32 s{sT0}, s{sW}, {IH}
    s_add_u32 s{sT0}, s{sT0}, {IMG}
    v_lshl_add_u32 v{T[0]}, v{vL}, 4, s{sT0}
    s_waitcnt lgkmcnt(0)
    s_barrier
    """)
    a(f"""
    v_mov_b32 v{T[1]}, {LDS - 32}
    ds_read_b64 {vr(vF,2)}, v{T[1]}
    s_cmp_lg_u32 s{sGrp}, 3
    s_cbranch_scc1 L_noe
    s_cmp_eq_u32 s{sHi}, 0
    s_cbranch_scc1 L_noe
    s_lshl_b32 s{sT0}, s{sW4}, 10
    s_add_u32 s{sT0}, s{sT0}, {EIMG}
    v_lshl_add_u32 v{T[1]}, v{vL}, 4, s{sT0}
    ds_read_b128 {vr(SD+20,4)}, v{T[1]}
    s_and_b32 s{sT1}, s{sW4}, 2
    s_and_b32 s{sT2}, s{sJ4}, 1
    s_add_u32 s{sT1}, s{sT1}, s{sT2}
    s_lshl_b32 s{sT2}, s{sMt}, 2
    s_add_u32 s{sT1}, s{sT1}, s{sT2}
    s_mul_i32 s{sT1}, s{sT1}, {TILE}
    s_add_u32 s{sT1}, s{sT1}, {KV_OFF + 32*KVS}
    s_cmp_lt_u32 s{sJ4}, 2
    s_cselect_b32 s{sT2}, 0, 1280
    s_mov_b32 s{sT3}, 1344
    s_cmov_b32 s{sT3}, 1280
    s_add_u32 s{sT1}, s{sT1}, s{sT2}
    """)
    srd(12, kWs, f"s{sT1}", f"s{sT3}")
    a(f"""
    s_and_b32 s{sT0}, s{sW4}, 1
    s_lshl_b32 s{sT0}, s{sT0}, 10
    v_lshl_add_u32 v{T[1]}, v{vL}, 4, s{sT0}
    s_waitcnt lgkmcnt(0)
    buffer_store_dwordx4 {vr(SD+20,4)}, v{T[1]}, s[12:15], 0 offen {SS}
    L_noe:
    """)
    for q in range(5): a(f"ds_read_b128 {vr(SD+4*q,4)}, v{T[0]} offset:{q*1024}")
    for q in range(5):
        a(f"s_waitcnt lgkmcnt({4-q})\nbuffer_store_dwordx4 {vr(SD+4*q,4)}, v{SO[q]}, s[8:11], 0 offen {SS}")
    a(f"""
    s_cmp_lg_u32 s{sGrp}, 2
    s_cbranch_scc1 L_no6
    ds_read_b128 {vr(SD+20,4)}, v{T[0]} offset:5120
    s_waitcnt lgkmcnt(0)
    buffer_store_dwordx4 {vr(SD+20,4)}, v{SO[5]}, s[8:11], 0 offen {SS}
    L_no6:
    """)
    mark(3)

    R = RegAlloc(BASE)
    vK = [R.alloc("aK0"), R.alloc("aK1")]; vK1 = [R.alloc("aKa"), R.alloc("aKb")]; vV = [R.alloc("aV0"), R.alloc("aV1")]
    vIdx = R.alloc("idx"); vD = R.alloc("dma"); vM = [R.alloc("Ma"), R.alloc("Mb")]
    vOst = R.alloc("ost"); vOst2 = R.alloc("ost2"); vP = R.alloc("pk", 4, 2)
    R.n = max(R.n, SD + 24)
    Q0 = [R.alloc(f"Q0{s}", 4, 4) for s in range(2)]
    Q1 = [R.alloc(f"Q1{s}", 2, 2) for s in range(2)]
    K0 = [R.alloc(f"K0{i}", 4, 4) for i in range(2)]
    K1 = [R.alloc(f"K1{i}", 2, 2) for i in range(2)]
    V = [[R.alloc(f"V{i}{j}", 4, 4) for j in range(2)] for i in range(2)]
    S = [[R.alloc(f"S{s}{p}", 16, 4) for p in range(2)] for s in range(2)]
    O = [R.alloc(f"O{s}", 16, 4) for s in range(2)]
    assert R.n <= SO[0]
    nvmax.append(R.n)
    sHead, sTok, sBr, sOff, sF3, sGo = 28, 29, 30, 31, 32, 33
    R = RegAlloc(O[1] + 16)
    OW = [[R.alloc(f"OW{p}{q}") for q in range(5)] for p in range(2)]
    oM = R.alloc("oM"); oT = R.alloc("oT"); oF = R.alloc("oF"); oW = [R.alloc(f"oW{i}") for i in range(3)]; oS = [R.alloc("oS0"), R.alloc("oS1")]
    nvmax.append(R.n)
    R = RegAlloc(BASE)
    OF = [R.alloc(f"OF{k}", 4, 4) for k in range(16)]
    OT = [R.alloc(f"OT{k}", 2, 2) for k in range(8)]
    WB = [[[R.alloc(f"WB{b}{h}{t}", 4, 4) for t in range(5)] for h in range(2)] for b in range(2)]
    WT4 = [R.alloc(f"WT{t}", 4, 4) for t in range(5)]
    WT = [[WT4[t] + 2 * b for t in range(5)] for b in range(2)]
    assert OT[0] % 4 == 0
    assert R.n <= OW[0][0]
    OC = [228 + 4 * t for t in range(5)]
    WL = GROUP
    sNt, sDone, sRdy, sBo, sTo = 34, 35, 36, 37, 40
    for q in range(5):
        a(f"v_add_u32 v{T[0]}, {64*q}, v{vL}")
        divc(T[1], T[2], T[0], 10, 6554, 16)
        a(f"""
        v_lshrrev_b32 v{T[4]}, 4, v{T[1]}
        v_and_b32 v{T[5]}, 3, v{T[1]}
        v_bfe_u32 v{T[6]}, v{T[1]}, 3, 1
        v_mul_u32_u24 v{T[6]}, 20, v{T[6]}
        v_and_b32 v{T[7]}, 4, v{T[1]}
        v_add3_u32 v{T[6]}, v{T[6]}, v{T[7]}, v{T[5]}
        v_lshl_add_u32 v{T[6]}, v{T[4]}, 3, v{T[6]}
        v_mul_u32_u24 v{T[6]}, 1280, v{T[6]}
        v_lshl_add_u32 v{OW[0][q]}, v{T[2]}, 4, v{T[6]}
        v_lshrrev_b32 v{T[6]}, 2, v{T[1]}
        v_mul_u32_u24 v{T[6]}, 20, v{T[6]}
        v_add3_u32 v{T[6]}, v{T[6]}, v{T[5]}, 16
        v_mul_u32_u24 v{T[6]}, 1280, v{T[6]}
        v_lshl_add_u32 v{OW[1][q]}, v{T[2]}, 4, v{T[6]}
        """)
    a(f"""
    s_and_b32 s{sT0}, s2, 7
    s_lshr_b32 s{sT1}, s2, 3
    s_lshr_b32 s{sBo}, s{sT0}, 2
    s_and_b32 s{sT0}, s{sT0}, 3
    s_lshl_b32 s{sT0}, s{sT0}, 2
    s_and_b32 s{sT2}, s{sT1}, 3
    s_add_u32 s{sT0}, s{sT0}, s{sT2}
    s_lshr_b32 s{sNt}, s{sT1}, 2
    s_lshl_b32 s{sTo}, s{sT0}, 7
    s_lshl_b32 s{sT0}, s{sW}, 4
    s_add_u32 s{sTo}, s{sTo}, s{sT0}
    v_and_b32 v{T[4]}, 15, v{vL}
    v_lshrrev_b32 v{T[1]}, 4, v{vL}
    v_add_u32 v{T[5]}, s{sTo}, v{T[4]}
    v_lshlrev_b32 v{oM}, 15, v{T[1]}
    v_lshl_add_u32 v{oM}, v{T[5]}, 4, v{oM}
    v_lshlrev_b32 v{oT}, 14, v{T[1]}
    v_lshl_add_u32 v{oT}, v{T[5]}, 3, v{oT}
    v_lshrrev_b32 v{T[6]}, 2, v{vL}
    v_mul_u32_u24 v{T[6]}, 160, v{T[6]}
    v_and_b32 v{T[7]}, 3, v{vL}
    v_lshl_add_u32 v{oW[1]}, v{T[7]}, 3, v{T[6]}
    v_add_u32 v{oW[1]}, {WL}, v{oW[1]}
    v_mul_u32_u24 v{T[4]}, 2560, v{T[4]}
    v_lshl_add_u32 v{oS[1]}, v{T[1]}, 3, v{T[4]}
    v_and_b32 v{T[6]}, 1, v{T[1]}
    v_lshl_add_u32 v{T[6]}, v{T[6]}, 5, v{T[4]}
    v_lshrrev_b32 v{T[1]}, 1, v{T[1]}
    v_lshl_add_u32 v{oS[0]}, v{T[1]}, 4, v{T[6]}
    s_lshl_b32 s{sT0}, s{sNt}, 11
    s_lshl_b32 s{sT1}, s{sBo}, 10
    s_add_u32 s{sT0}, s{sT0}, s{sT1}
    s_lshr_b32 s{sT1}, s{sTo}, 9
    s_lshl_b32 s{sT1}, s{sT1}, 8
    s_add_u32 s{sT0}, s{sT0}, s{sT1}
    s_add_u32 s{sT0}, s{sT0}, {F3}
    v_and_b32 v{oF}, 31, v{vL}
    v_lshl_add_u32 v{oF}, v{oF}, 3, s{sT0}
    s_cmp_eq_u32 s{sBo}, 0
    s_cselect_b32 s{sT0}, s{kAo}, s{kBo}
    s_cselect_b32 s{sT1}, s{kAo+1}, s{kBo+1}
    s_mul_i32 s{sT2}, s{sNt}, 160
    s_add_u32 s92, s{sT0}, s{sT2}
    s_addc_u32 s93, s{sT1}, 0
    s_sub_u32 s94, {640*1280}, s{sT2}
    s_mov_b32 s95, 0x00020000
    """)
    a(f"""
    s_and_b32 s{sT0}, s2, 7
    s_lshr_b32 s{sT1}, s2, 3
    s_lshr_b32 s{sBr}, s{sT1}, 4
    s_bfe_u32 s{sT2}, s{sT1}, 0x20002
    s_lshl_b32 s{sHead}, s{sT0}, 2
    s_add_u32 s{sHead}, s{sHead}, s{sT2}
    s_and_b32 s{sT3}, s{sT1}, 3
    s_lshl_b32 s{sTok}, s{sT3}, 9
    s_lshl_b32 s{sT1}, s{sW}, 6
    s_add_u32 s{sTok}, s{sTok}, s{sT1}
    v_and_b32 v{T[0]}, 31, v{vL}
    v_lshrrev_b32 v{T[1]}, 5, v{vL}
    v_lshlrev_b32 v{vK[0]}, 4, v{vL}
    v_lshlrev_b32 v{vD}, 4, v{vL}
    v_lshlrev_b32 v{vK1[0]}, 3, v{T[0]}
    v_lshl_add_u32 v{vK1[0]}, v{T[1]}, 2, v{vK1[0]}
    v_cmp_eq_u32 vcc, 24, v{T[0]}
    v_mov_b32 v{T[3]}, 20
    v_mov_b32 v{T[4]}, {BIG}
    v_cndmask_b32 v{T[2]}, v{T[0]}, v{T[3]}, vcc
    v_mul_u32_u24 v{vV[0]}, 336, v{T[1]}
    v_lshl_add_u32 v{vV[0]}, v{T[2]}, 4, v{vV[0]}
    v_cmp_lt_u32 vcc, 20, v{T[2]}
    v_mov_b32 v{vIdx}, 0xdddddddd
    v_mov_b32 v{K1[0]+1}, 0x3f80
    v_cndmask_b32 v{vV[0]}, v{vV[0]}, v{T[4]}, vcc
    v_cmp_eq_u32 vcc, 20, v{T[0]}
    v_mov_b32 v{K1[1]+1}, 0x3f80
    v_mov_b32 v{Q1[0]+1}, 0
    v_cndmask_b32 v{vV[0]}, v{vV[0]}, v{T[4]}, vcc
    v_mov_b32 v{Q1[1]+1}, 0
    v_add_u32 v{vK[1]}, {3*GROUP}, v{vK[0]}
    v_add_u32 v{vK1[1]}, {3*GROUP}, v{vK1[0]}
    v_add_u32 v{vV[1]}, {3*GROUP}, v{vV[0]}
    s_mul_i32 s{sT1}, s{sBr}, {O_BR}
    s_add_u32 s{sT1}, s{sT1}, {O_OFF}
    """)
    srd(16, kWs, f"s{sT1}", O_BR)
    a(f"""
    s_lshl_b32 s{sT2}, s{sHead}, 16
    s_lshl_b32 s{sT1}, s{sTok}, 4
    s_add_u32 s{sT2}, s{sT2}, s{sT1}
    v_lshlrev_b32 v{vOst}, 15, v{T[1]}
    v_lshl_add_u32 v{vOst}, v{T[0]}, 4, v{vOst}
    v_add_u32 v{vOst}, s{sT2}, v{vOst}
    s_lshl_b32 s{sT2}, s{sHead}, 14
    s_lshl_b32 s{sT1}, s{sTok}, 3
    s_add_u32 s{sT2}, s{sT2}, s{sT1}
    s_add_u32 s{sT2}, s{sT2}, {O_TAIL}
    v_lshlrev_b32 v{vOst2}, 3, v{T[0]}
    v_lshl_add_u32 v{vOst2}, v{T[1]}, 24, v{vOst2}
    v_add_u32 v{vOst2}, s{sT2}, v{vOst2}
    s_lshl_b32 s{sF3}, s{sBr}, 10
    s_lshl_b32 s{sT1}, s{sT3}, 8
    s_add_u32 s{sF3}, s{sF3}, s{sT1}
    s_lshl_b32 s{sT1}, s{sHead}, 3
    s_add_u32 s{sF3}, s{sF3}, s{sT1}
    s_add_u32 s{sF3}, s{sF3}, {F3}
    """)
    a.c("flag addresses to poll (T5): B: slots 12..15 ; A: lanes 0-15 K slot, 16-31 V slot, 32-63 Q slot (own 4 mt)")
    a(f"""
    s_lshr_b32 s{sT1}, s{sHead}, 3
    s_lshl_b32 s{sT1}, s{sT1}, 7
    v_and_b32 v{T[2]}, 15, v{vL}
    v_lshrrev_b32 v{T[3]}, 4, v{vL}
    v_add_u32 v{T[3]}, 1, v{T[3]}
    v_lshlrev_b32 v{T[3]}, 9, v{T[3]}
    v_lshl_add_u32 v{T[3]}, v{T[2]}, 3, v{T[3]}
    v_and_b32 v{T[2]}, 3, v{vL}
    s_lshl_b32 s{sT2}, s{sT3}, 5
    v_lshl_add_u32 v{T[2]}, v{T[2]}, 3, s{sT2}
    v_cmp_gt_u32 vcc, 32, v{vL}
    v_lshlrev_b32 v{T[4]}, 3, v{vL}
    v_add_u32 v{T[4]}, {12*128}, v{T[4]}
    v_cndmask_b32 v{T[5]}, v{T[2]}, v{T[3]}, vcc
    v_add_u32 v{T[5]}, s{sT1}, v{T[5]}
    s_cmp_eq_u32 s{sBr}, 0
    s_cselect_b64 vcc, -1, 0
    s_and_b32 s{sT1}, s2, {NR-1}
    s_lshl_b32 s{sT1}, s{sT1}, 11
    s_add_u32 s{sT1}, s{sT1}, {F1}
    v_cndmask_b32 v{T[5]}, v{T[4]}, v{T[5]}, vcc
    v_add_u32 v{T[5]}, s{sT1}, v{T[5]}
    """)
    for s in range(2):
        for r in range(16): a(f"v_mov_b32 v{O[s]+r}, 0")
    for r in range(8, 16): a(f"v_mov_b32 v{S[1][1]+r}, 0")
    for r in range(4): a(f"v_mov_b32 v{V[1][1]+r}, 0")
    a(f"""
    s_cmp_eq_u32 s{sBr}, 0
    s_cselect_b32 s{sT1}, s{sHead}, 32
    s_mul_i32 s{sT1}, s{sT1}, {KVS}
    s_lshl_b32 s{sT2}, s{sBr}, 5
    s_add_u32 s{sT2}, s{sT2}, s{sHead}
    s_mul_i32 s{sT2}, s{sT2}, {Q_HEAD}
    s_mul_i32 s{sT3}, s{sTok}, 40
    s_add_u32 s{sT2}, s{sT2}, s{sT3}
    s_add_u32 s{sT2}, s{sT2}, {Q_OFF}
    """)
    a(f"v_readfirstlane_b32 s{sN}, v{vF}\nv_readfirstlane_b32 s{sN+1}, v{vF+1}\ns_waitcnt vmcnt(0)")
    srd(8, kWs, f"s{sT1}", KV_SET)
    srd(12, kWs, f"s{sT2}", 2560)
    a(f"""
    s_barrier
    s_cmp_lg_u32 s{sW}, 0
    s_cbranch_scc1 L_f1w
    """)
    put_flag(sFl, 11, NR)
    if PRE: a(f"s_sleep {PRE}")
    mark(4)
    a(f"""
    s_mov_b32 s{sSpin}, {SPIN}
    {f"global_load_dwordx2 {vr(vP,2)}, v{T[5]}, s[{kWs}:{kWs+1}] sc1"+chr(10)+"s_sleep 8" if PP else ""}
    L_f1l:
    global_load_dwordx2 {vr(vF,2)}, v{T[5]}, s[{kWs}:{kWs+1}] sc1
    """)
    if PP:
        a(f"""
        s_waitcnt vmcnt(1)
        v_cmp_ne_u64 vcc, s[{sN}:{sN+1}], {vr(vP,2)}
        s_cbranch_vccz L_f1w
        global_load_dwordx2 {vr(vP,2)}, v{T[5]}, s[{kWs}:{kWs+1}] sc1
        """)
    a(f"""
    s_waitcnt vmcnt({1 if PP else 0})
    v_cmp_ne_u64 vcc, s[{sN}:{sN+1}], {vr(vF,2)}
    s_sub_u32 s{sSpin}, s{sSpin}, 1
    s_cbranch_scc1 L_f1w
    s_cbranch_vccnz L_f1l
    L_f1w:
    s_barrier
    """)
    mark(5)
    if not EARLY:
      for s in range(2):
        a(f"buffer_load_dwordx4 {vr(Q0[s],4)}, v{vK[0]}, s[12:15], 0 offen offset:{1280*s} {SC}")
        a(f"buffer_load_dword v{Q1[s]}, v{vK1[0]}, s[12:15], 0 offen offset:{1280*s+1024} {SC}")
    a(f"s_lshl_b32 s{sOff}, s{sW}, 10")
    dma = f"buffer_load_dwordx4 v{vD}, s[8:11], s{sOff} offen {SC} lds"
    kd = f"s_mov_b32 m0, s{sOff}\ns_nop 0\n{dma}\ns_add_u32 s{sOff}, s{sOff}, 8192"
    for k in range(1 if EARLY else 4): a(kd)
    if EARLY:
      for s in range(2):
        a(f"buffer_load_dwordx4 {vr(Q0[s],4)}, v{vK[0]}, s[12:15], 0 offen offset:{1280*s} {SC}")
        a(f"buffer_load_dword v{Q1[s]}, v{vK1[0]}, s[12:15], 0 offen offset:{1280*s+1024} {SC}")
      a(kd)
    def qk1(s, Tt): p = Tt % 2; return f"v_mfma_f32_32x32x16_bf16 {vr(S[s][p],16)}, {vr(K0[p],4)}, {vr(Q0[s],4)}, 0"
    def qk2(s, Tt): p = Tt % 2; return f"v_mfma_f32_32x32x8_bf16 {vr(S[s][p],16)}, {vr(K1[p],2)}, {vr(Q1[s],2)}, {vr(S[s][p],16)}"
    def pv(s, Tt, h): p = Tt % 2; return f"v_smfmac_f32_32x32x32_bf16 {vr(O[s],16)}, {vr(V[p][h],4)}, {vr(S[s][p]+8*h,8)}, v{vIdx}"
    def rowmax(first):
        for s in range(2):
            x = S[s][0]
            if first:
                a(f"v_max3_f32 v{vM[s]}, v{x}, v{x+1}, v{x+2}")
                for r in range(3, 15, 2): a(f"v_max3_f32 v{vM[s]}, v{x+r}, v{x+r+1}, v{vM[s]}")
                a(f"v_max_f32 v{vM[s]}, v{x+15}, v{vM[s]}")
            else:
                for r in range(0, 16, 2): a(f"v_max3_f32 v{vM[s]}, v{x+r}, v{x+r+1}, v{vM[s]}")
    def crossmax():
        a(f"""
        v_mov_b32 v{T[0]}, v{vM[0]}
        v_mov_b32 v{T[1]}, v{vM[1]}
        s_nop 1
        v_permlane32_swap_b32 v{T[0]}, v{vM[0]}
        v_permlane32_swap_b32 v{T[1]}, v{vM[1]}
        s_nop 1
        v_max_f32 v{vM[0]}, v{vM[0]}, v{T[0]}
        v_max_f32 v{vM[1]}, v{vM[1]}, v{T[1]}
        """)
    a(f"s_waitcnt vmcnt({1 if EARLY else 3})\ns_barrier")
    mark(6)
    a(f"""
    ds_read_b128 {vr(K0[0],4)}, v{vK[0]}
    ds_read_b32 v{K1[0]}, v{vK1[0]} offset:1024
    ds_read_b128 {vr(K0[1],4)}, v{vK[0]} offset:{TILE}
    ds_read_b32 v{K1[1]}, v{vK1[0]} offset:{TILE+1024}
    ds_read_b128 {vr(V[0][0],4)}, v{vV[0]} offset:1280
    ds_read_b128 {vr(V[0][1],4)}, v{vV[0]} offset:{1280+672}
    s_waitcnt lgkmcnt(4)
    {qk1(0,0)}
    {qk2(0,0)}
    {qk1(1,0)}
    {qk2(1,0)}
    v_cmp_gt_u32 vcc, 32, v{vL}
    {kd + chr(10) + kd + chr(10) + "s_nop 0" if EARLY else "s_nop 8"}
    """)
    rowmax(True)
    crossmax()
    for s in range(2):
        a(f"""
        v_sub_f32 v{T[2]}, 0, v{vM[s]}
        v_and_b32 v{T[3]}, 0xffff0000, v{T[2]}
        v_sub_f32 v{T[4]}, v{T[2]}, v{T[3]}
        v_and_b32 v{T[4]}, 0xffff0000, v{T[4]}
        v_cndmask_b32 v{T[5]}, v{T[4]}, v{T[3]}, vcc
        v_lshrrev_b32 v{Q1[s]+1}, 16, v{T[5]}
        v_add_f32 v{vP+2*s}, v{T[3]}, v{T[4]}
        v_add_f32 v{vP+2*s+1}, v{T[3]}, v{T[4]}
        """)
    for s in range(2):
        for r in range(0, 16, 2): a(f"v_pk_add_f32 {vr(S[s][0]+r,2)}, {vr(S[s][0]+r,2)}, {vr(vP+2*s,2)}")
    a(f"""
    s_mov_b32 s{sC}, 0
    s_setprio 1
    s_waitcnt vmcnt(2) lgkmcnt(0)
    s_barrier
    """)
    mark(7)
    def body(first):
        for t in range(16):
            Tt = 16 + t
            def ad(regs, tl, o):
                return f"v{regs[1]} offset:{(tl-12)*TILE+o}" if 12 <= tl < 16 else f"v{regs[0]} offset:{tl*TILE+o}"
            for s in range(2):
                X = S[s][Tt % 2]
                e = lambda i: a(f"v_exp_f32 v{X+i}, v{X+i}")
                e(0); e(1)
                if s == 0:
                    a(pv(1, Tt - 1, 1))
                    if first and t < 8: a(f"s_mov_b32 m0, s{sOff}")
                    a(f"ds_read_b128 {vr(V[(Tt+1)%2][0],4)}, {ad(vV,t+1,1280)}")
                else:
                    a(pv(0, Tt, 1))
                    if first and t < 8: a(f"s_add_u32 m0, s{sOff}, 8192")
                    if stamp and "as" in DBG and t % 4 == 0: a("s_memtime s[88:89]")
                    a(f"ds_read_b128 {vr(V[(Tt+1)%2][1],4)}, {ad(vV,t+1,1952)}")
                e(2); e(3); e(4); e(5)
                a(qk1(s, Tt + 1))
                if s == 0: a(f"ds_read_b128 {vr(K0[Tt%2],4)}, {ad(vK,t+2,0)}")
                elif first and t < 8: a(dma.replace(f"s{sOff}", f"s{sT3}"))
                elif not first and t == 15: a(f"s_add_u32 s{sC}, s{sC}, 1")
                e(6); e(7); e(8); e(9)
                a(pv(s, Tt, 0))
                if s == 0:
                    a("s_waitcnt lgkmcnt(2)")
                    a(f"ds_read_b32 v{K1[Tt%2]}, {ad(vK1,t+2,1024)}")
                else:
                    if first and t < 8: a(f"s_add_u32 s{sOff}, s{sOff}, 16384")
                    if stamp and "as" in DBG and t % 4 == 0:
                        a(f"s_waitcnt lgkmcnt(0)\ns_sub_u32 s88, s88, s48\ns_mov_b32 m0, s63\ns_add_u32 s63, s63, 1\nv_writelane_b32 v255, s88, m0")
                    a("s_waitcnt lgkmcnt(1)")
                    if not first and t == BT1:
                        a(f"s_cmp_eq_u32 s{sC}, 1\ns_cbranch_scc1 L_bal1\nL_bal1r:")
                    if not first and t == BT:
                        a(f"s_cmp_eq_u32 s{sC}, 3\ns_cbranch_scc1 L_bal\nL_balr:")
                e(10); e(11); e(12); e(13)
                a(qk2(s, Tt + 1))
                if first and t < 8 and s == 0: a(dma + f"\ns_add_u32 s{sT3}, s{sOff}, 8192")
                e(14); e(15)
            if first and t in (3, 7):
                a("s_waitcnt vmcnt(8)\ns_barrier")
    def bump():
        for r in (vK, vK1, vV): a(f"v_add_u32 v{r[0]}, {4*GROUP}, v{r[0]}")
        a(f"""
        s_cmp_eq_u32 s{sC}, 3
        s_mov_b32 s{sT0}, {4*GROUP}
        s_cmov_b32 s{sT0}, {(4*GROUP - 15*GROUP) & 0xffffffff}
        """)
        for r in (vK, vK1, vV): a(f"v_add_u32 v{r[1]}, s{sT0}, v{r[1]}")
    a.raw(".p2align 6")
    body(True)
    a.c("group 15 -> slot 0 (all waves are past group 0)")
    a(f"""
    s_lshl_b32 s{sT0}, s{sW}, 11
    s_min_u32 s{sT1}, s{sT0}, {GROUP-1024}
    s_mov_b32 m0, s{sT1}
    s_add_u32 s{sOff}, s{sT1}, {15*GROUP}
    {dma}
    s_add_u32 s{sT0}, s{sT0}, 1024
    s_min_u32 s{sT1}, s{sT0}, {GROUP-1024}
    s_mov_b32 m0, s{sT1}
    s_add_u32 s{sOff}, s{sT1}, {15*GROUP}
    {dma}
    s_mov_b32 s{sC}, 1
    """)
    bump()
    a.raw(".p2align 6")
    a.label("L_loop")
    body(False)
    a(f"""
    s_cmp_eq_u32 s{sC}, 4
    s_cbranch_scc1 L_adone
    """)
    bump()
    a(f"""
    s_cmp_lg_u32 s{sC}, 2
    s_cbranch_scc1 L_loop
    s_waitcnt vmcnt(0)
    s_barrier
    s_setprio 1
    s_cmp_eq_u32 s{sHi}, 0
    s_cbranch_scc1 L_wpf
    s_setprio 2
    s_branch L_loop
    L_adone:
    s_setprio 3
    s_waitcnt lgkmcnt(0)
    {pv(1, 31, 1)}
    """)
    mark(8)
    lo, hi = 0x2b800000, 0x5d800000
    if force_fallback: lo = 0x7f000000
    lb = lambda s: f"v_mov_b32 v{O[s]+13}, v{O[s]+12}\ns_nop 1\nv_permlane32_swap_b32 v{O[s]+12}, v{O[s]+13}\ns_nop 1"
    for s in range(2):
        a(lb(s))
        a(f"v_mov_b32 v{T[s]}, v{O[s]+12}")
        for r in range(12): a(f"v_fma_f32 v{T[s]}, v{O[s]+r}, 0, v{T[s]}")
    a(f"""
    v_cmp_le_f32 vcc, 0x{lo:x}, v{T[0]}
    s_mov_b64 s[{sM0}:{sM1}], vcc
    v_cmp_le_f32 vcc, 0x{lo:x}, v{T[1]}
    s_and_b64 s[{sM0}:{sM1}], s[{sM0}:{sM1}], vcc
    v_cmp_ge_f32 vcc, 0x{hi:x}, v{T[0]}
    s_and_b64 s[{sM0}:{sM1}], s[{sM0}:{sM1}], vcc
    v_cmp_ge_f32 vcc, 0x{hi:x}, v{T[1]}
    s_and_b64 s[{sM0}:{sM1}], s[{sM0}:{sM1}], vcc
    s_cmp_eq_u64 s[{sM0}:{sM1}], -1
    s_cbranch_scc0 L_fallback
    L_store:
    v_rcp_f32 v{vP}, v{O[0]+12}
    v_rcp_f32 v{vP+2}, v{O[1]+12}
    v_mov_b32 v{vP+1}, v{vP}
    v_mov_b32 v{vP+3}, v{vP+2}
    """)
    for s in range(2):
        for r in range(0, 12, 2): a(f"v_pk_mul_f32 {vr(O[s]+r,2)}, {vr(O[s]+r,2)}, {vr(vP+2*s,2)}")
        for r in range(6): a(f"v_cvt_pk_bf16_f32 v{S[s][0]+r}, v{O[s]+2*r}, v{O[s]+2*r+1}")
        a(f"buffer_store_dwordx4 {vr(S[s][0],4)}, v{vOst}, s[16:19], 0 offen offset:{512*s} {SS}")
        a(f"buffer_store_dwordx2 {vr(S[s][0]+4,2)}, v{vOst2}, s[16:19], 0 offen offset:{256*s} {SS}")

    sU = [3, 4, 5, 6, 7, 12, 13, 14]
    def blk(pat):
        for q in range(5):
            a(f"s_add_u32 m0, s{sT0}, {WL + q*1024}\ns_nop 0\nbuffer_load_dwordx4 v{OW[pat][q]}, s[92:95], s{sT1} offen lds")
    a(f"""
    s_mul_i32 s{sT0}, s{sBo}, {O_BR}
    s_add_u32 s{sT0}, s{sT0}, {O_OFF}
    """)
    srd(8, kWs, f"s{sT0}", O_BR)
    a(f"""
    s_mov_b32 s{sDone}, 0
    s_mov_b32 s{sSpin}, {SPIN}
    s_barrier
    s_cmp_ge_u32 s{sW}, 6
    s_cbranch_scc1 L_ow4
    s_cmp_ge_u32 s{sW}, 4
    s_cbranch_scc1 L_ow2
    s_mul_i32 s{sT0}, s{sW}, 5120
    s_add_u32 s{sT0}, s{sT0}, {16*5120}
    s_mul_i32 s{sT1}, s{sW}, {160*1280}
    """)
    blk(1)
    a(f"""
    s_branch L_ow3
    L_ow2:
    s_add_u32 s{sT2}, s{sW}, 10
    s_mul_i32 s{sT0}, s{sT2}, 5120
    s_mul_i32 s{sT1}, s{sT2}, {40*1280}
    """)
    blk(0)
    a(f"""
    L_ow3:
    s_waitcnt vmcnt(5)
    s_branch L_ow5
    L_ow4:
    s_waitcnt vmcnt(0)
    L_ow5:
    s_barrier
    s_cmp_lg_u32 s{sW}, 7
    s_cbranch_scc1 L_nf3
    """)
    put_flag(sF3, 11)
    mark(9)
    a(f"""
    L_tp:
    global_load_dwordx2 {vr(vF,2)}, v{oF}, s[{kWs}:{kWs+1}] sc1
    s_waitcnt vmcnt(0)
    v_cmp_eq_u64 vcc, s[{sN}:{sN+1}], {vr(vF,2)}
    s_sub_u32 s{sSpin}, s{sSpin}, 1
    s_cselect_b32 vcc_lo, -1, vcc_lo
    s_lshr_b32 s{sT0}, vcc_lo, 1
    s_and_b32 s{sT0}, s{sT0}, vcc_lo
    s_lshr_b32 s{sT1}, s{sT0}, 2
    s_and_b32 s{sT0}, s{sT0}, s{sT1}
    s_and_b32 s{sRdy}, s{sT0}, 0x11111111
    s_bcnt1_i32_b32 s{sT0}, s{sRdy}
    s_cmp_lt_u32 s{sT0}, {MINR}
    s_cbranch_scc1 L_tp
    v_mov_b32 v{T[0]}, {LDS - 32}
    v_mov_b32 v{T[1]}, s{sRdy}
    ds_write_b32 v{T[0]}, v{T[1]}
    L_nf3:
    s_mul_i32 s{sT0}, s{sTo}, 2560
    s_mul_i32 s{sT1}, s{sBo}, 1280
    s_add_u32 s{sT0}, s{sT0}, s{sT1}
    s_mul_i32 s{sT1}, s{sNt}, 160
    s_add_u32 s{sT0}, s{sT0}, s{sT1}
    s_sub_u32 s{sT1}, {2048*2560}, s{sT0}
    """)
    srd(16, kOut, f"s{sT0}", f"s{sT1}")
    a(f"""
    v_mov_b32 v{T[0]}, {LDS - 32}
    s_waitcnt vmcnt(0) lgkmcnt(0)
    s_barrier
    ds_read_b32 v{T[1]}, v{T[0]}
    s_waitcnt lgkmcnt(0)
    v_readfirstlane_b32 s{sRdy}, v{T[1]}
    s_nop 3
    """)
    def issue(p):
        a(f"""
        s_andn2_b32 s{sT0}, s{sRdy}, s{sDone}
        s_cbranch_scc1 L_is{p}
        L_ip{p}:
        global_load_dwordx2 {vr(vF,2)}, v{oF}, s[{kWs}:{kWs+1}] sc1
        s_waitcnt vmcnt(0)
        v_cmp_eq_u64 vcc, s[{sN}:{sN+1}], {vr(vF,2)}
        s_sub_u32 s{sSpin}, s{sSpin}, 1
        s_cselect_b32 vcc_lo, -1, vcc_lo
        s_lshr_b32 s{sT0}, vcc_lo, 1
        s_and_b32 s{sT0}, s{sT0}, vcc_lo
        s_lshr_b32 s{sT1}, s{sT0}, 2
        s_and_b32 s{sT0}, s{sT0}, s{sT1}
        s_and_b32 s{sRdy}, s{sT0}, 0x11111111
        s_andn2_b32 s{sT0}, s{sRdy}, s{sDone}
        s_cbranch_scc0 L_ip{p}
        L_is{p}:
        s_ff1_i32_b32 s{sU[p]}, s{sT0}
        s_bitset1_b32 s{sDone}, s{sU[p]}
        s_lshl_b32 s{sT0}, s{sU[p]}, 16
        s_add_u32 s{sT1}, s{sT0}, {4*32768}
        s_lshl_b32 s{sT2}, s{sU[p]}, 14
        s_add_u32 s{sT2}, s{sT2}, {O_TAIL}
        {"" if "nol" in DBG else f"buffer_load_dwordx2 {vr(OT[p],2)}, v{oT}, s[8:11], s{sT2} offen {SC}"}
        {"" if "nol" in DBG else f"buffer_load_dwordx4 {vr(OF[2*p],4)}, v{oM}, s[8:11], s{sT0} offen {SC}"}
        buffer_load_dwordx4 {vr(OF[2*p+1],4)}, v{oM}, s[8:11], s{sT1} offen {SC}
        """)
    def wreads(p):
        b = p % 2
        a(f"""
        s_mul_i32 s{sT0}, s{sU[p]}, 2560
        s_mul_i32 s{sT1}, s{sU[p]}, 640
        s_add_u32 s{sT1}, s{sT1}, {16*5120}
        v_add_u32 v{oW[0]}, s{sT0}, v{oW[1]}
        v_add_u32 v{oW[2]}, s{sT1}, v{oW[1]}
        """)
        r = [f"ds_read_b64_tr_b16 {vr(WT[b][t],2)}, v{oW[2]} offset:{32*t}" for t in range(5)]
        r += [f"ds_read_b64_tr_b16 {vr(WB[b][h][t]+2*hr,2)}, v{oW[0]} offset:{h*5120 + hr*2560 + 32*t}" for h in range(2) for t in range(5) for hr in range(2)]
        if "now" in DBG: r = r[:5]
        return r
    if "noo" in DBG: a("s_mov_b32 s10, 0")
    mark(10)
    for p in range(LA): issue(p)
    for i, x in enumerate(wreads(0)):
        if i in (12, 20): a("s_waitcnt lgkmcnt(4)")
        a(x)
    for p in range(8):
        b = p % 2
        lstamp("os")
        a(f"s_waitcnt vmcnt({3*min(LA-1, 7-p)}) lgkmcnt(0)")
        nx = wreads(p + 1) if p < 7 else []
        mm = [f"v_mfma_f32_16x16x32_bf16 {vr(OC[t],4)}, {vr(WT4[t],4)}, {vr(OT[p-1],4)}, {vr(OC[t],4)}" for t in range(5)] if b else []
        mm += [f"v_mfma_f32_16x16x32_bf16 {vr(OC[t],4)}, {vr(WB[b][h][t],4)}, {vr(OF[2*p+h],4)}, {vr(OC[t],4) if (p, h) != (0, 0) else 0}" for h in range(2) for t in range(5)]
        nx = nx[5:] + nx[:5]
        k = 2 if b else 3
        for i, m in enumerate(mm):
            a(m)
            if nx and i in ((6, 10) if b else (4, 7)): a("s_waitcnt lgkmcnt(3)")
            for _ in range(k):
                if nx: a(nx.pop(0))
        assert not nx
        if p + LA < 8: issue(p + LA)
    a("s_nop 3")
    mark(11)
    for t in range(5):
        p = OF[0] + 2 * t
        a(f"v_cvt_pk_bf16_f32 v{p}, v{OC[t]}, v{OC[t]+1}")
        a(f"v_cvt_pk_bf16_f32 v{p+1}, v{OC[t]+2}, v{OC[t]+3}")
        if t % 2 == 1:
            a(f"s_nop 1\nv_permlane16_swap_b32 v{p-2}, v{p}\nv_permlane16_swap_b32 v{p-1}, v{p+1}")
            a(f"buffer_store_dwordx4 {vr(p-2,4)}, v{oS[0]}, s[16:19], 0 offen offset:{64*(t//2)} {OS}")
    a(f"buffer_store_dwordx2 {vr(OF[0]+8,2)}, v{oS[1]}, s[16:19], 0 offen offset:128 {OS}")
    mark(12)
    stamp_end()
    a.label("L_end")
    a("s_endpgm")
    def blk(pat):
        for q in range(5):
            a(f"s_add_u32 m0, s{sT0}, {WL + q*1024}\ns_nop 0\nbuffer_load_dwordx4 v{OW[pat][q]}, s[92:95], s{sT1} offen lds")
    a(f"""
    L_wpf:
    s_mov_b32 s{sT2}, s{sW}
    L_wpl:
    s_mul_i32 s{sT0}, s{sT2}, 5120
    s_mul_i32 s{sT1}, s{sT2}, {40*1280}
    """)
    blk(0)
    a(f"""
    s_add_u32 s{sT2}, s{sT2}, 4
    s_cmp_lt_u32 s{sT2}, 14
    s_cbranch_scc1 L_wpl
    s_mov_b32 s{sT0}, {LDS}
    s_mul_i32 s{sT1}, s{sW}, {160*1280}
    """)
    blk(1)
    a(f"""
    s_cmp_ge_u32 s{sT2}, 16
    s_cbranch_scc1 L_loop
    s_mul_i32 s{sT1}, s{sT2}, {40*1280}
    """)
    blk(0)
    a("s_branch L_loop")
    a("L_bal1:\ns_setprio 0\ns_branch L_bal1r")
    a.label("L_bal")
    a("s_setprio 0\ns_branch L_balr")

    a.label("L_fallback")
    for r in (vK, vK1, vV): a(f"v_subrev_u32 v{r[0]}, {12*GROUP}, v{r[0]}")
    a(f"""
    v_mov_b32 v{Q1[0]+1}, 0
    v_mov_b32 v{Q1[1]+1}, 0
    v_mov_b32 v{vM[0]}, 0xff800000
    v_mov_b32 v{vM[1]}, 0xff800000
    s_mov_b32 s{sGo}, 0
    L_fb1:
    buffer_load_dwordx4 {vr(K0[0],4)}, v{vK[0]}, s[8:11], s{sGo} offen {SC}
    buffer_load_dword v{K1[0]}, v{vK1[0]}, s[8:11], s{sGo} offen offset:1024 {SC}
    s_waitcnt vmcnt(0)
    {qk1(0,0)}
    {qk2(0,0)}
    {qk1(1,0)}
    {qk2(1,0)}
    s_add_u32 s{sGo}, s{sGo}, {TILE}
    s_nop 8
    """)
    rowmax(False)
    a(f"s_cmp_lt_u32 s{sGo}, {KV_SET}\ns_cbranch_scc1 L_fb1")
    crossmax()
    for s in range(2):
        for r in range(16): a(f"v_mov_b32 v{O[s]+r}, 0")
    a(f"""
    s_mov_b32 s{sGo}, 0
    L_fb2:
    buffer_load_dwordx4 {vr(K0[0],4)}, v{vK[0]}, s[8:11], s{sGo} offen {SC}
    buffer_load_dword v{K1[0]}, v{vK1[0]}, s[8:11], s{sGo} offen offset:1024 {SC}
    buffer_load_dwordx4 {vr(V[0][0],4)}, v{vV[0]}, s[8:11], s{sGo} offen offset:1280 {SC}
    buffer_load_dwordx4 {vr(V[0][1],4)}, v{vV[0]}, s[8:11], s{sGo} offen offset:{1280+672} {SC}
    s_waitcnt vmcnt(0)
    {qk1(0,0)}
    {qk2(0,0)}
    {qk1(1,0)}
    {qk2(1,0)}
    s_add_u32 s{sGo}, s{sGo}, {TILE}
    s_nop 8
    """)
    for s in range(2):
        for r in range(16): a(f"v_sub_f32 v{S[s][0]+r}, v{S[s][0]+r}, v{vM[s]}")
        for r in range(16): a(f"v_exp_f32 v{S[s][0]+r}, v{S[s][0]+r}")
    a(f"""
    s_nop 1
    {pv(0,0,0)}
    {pv(0,0,1)}
    {pv(1,0,0)}
    {pv(1,0,1)}
    s_cmp_lt_u32 s{sGo}, {KV_SET}
    s_cbranch_scc1 L_fb2
    s_nop 15
    {lb(0)}
    {lb(1)}
    s_branch L_store
    L_codeend:
    """)
    print("nv per phase", nvmax)
    kernel_desc(a, name, 256, 102)

if __name__ == "__main__":
    import sys
    NAME = "concat_heads__mha_block__grouped_kv_mqa__prompt"
    ref = open(f"cdna_kernels/{NAME}.s.ref").read().split("\n")
    hdr = [l for l in ref if l.startswith(";") and "@launch" not in l]
    opts = eval("dict(" + (sys.argv[2] if len(sys.argv) > 2 else "") + ")")
    a = Asm()
    a.raw('.amdgcn_target "amdgcn-amd-amdhsa--gfx950"')
    gen(a, NAME + "_kernel", **opts)
    out = "\n".join(hdr) + f"\n; @launch grid=(256,1,1) block=(512,1,1) lds={LDS}\n" + a.text()
    dst = sys.argv[1] if len(sys.argv) > 1 else f"cdna_kernels/{NAME}.s"
    open(dst, "w").write(out)
```

```python
import struct
from common import Asm, vr, RegAlloc, kernel_header, kernel_desc

def f32bits(x): return struct.unpack("<I", struct.pack("<f", x))[0]
QSCALE = f32bits((20 ** -0.5) * 1.4426950408889634)

TILE = 2624; GROUP = 4 * TILE; KV_SET = 16 * GROUP
KV_OFF = 0
KVS = KV_SET + 128
Q_OFF = KV_OFF + 33 * KVS
Q_HEAD = 64 * 1280 + 128
O_OFF = Q_OFF + 64 * Q_HEAD
O_TAIL = 64 * 32768 + 128
O_BR = O_TAIL + 32 * 16384 + 128
F1 = O_OFF + 2 * O_BR
F3 = F1 + 64 * 2048
WS_USED = F3 + 8 * 2048
ST_OFF = 16 << 20
assert WS_USED <= ST_OFF
LDS = 163840
BIG = 0x100000
SPIN = 1000000
kAx, kAw, kAo, kBx, kBq, kBk, kBv, kBo, kOut, kDbg, kWs = 64, 66, 68, 70, 72, 74, 76, 78, 80, 82, 84
sN = 86

def interleave(a, mf, rd):
    rd = list(rd); n = len(mf)
    for i, m in enumerate(mf):
        a(m)
        k = 2 if len(rd) > (n - i - 3) else 1
        for _ in range(k):
            if rd: a(rd.pop(0))
    for r in rd: a(r)

def gen(a, name, stamp=False, force_fallback=False, SC="sc1", DBG="", AHEAD=1, ROT=True, LPF=0, SL1=0, SL3=8, SL4=1, BAL=11, CPF=False, UPR=2, LA=3, TICK=False, TST=5, SS=None, NR=8, PRE=0, EARLY=True, BT=9, ESP=True, OS='', TLB=0, PP=False, MINR=2, BT1=11, SPF=17, SPL=0, EPF=0, WB2=None):
    SS = SS or SC
    vL = 1
    T = list(range(2, 10))
    vF = 10
    BASE = 12
    sW, sI, sT0, sT1, sT2, sT3, sC = 20, 21, 23, 24, 25, 26, 27
    sW4, sHi, sSpin, sFl, sM0, sM1 = 22, 38, 43, 39, 44, 45
    nvmax = []
    uid = [0]
    def mark(i):
        if "rs" in DBG:
            a(f"s_memrealtime s[88:89]\ns_waitcnt lgkmcnt(0)\ns_mov_b32 s{50+i}, s88")
            return
        if "rt" in DBG:
            a(f"s_memrealtime s[88:89]\ns_waitcnt lgkmcnt(0)\ns_mov_b32 s{50+i}, s88")
            return
        if stamp: a(f"s_memtime s[88:89]\ns_waitcnt lgkmcnt(0)\ns_sub_u32 s{50+i}, s88, s48")
    def lstamp(tag):
        if stamp and tag in DBG:
            a(f"s_memtime s[88:89]\ns_waitcnt lgkmcnt(0)\ns_sub_u32 s88, s88, s48\ns_mov_b32 m0, s63\ns_add_u32 s63, s63, 1\ns_min_u32 s63, s63, 15\nv_writelane_b32 v255, s88, m0")
    def stamp_end():
        if "rt" in DBG:
            a(f"s_cmp_lg_u32 s{sW}, 0\ns_cbranch_scc1 L_end\ns_waitcnt vmcnt(0)\ns_memrealtime s[88:89]\ns_waitcnt lgkmcnt(0)\ns_mov_b32 s60, s88\ns_mov_b32 s63, s46\nv_mov_b32 v2, 0")
            for i in range(14):
                a(f"s_sub_u32 s88, s{50+i}, s{sN}\ns_add_u32 s88, s88, 1000\nv_writelane_b32 v2, s88, {i}")
            a(f"v_lshlrev_b32 v3, 2, v{vL}\ns_mov_b64 exec, 0x3fff\nglobal_atomic_umax v3, v2, s[{kDbg}:{kDbg+1}] offset:8 sc1")
            return
        if not stamp: return
        Z = 64
        a(f"""
        s_waitcnt vmcnt(0) lgkmcnt(0)
        s_memrealtime s[90:91]
        s_memtime s[88:89]
        s_waitcnt lgkmcnt(0)
        s_sub_u32 s88, s88, s48
        v_mov_b32 v{Z}, s46
        v_mov_b32 v{Z+1}, s90
        v_mov_b32 v{Z+2}, s88
        """)
        for i in range(13): a(f"v_mov_b32 v{Z+3+i}, s{50+i}")
        a(f"""
        s_lshl_b32 s88, s2, 3
        s_add_u32 s88, s88, s{sW}
        s_lshl_b32 s88, s88, 6
        s_add_u32 s88, s88, {ST_OFF}
        v_mov_b32 v{T[0]}, s88
        s_add_u32 s88, s88, 262144
        v_lshl_add_u32 v{T[1]}, v{vL}, 2, s88
        s_mov_b64 exec, 0xffff
        global_store_dword v{T[1]}, v255, s[{kWs}:{kWs+1}]
        s_mov_b64 exec, 1
        """)
        for i in range(4): a(f"global_store_dwordx4 v{T[0]}, {vr(Z+4*i,4)}, s[{kWs}:{kWs+1}] offset:{16*i}")
    def srd(d, base, off, size):
        a(f"""
        s_add_u32 s{d}, s{base}, {off}
        s_addc_u32 s{d+1}, s{base+1}, 0
        s_mov_b32 s{d+2}, {size}
        s_mov_b32 s{d+3}, 0x00020000
        """)
    def divc(vq, vrem, vn, d, mul, sh):
        a(f"v_mul_u32_u24 v{vq}, {mul}, v{vn}")
        a(f"v_lshrrev_b32 v{vq}, {sh}, v{vq}")
        a(f"v_mul_u32_u24 v{vrem}, {d}, v{vq}")
        a(f"v_sub_u32 v{vrem}, v{vn}, v{vrem}")
    def get_nonce():
        uid[0] += 1; u = uid[0]
        a(f"""
        v_mov_b32 v{T[0]}, 0
        s_mov_b32 s{sSpin}, {SPIN}
        L_gn{u}:
        global_load_dwordx2 {vr(vF,2)}, v{T[0]}, s[{kDbg}:{kDbg+1}] sc1
        s_waitcnt vmcnt(0)
        v_readfirstlane_b32 s{sN}, v{vF}
        v_readfirstlane_b32 s{sN+1}, v{vF+1}
        s_sub_u32 s{sSpin}, s{sSpin}, 1
        s_cbranch_scc1 L_gd{u}
        s_cmp_eq_u32 s{sN}, 0
        s_cbranch_scc1 L_gn{u}
        L_gd{u}:
        """)
    def put_flag(flag_sgpr, shift, nr=8):
        a(f"""
        v_lshl_add_u32 v{T[0]}, v{vL}, {shift}, s{flag_sgpr}
        v_mov_b32 v{T[2]}, s{sN}
        v_mov_b32 v{T[3]}, s{sN+1}
        s_mov_b32 exec_lo, {(1 << min(nr, 32)) - 1}
        s_mov_b32 exec_hi, {-1 if nr == 64 else 0}
        global_store_dwordx2 v{T[0]}, {vr(T[2],2)}, s[{kWs}:{kWs+1}] sc1
        s_mov_b64 exec, -1
        """)

    kernel_header(a, name)
    sMt, sGrp, sJ4, sLd, sSt, sHS, sScale = 28, 29, 30, 31, 32, 33, 34
    sOx, sOw, sOe, sM, sLd64, sWm, sWn, sRot, sTS, sCT = 35, 36, 37, 40, 41, 42, 92, 93, 94, 95
    a(f"""
    s_getpc_b64 s[96:97]
    s_cmp_ge_u32 s2, 256
    s_cbranch_scc1 L_end
    s_load_dwordx16 s[64:79], s[0:1], 0
    s_load_dwordx4 s[80:83], s[0:1], 64
    s_load_dwordx2 s[84:85], s[0:1], 80
    {chr(10).join(f"s_load_dword s99, s[96:97], {128*(i+1)}" for i in range(EPF))}
    s_memrealtime s[46:47]
    {"s_memtime s[48:49]" if stamp else ""}
    {"s_mov_b32 s63, 0" if stamp else ""}
    v_lshrrev_b32 v{T[0]}, 6, v0
    v_and_b32 v{vL}, 63, v0
    s_getreg_b32 s{sT1}, hwreg(HW_REG_XCC_ID, 0, 3)
    v_readfirstlane_b32 s{sW}, v{T[0]}
    """)
    if TICK:
        a.c("logical workgroup id = (die, ticket on that die's counter); a full die spills to the next counter")
        a(f"""
        v_mov_b32 v{T[2]}, {LDS - 16}
        s_cmp_lg_u32 s{sW}, 0
        s_cbranch_scc1 L_tk2
        v_mov_b32 v{T[1]}, 1
        s_mov_b32 s{sT3}, 16
        s_mov_b64 exec, 1
        s_waitcnt lgkmcnt(0)
        L_tk:
        s_lshl_b32 s{sT2}, s{sT1}, {TST}
        v_mov_b32 v{T[0]}, s{sT2}
        global_atomic_add v{T[3]}, v{T[0]}, v{T[1]}, s[{kDbg}:{kDbg+1}] offset:16 sc0 sc1
        s_waitcnt vmcnt(0)
        v_readfirstlane_b32 s{sT2}, v{T[3]}
        s_sub_u32 s{sT3}, s{sT3}, 1
        s_cbranch_scc1 L_tk1
        s_cmp_lt_u32 s{sT2}, 32
        s_cbranch_scc1 L_tk1
        s_add_u32 s{sT1}, s{sT1}, 1
        s_and_b32 s{sT1}, s{sT1}, 7
        s_branch L_tk
        L_tk1:
        s_lshl_b32 s{sT2}, s{sT2}, 3
        s_add_u32 s{sT2}, s{sT2}, s{sT1}
        v_mov_b32 v{T[3]}, s{sT2}
        ds_write_b32 v{T[2]}, v{T[3]}
        s_mov_b64 exec, -1
        s_waitcnt lgkmcnt(0)
        L_tk2:
        s_barrier
        ds_read_b32 v{T[3]}, v{T[2]}
        s_waitcnt lgkmcnt(0)
        v_readfirstlane_b32 s2, v{T[3]}
        s_nop 3
        s_and_b32 s2, s2, 255
        """)
        mark(10)
    a(f"""
    s_and_b32 s{sT0}, s2, 7
    s_lshr_b32 s{sT1}, s2, 3
    s_lshr_b32 s{sGrp}, s{sT0}, 1
    s_and_b32 s{sMt}, s{sT0}, 1
    s_lshl_b32 s{sMt}, s{sMt}, 3
    s_and_b32 s{sT2}, s{sT1}, 7
    s_add_u32 s{sMt}, s{sMt}, s{sT2}
    s_lshr_b32 s{sJ4}, s{sT1}, 3
    s_and_b32 s{sW4}, s{sW}, 3
    s_lshr_b32 s{sHi}, s{sW}, 2
    s_cmp_ge_u32 s{sW}, 4
    s_cbranch_scc0 L_comp
    """)
    ST = 39424; NST = 4; WOFF = 16384; EOFF = 36864
    IMG = 2 * ST; IH = 5376
    R = RegAlloc(BASE)
    bX = [R.alloc(f"bX{k}") for k in range(2)]; bW = R.alloc("bW"); bE = R.alloc("bE"); bXe = [R.alloc(f"bXe{k}") for k in range(2)]
    aX = [R.alloc(f"aX{k}") for k in range(2)]; aW = R.alloc("aW"); aE = R.alloc("aE"); aXe = [R.alloc(f"aXe{k}") for k in range(2)]
    A0 = [R.alloc(f"A0{i}") for i in range(5)]; A1 = [R.alloc(f"A1{i}") for i in range(5)]
    assert A1[1] % 2 == 0
    AE = [R.alloc(f"AE{i}") for i in range(2)]
    FX = [[R.alloc(f"FX{b}{i}", 4, 4) for i in range(4)] for b in range(2)]
    FW = [[R.alloc(f"FW{b}{i}", 4, 4) for i in range(5)] for b in range(2)]
    FXe = [R.alloc(f"FXe{b}", 4, 4) for b in range(2)]
    FE = [[R.alloc(f"FE{b}{i}", 4, 4) for i in range(2)] for b in range(2)]
    ACC = [[R.alloc(f"C{m}{n}", 4, 4) for n in range(5)] for m in range(4)]
    ACE = [R.alloc(f"CE{n}", 4, 4) for n in range(2)]
    SO = [R.alloc(f"SO{q}") for q in range(6)]
    nvmax.append(R.n)
    LX = [FX[0][0] + i for i in range(4)]; LW = [FX[0][1] + i for i in range(5)]; LE = FX[0][3]
    a(f"""
    s_setprio 2
    s_cmp_eq_u32 s{sGrp}, 3
    s_mov_b32 s{sLd}, 3840
    s_cmov_b32 s{sLd}, 1280
    s_mul_i32 s{sRot}, s{sJ4}, 3
    s_add_u32 s{sRot}, s{sRot}, s{sT2}
    s_cmp_ge_u32 s{sRot}, 10
    s_cselect_b32 s{sT0}, 10, 0
    s_sub_u32 s{sRot}, s{sRot}, s{sT0}
    {"" if ROT is True else f"s_mov_b32 s{sRot}, 0" if not ROT else f"s_and_b32 s{sRot}, s{sRot}, {ROT[0]}"+chr(10)+f"s_mul_i32 s{sRot}, s{sRot}, {ROT[1]}"}
    v_lshrrev_b32 v{T[0]}, 3, v{vL}
    s_lshl_b32 s{sT0}, s{sW4}, 5
    v_add_u32 v{T[0]}, s{sT0}, v{T[0]}
    v_mul_u32_u24 v{T[0]}, 1280, v{T[0]}
    v_and_b32 v{T[1]}, 7, v{vL}
    v_lshrrev_b32 v{T[2]}, 4, v{vL}
    v_xor_b32 v{T[1]}, v{T[1]}, v{T[2]}
    v_xor_b32 v{T[2]}, 4, v{T[1]}
    v_lshl_add_u32 v{LX[0]}, v{T[1]}, 4, v{T[0]}
    v_lshl_add_u32 v{LX[1]}, v{T[2]}, 4, v{T[0]}
    v_add_u32 v{LX[1]}, 10240, v{LX[1]}
    v_add_u32 v{LX[2]}, 20480, v{LX[0]}
    v_add_u32 v{LX[3]}, 20480, v{LX[1]}
    s_lshl_b32 s{sLd64}, s{sLd}, 6
    s_lshr_b32 s{sT0}, s{sW4}, 1
    s_mul_i32 s{sT0}, s{sT0}, 160
    s_and_b32 s{sT1}, s{sW4}, 1
    s_mul_i32 s{sT1}, s{sT1}, s{sLd}
    s_lshl_b32 s{sT1}, s{sT1}, 5
    s_add_u32 s{sM}, s{sT0}, s{sT1}
    v_mov_b32 v{T[7]}, s{sLd}
    """)
    for q in range(5):
        a(f"v_add_u32 v{T[0]}, {q*64}, v{vL}")
        divc(T[1], T[2], T[0], 10, 6554, 16)
        a(f"""
        v_lshl_add_u32 v{T[3]}, v{T[2]}, 4, s{sM}
        v_and_b32 v{T[4]}, 3, v{T[1]}
        v_and_b32 v{T[5]}, 12, v{T[1]}
        v_lshl_add_u32 v{T[4]}, v{T[5]}, 1, v{T[4]}
        v_lshrrev_b32 v{T[5]}, 4, v{T[1]}
        v_lshl_add_u32 v{T[4]}, v{T[5]}, 2, v{T[4]}
        v_mad_u32_u24 v{LW[q]}, v{T[4]}, v{T[7]}, v{T[3]}
        """)
    a(f"""
    s_mul_i32 s{sT0}, s{sW4}, 768
    v_lshlrev_b32 v{LE}, 4, v{vL}
    v_add_u32 v{LE}, s{sT0}, v{LE}
    s_lshl_b32 s{sOx}, s{sRot}, 7
    s_mul_i32 s{sOw}, s{sRot}, s{sLd64}
    s_mul_i32 s{sOe}, s{sRot}, 2560
    s_mul_i32 s{sT0}, s{sMt}, 163840
    s_mov_b32 s10, 163840
    s_mov_b32 s11, 0x00020000
    s_mov_b32 s15, 0x00020000
    s_mov_b32 s18, 25600
    s_mov_b32 s19, 0x00020000
    s_cmp_eq_u32 s{sGrp}, 3
    s_cselect_b32 s{sT1}, 0, s{sGrp}
    s_mov_b32 s14, {640*3840}
    s_cmov_b32 s14, {640*1280}
    s_waitcnt lgkmcnt(0)
    s_cselect_b32 s8, s{kBx}, s{kAx}
    s_cselect_b32 s9, s{kBx+1}, s{kAx+1}
    s_cselect_b32 s12, s{kBq}, s{kAw}
    s_cselect_b32 s13, s{kBq+1}, s{kAw+1}
    s_add_u32 s8, s8, s{sT0}
    s_addc_u32 s9, s9, 0
    s_mul_i32 s{sT1}, s{sT1}, 1280
    s_mul_i32 s{sT0}, s{sJ4}, 320
    s_add_u32 s{sT0}, s{sT0}, s{sT1}
    s_add_u32 s12, s12, s{sT0}
    s_addc_u32 s13, s13, 0
    s_sub_u32 s14, s14, s{sT0}
    s_cmp_lt_u32 s{sJ4}, 2
    s_cselect_b32 s16, s{kBk}, s{kBv}
    s_cselect_b32 s17, s{kBk+1}, s{kBv+1}
    s_lshl_b32 s{sT0}, s{sW4}, 12
    s_mul_i32 s{sT1}, s{sW4}, 5120
    s_add_u32 s{sT1}, s{sT1}, {WOFF}
    s_mul_i32 s{sT2}, s{sW4}, 768
    s_add_u32 s{sT2}, s{sT2}, {EOFF}
    s_mov_b32 s{sSt}, 0
    s_mov_b32 s{sC}, 0
    s_lshl_b32 s98, s{sW4}, 7
    s_add_u32 s98, s98, L_stset - {name}
    s_cmp_eq_u32 s{sGrp}, 3
    s_cbranch_scc1 L_llB
    """)
    def issue(ext):
        for q in range(4):
            a(f"s_add_u32 m0, s{sT0}, {q*1024}\ns_nop 0\nbuffer_load_dwordx4 v{LX[q]}, s[8:11], s{sOx} offen lds")
        for q in range(5):
            a(f"s_add_u32 m0, s{sT1}, {q*1024}\ns_nop 0\nbuffer_load_dwordx4 v{LW[q]}, s[12:15], s{sOw} offen lds")
        if ext:
            a(f"""
            s_mov_b32 m0, s{sT2}
            s_cmp_eq_u32 s{sW4}, 3
            s_cbranch_scc1 L_ne
            buffer_load_dwordx4 v{LE}, s[16:19], s{sOe} offen lds
            L_ne:
            s_add_u32 s{sOe}, s{sOe}, 2560
            """)
        for i in range(SPL):
            a(f"s_min_u32 s100, s98, L_codeend - {name} - 8\ns_load_dword s99, s[96:97], s100\ns_add_u32 s98, s98, 512")
        a(f"""
        s_add_u32 s{sOx}, s{sOx}, 128
        s_add_u32 s{sOw}, s{sOw}, s{sLd64}
        s_cmp_eq_u32 s{sOx}, 1280
        s_cselect_b32 s{sOx}, 0, s{sOx}
        s_cselect_b32 s{sOw}, 0, s{sOw}
        s_cselect_b32 s{sOe}, 0, s{sOe}
        s_add_u32 s{sSt}, s{sSt}, 1
        s_and_b32 s{sSt}, s{sSt}, 3
        s_mov_b32 s{sM}, {ST}
        s_cmp_eq_u32 s{sSt}, 0
        s_cmov_b32 s{sM}, {(-3*ST) & 0xffffffff}
        s_add_u32 s{sT0}, s{sT0}, s{sM}
        s_add_u32 s{sT1}, s{sT1}, s{sM}
        s_add_u32 s{sT2}, s{sT2}, s{sM}
        """)
    for ext in (False, True):
        tag = "B" if ext else "A"
        n = 9
        a.label(f"L_ll{tag}")
        issue(ext)
        a(f"""
        s_add_u32 s{sC}, s{sC}, 1
        s_cmp_lt_u32 s{sC}, {AHEAD+1}
        s_cbranch_scc1 L_ll{tag}
        s_waitcnt vmcnt({AHEAD*n})
        s_barrier
        s_cmp_lt_u32 s{sC}, 10
        s_cbranch_scc1 L_ll{tag}
        """)
        for c in range(AHEAD):
            a(f"s_waitcnt vmcnt({(AHEAD-1-c)*n})\ns_barrier")
        if not ext: a("s_branch L_ldone")
    a.label("L_ldone")
    a(f"s_cmp_lg_u32 s{sW}, 4\ns_cbranch_scc1 L_nn")
    get_nonce()
    a(f"v_mov_b32 v{T[0]}, {LDS - 32}\nds_write_b64 v{T[0]}, {vr(vF,2)}\nL_nn:")
    a.c("loader waves: ones rows of the V image (2 heads per wave x 16 blocks), then common store setup")
    a(f"""
    s_cmp_lg_u32 s{sGrp}, 2
    s_cbranch_scc1 L_stset
    v_and_b32 v{T[0]}, 31, v{vL}
    v_mul_u32_u24 v{T[0]}, 336, v{T[0]}
    s_mul_i32 s{sT0}, s{sW4}, {2*IH}
    s_add_u32 s{sT0}, s{sT0}, {IMG + 320}
    v_add_u32 v{T[0]}, s{sT0}, v{T[0]}
    v_mov_b32 v{T[2]}, 0x3f803f80
    v_mov_b32 v{T[3]}, 0x3f803f80
    v_mov_b32 v{T[4]}, 0x3f803f80
    v_mov_b32 v{T[5]}, 0x3f803f80
    ds_write_b128 v{T[0]}, {vr(T[2],4)}
    s_branch L_stset
    """)
    assert T[2] % 2 == 0

    a.label("L_comp")
    if SPF:
        a.c("pull the projection code on-die through the scalar path before the data burst")
        a(f"s_lshl_b32 s98, s{sW}, 7\ns_add_u32 s98, s98, L_comp - {name}")
        for i in range(SPF):
            a(f"s_load_dword s99, s[96:97], s98\ns_add_u32 s98, s98, 512")
    if CPF:
        a(f"""
        v_lshlrev_b32 v{T[0]}, 7, v0
        v_min_u32 v{T[0]}, L_codeend - {name} - 8, v{T[0]}
        global_load_dword v252, v{T[0]}, s[96:97]
        """)
    a(f"""
    s_lshr_b32 s{sWm}, s{sW}, 1
    s_and_b32 s{sWn}, s{sW}, 1
    v_and_b32 v{T[0]}, 15, v{vL}
    v_lshrrev_b32 v{T[1]}, 4, v{vL}
    v_lshrrev_b32 v{T[2]}, 1, v{T[0]}
    v_xor_b32 v{T[2]}, v{T[2]}, v{T[1]}
    v_xor_b32 v{T[3]}, 4, v{T[2]}
    v_lshlrev_b32 v{T[4]}, 7, v{T[0]}
    v_lshl_add_u32 v{T[2]}, v{T[2]}, 4, v{T[4]}
    v_lshl_add_u32 v{T[3]}, v{T[3]}, 4, v{T[4]}
    s_lshl_b32 s{sT0}, s{sWm}, 13
    v_add_u32 v{bX[0]}, s{sT0}, v{T[2]}
    v_add_u32 v{bX[1]}, s{sT0}, v{T[3]}
    s_and_b32 s{sM}, s{sJ4}, 1
    s_lshl_b32 s{sM}, s{sM}, 1
    s_add_u32 s{sM}, s{sM}, s{sWn}
    s_lshl_b32 s{sT2}, s{sM}, 11
    v_add_u32 v{bXe[0]}, s{sT2}, v{bX[0]}
    v_add_u32 v{bXe[1]}, s{sT2}, v{bX[1]}
    v_lshrrev_b32 v{T[2]}, 2, v{vL}
    v_mul_u32_u24 v{T[2]}, 40, v{vL}
    v_and_b32 v{T[3]}, 3, v{vL}
    s_mul_i32 s{sT0}, s{sWn}, 10240
    v_add_u32 v{bW}, s{sT0}, v{T[2]}
    v_lshrrev_b32 v{T[2]}, 2, v{T[0]}
    v_lshl_add_u32 v{T[2]}, v{T[1]}, 3, v{T[2]}
    v_mul_u32_u24 v{T[2]}, 40, v{T[2]}
    v_lshl_add_u32 v{bE}, v{T[3]}, 3, v{T[2]}
    s_waitcnt lgkmcnt(0)
    s_add_u32 s{sT1}, s2, s{sW}
    s_cmp_lg_u32 s{sT1}, 0
    s_cbranch_scc1 L_nononce
    s_or_b32 s{sT1}, s46, 1
    v_mov_b32 v{vF}, s{sT1}
    v_mov_b32 v{vF+1}, s47
    v_mov_b32 v{T[2]}, 0
    s_mov_b64 exec, 1
    global_store_dwordx2 v{T[2]}, {vr(vF,2)}, s[{kDbg}:{kDbg+1}] sc1
    s_mov_b64 exec, -1
    L_nononce:
    """)
    if TLB:
        a.c("touch one unused line per address-translation granule of the buffers used later (scalar path)")
        gaps = [i * KVS + KV_SET for i in range(0, 33, TLB)] + [Q_OFF + (i + 1) * Q_HEAD - 128 for i in range(0, 64, 2 * TLB)] + [O_OFF - 128]
        for br in range(2): gaps += [O_OFF + br * O_BR + O_TAIL - 128, O_OFF + (br + 1) * O_BR - 128]
        gaps.append(WS_USED)
        tl = [(kWs, g) for g in gaps] + [(kOut, o) for o in range(0, 2048 * 2560, 1 << 20)] + [(kOut, 2048 * 2560 - 64), (kAo, 0), (kAo, 819136), (kBo, 0), (kBo, 819136), (kDbg, 128)]
        for w in range(4):
            a(f"s_cmp_lg_u32 s{sW}, {w}\ns_cbranch_scc1 L_tl{w}")
            for base, off in tl[w::4]:
                a(f"s_mov_b32 s98, {off}\ns_load_dword s99, s[{base}:{base+1}], s98")
            a.label(f"L_tl{w}")
    if LPF:
        a.c("linear touch of this wave's 1/1024 share of both Wo matrices")
        a(f"""
        s_lshl_b32 s{sT0}, s2, 2
        s_add_u32 s{sT0}, s{sT0}, s{sW}
        s_mul_i32 s{sT3}, s{sT0}, 800
        v_min_u32 v{T[2]}, 6, v{vL}
        v_lshl_add_u32 v{T[3]}, v{T[2]}, 7, s{sT3}
        global_load_dword v250, v{T[3]}, s[{kAo}:{kAo+1}]
        global_load_dword v251, v{T[3]}, s[{kBo}:{kBo+1}]
        """)
    for m in range(4):
        for n in range(5):
            for r in (0, 2): a(f"v_pk_mov_b32 {vr(ACC[m][n]+r,2)}, 0, 0")
    for n in range(2):
        for r in range(4): a(f"v_mov_b32 v{ACE[n]+r}, 0")
    a(f"""
    s_cmp_eq_u32 s{sGrp}, 1
    s_mov_b32 s{sScale}, 0x{QSCALE:x}
    s_cmov_b32 s{sScale}, 1.0
    v_mov_b32 v{A1[1]}, s{sScale}
    v_mov_b32 v{A1[2]}, s{sScale}
    """)
    a(f"""
    s_mov_b32 s{sSt}, 0
    s_mov_b32 s{sC}, 0
    s_cmp_eq_u32 s{sGrp}, 2
    s_cbranch_scc1 L_F
    """)
    def addr_T():
        a(f"""
        s_mul_i32 s{sT0}, s{sWn}, {4*IH}
        s_mul_i32 s{sT1}, s{sWm}, 2560
        s_add_u32 s{sT0}, s{sT0}, s{sT1}
        s_add_u32 s{sT0}, s{sT0}, {IMG}
        v_mul_u32_u24 v{T[3]}, {IH}, v{T[1]}
        v_add_u32 v{T[3]}, s{sT0}, v{T[3]}
        v_lshl_add_u32 v{A0[0]}, v{T[0]}, 4, v{T[3]}
        v_lshl_add_u32 v{A0[1]}, v{T[0]}, 3, v{T[3]}
        """)
    def addr_F():
        a(f"""
        s_mul_i32 s{sT0}, s{sWn}, {4*IH}
        s_mul_i32 s{sT1}, s{sWm}, 2688
        s_add_u32 s{sT0}, s{sT0}, s{sT1}
        s_add_u32 s{sT0}, s{sT0}, {IMG}
        v_lshrrev_b32 v{T[5]}, 1, v{T[1]}
        v_mul_u32_u24 v{T[5]}, 336, v{T[5]}
        v_and_b32 v{T[6]}, 1, v{T[1]}
        v_lshl_add_u32 v{T[5]}, v{T[6]}, 3, v{T[5]}
        v_lshrrev_b32 v{T[3]}, 2, v{T[0]}
        v_mul_u32_u24 v{T[3]}, {IH}, v{T[3]}
        v_and_b32 v{T[4]}, 3, v{T[0]}
        v_lshl_add_u32 v{T[3]}, v{T[4]}, 4, v{T[3]}
        v_add3_u32 v{A0[0]}, v{T[3]}, v{T[5]}, s{sT0}
        """)
    EIMG = IMG + 8 * IH + 1024
    def addr_E(kind):
        a(f"""
        s_lshl_b32 s{sT0}, s{sWm}, 11
        s_add_u32 s{sT0}, s{sT0}, {EIMG}
        v_and_b32 v{T[4]}, 1, v{T[1]}
        v_lshrrev_b32 v{T[5]}, 1, v{T[1]}
        """)
        if kind == "K":
            a(f"""
            s_lshl_b32 s{sT2}, s{sWn}, 8
            s_add_u32 s{sT2}, s{sT2}, s{sT0}
            v_lshlrev_b32 v{T[6]}, 9, v{T[4]}
            v_lshl_add_u32 v{T[6]}, v{T[5]}, 3, v{T[6]}
            v_lshl_add_u32 v{T[6]}, v{T[0]}, 4, v{T[6]}
            v_add_u32 v{AE[0]}, s{sT2}, v{T[6]}
            s_lshl_b32 s{sT2}, s{sWn}, 7
            s_add_u32 s{sT2}, s{sT2}, s{sT0}
            s_add_u32 s{sT2}, s{sT2}, 1024
            v_lshlrev_b32 v{T[6]}, 20, v{T[1]}
            v_lshl_add_u32 v{T[6]}, v{T[0]}, 3, v{T[6]}
            v_add_u32 v{AE[1]}, s{sT2}, v{T[6]}
            """)
        else:
            a(f"""
            s_mul_i32 s{sT2}, s{sWn}, 672
            s_add_u32 s{sT2}, s{sT2}, s{sT0}
            v_mul_u32_u24 v{T[6]}, 336, v{T[5]}
            v_lshl_add_u32 v{T[6]}, v{T[4]}, 3, v{T[6]}
            v_lshl_add_u32 v{T[6]}, v{T[0]}, 4, v{T[6]}
            v_add_u32 v{AE[0]}, s{sT2}, v{T[6]}
            v_cmp_lt_u32 vcc, 4, v{T[0]}
            v_add_u32 v{T[6]}, 256, v{AE[0]}
            v_mov_b32 v{T[7]}, {BIG}
            v_cndmask_b32 v{AE[1]}, v{T[6]}, v{T[7]}, vcc
            """)
    def reads(b, ks, ext):
        r = [f"ds_read_b128 {vr(FX[b][0],4)}, v{aX[ks]}"]
        for tn in range(5):
            for hr in range(2):
                r.append(f"ds_read_b64_tr_b16 {vr(FW[b][tn]+2*hr,2)}, v{aW} offset:{WOFF + ks*5120 + hr*2560 + tn*8}")
        for tm in range(1, 4):
            r.append(f"ds_read_b128 {vr(FX[b][tm],4)}, v{aX[ks]} offset:{tm*2048}")
        if ext:
            r.append(f"ds_read_b128 {vr(FXe[b],4)}, v{aXe[ks]}")
            for tn in range(2):
                for hr in range(2):
                    r.append(f"ds_read_b64_tr_b16 {vr(FE[b][tn]+2*hr,2)}, v{aE} offset:{EOFF + ks*1280 + hr*160 + tn*32}")
        return r
    def mf(d, x, w, orient):
        A_, B_ = (w, x) if orient == "T" else (x, w)
        return f"v_mfma_f32_16x16x32_bf16 {vr(d,4)}, {vr(A_,4)}, {vr(B_,4)}, {vr(d,4)}"
    def mfmas(b, orient, ext):
        m = [mf(ACC[tm][tn], FX[b][tm], FW[b][tn], orient) for tm in range(4) for tn in range(5)]
        if ext: m += [mf(ACE[tn], FXe[b], FE[b][tn], "T" if ext == "K" else "F") for tn in range(2)]
        return m
    def setaddr(ext):
        a(f"v_add_u32 v{aX[0]}, s{sSt}, v{bX[0]}")
        a(f"v_add_u32 v{aW}, s{sSt}, v{bW}")
        a(f"v_add_u32 v{aX[1]}, s{sSt}, v{bX[1]}")
        if ext:
            a(f"v_add_u32 v{aXe[0]}, s{sSt}, v{bXe[0]}")
            a(f"v_add_u32 v{aXe[1]}, s{sSt}, v{bXe[1]}")
            a(f"v_add_u32 v{aE}, s{sSt}, v{bE}")
        a(f"s_add_u32 s{sSt}, s{sSt}, {ST}\ns_cmp_eq_u32 s{sSt}, {ST*NST}\ns_cselect_b32 s{sSt}, 0, s{sSt}")
    def variant(tag, orient, ext):
        L = f"L_{tag}"
        setaddr(ext)
        mark(0)
        a("s_barrier")
        mark(1)
        for r in reads(0, 0, ext): a(r)
        a(f"s_branch {L}_mid")
        a.raw(".p2align 6")
        a.label(f"{L}_loop")
        a("s_barrier")
        lstamp("gs")
        interleave(a, mfmas(1, orient, ext), reads(0, 0, ext))
        a.label(f"{L}_mid")
        a("s_waitcnt lgkmcnt(0)")
        interleave(a, mfmas(0, orient, ext), reads(1, 1, ext))
        setaddr(ext)
        a(f"s_add_u32 s{sC}, s{sC}, 1\ns_cmp_lt_u32 s{sC}, 10\ns_waitcnt lgkmcnt(0)\ns_cbranch_scc1 {L}_loop")
        for m in mfmas(1, orient, ext): a(m)
        mark(2)
        lstamp("es")
        P = FX[0][0]; k = 0
        for tm in range(4):
            for tn in range(5):
                c = ACC[tm][tn]; p = P + 2 * (k % 8); k += 1
                if orient == "T":
                    for r in (0, 2): a(f"v_pk_mul_f32 {vr(c+r,2)}, {vr(c+r,2)}, {vr(A1[1],2)}")
                a(f"v_cvt_pk_bf16_f32 v{c}, v{c}, v{c+1}")
                a(f"v_cvt_pk_bf16_f32 v{c+1}, v{c+2}, v{c+3}")
                if orient == "T":
                    if tn < 4: a(f"ds_write_b64 v{A0[0]}, {vr(c,2)} offset:{(tm>>1)*1280 + (tm&1)*256 + (tn&1)*512 + (tn>>1)*8}")
                    else: a(f"ds_write_b64 v{A0[1]}, {vr(c,2)} offset:{(tm>>1)*1280 + 1024 + (tm&1)*128}")
                else:
                    a(f"ds_write_b64 v{A0[0]}, {vr(c,2)} offset:{tm*672 + tn*64}")
        if ext:
            if ext == "V":
                a(f"v_and_b32 v{T[0]}, 15, v{vL}\nv_cmp_eq_u32 vcc, 4, v{T[0]}\nv_mov_b32 v{T[6]}, 0x3f803f80")
            for tn in range(2):
                c = ACE[tn]
                a(f"v_cvt_pk_bf16_f32 v{c}, v{c}, v{c+1}")
                a(f"v_cvt_pk_bf16_f32 v{c+1}, v{c+2}, v{c+3}")
                if ext == "V" and tn == 1:
                    a(f"v_cndmask_b32 v{c}, v{c}, v{T[6]}, vcc\nv_cndmask_b32 v{c+1}, v{c+1}, v{T[6]}, vcc")
                a(f"ds_write_b64 v{AE[tn]}, {vr(c,2)}")
        a("s_branch L_stset")
    def store_setup():
        a(f"""
        s_cmp_eq_u32 s{sGrp}, 2
        s_cselect_b32 s{sCT}, 1, 0
        s_cselect_b32 s{sT3}, 1280, 0
        s_cmp_eq_u32 s{sGrp}, 1
        s_cselect_b32 s{sT0}, 1, s{sCT}
        s_cmp_eq_u32 s{sT0}, 1
        s_mov_b32 s{sHS}, {Q_HEAD}
        s_cmov_b32 s{sHS}, {KVS}
        s_mov_b32 s{sTS}, 1280
        s_cmov_b32 s{sTS}, {TILE}
        s_mov_b32 s{sT0}, {Q_OFF}
        s_cmov_b32 s{sT0}, {KV_OFF}
        s_add_u32 s{sT0}, s{sT0}, s{sT3}
        s_cmp_eq_u32 s{sGrp}, 3
        s_cselect_b32 s{sT1}, 32, 0
        s_lshl_b32 s{sT2}, s{sJ4}, 3
        s_add_u32 s{sT1}, s{sT1}, s{sT2}
        s_add_u32 s{sT1}, s{sT1}, s{sW}
        s_mul_i32 s{sT1}, s{sT1}, s{sHS}
        s_add_u32 s{sT0}, s{sT0}, s{sT1}
        s_lshl_b32 s{sT1}, s{sTS}, 2
        s_mul_i32 s{sT2}, s{sT1}, s{sMt}
        s_add_u32 s{sT0}, s{sT0}, s{sT2}
        s_sub_u32 s{sT1}, s{sT1}, s{sT3}
        """)
        srd(8, kWs, f"s{sT0}", f"s{sT1}")
        a(f"""
        s_cmp_eq_u32 s{sCT}, 1
        s_mov_b32 s{sCT}, 80
        s_cmov_b32 s{sCT}, 84
        s_mov_b32 s{sT0}, 820
        s_cmov_b32 s{sT0}, 781
        s_lshl_b32 s{sT2}, s{sCT}, 4
        s_sub_u32 s{sT2}, s{sTS}, s{sT2}
        """)
        for q in range(6):
            a(f"""
            v_add_u32 v{T[0]}, {64*q}, v{vL}
            v_mul_u32_u24 v{T[1]}, s{sT0}, v{T[0]}
            v_lshrrev_b32 v{T[1]}, 16, v{T[1]}
            v_lshlrev_b32 v{T[0]}, 4, v{T[0]}
            v_mad_u32_u24 v{SO[q]}, v{T[1]}, s{sT2}, v{T[0]}
            """)
        a(f"""
        s_lshl_b32 s{sFl}, s{sGrp}, 2
        s_add_u32 s{sFl}, s{sFl}, s{sJ4}
        s_lshl_b32 s{sFl}, s{sFl}, 4
        s_add_u32 s{sFl}, s{sFl}, s{sMt}
        s_lshl_b32 s{sFl}, s{sFl}, 3
        s_add_u32 s{sFl}, s{sFl}, {F1}
        """)
    def pre():
        a(f"v_and_b32 v{T[0]}, 15, v{vL}\nv_lshrrev_b32 v{T[1]}, 4, v{vL}")
    pre(); addr_T()
    a(f"s_cmp_eq_u32 s{sGrp}, 3\ns_cbranch_scc1 L_B")
    variant("T", "T", None)
    a.label("L_B")
    a(f"s_cmp_lt_u32 s{sJ4}, 2\ns_cbranch_scc0 L_BV")
    addr_E("K"); variant("TK", "T", "K")
    a.label("L_BV")
    addr_E("V"); variant("TV", "T", "V")
    a.label("L_F")
    pre(); addr_F(); variant("F", "F", None)
    a.label("L_stset")
    lstamp("es")
    store_setup()
    a.label("L_stgo")
    lstamp("es")
    SD = FX[0][0]
    a(f"""
    s_mul_i32 s{sT0}, s{sW}, {IH}
    s_add_u32 s{sT0}, s{sT0}, {IMG}
    v_lshl_add_u32 v{T[0]}, v{vL}, 4, s{sT0}
    s_waitcnt lgkmcnt(0)
    s_barrier
    """)
    lstamp("es")
    a(f"""
    v_mov_b32 v{T[1]}, {LDS - 32}
    ds_read_b64 {vr(vF,2)}, v{T[1]}
    s_cmp_lg_u32 s{sGrp}, 3
    s_cbranch_scc1 L_noe
    s_cmp_eq_u32 s{sHi}, 0
    s_cbranch_scc1 L_noe
    s_lshl_b32 s{sT0}, s{sW4}, 10
    s_add_u32 s{sT0}, s{sT0}, {EIMG}
    v_lshl_add_u32 v{T[1]}, v{vL}, 4, s{sT0}
    ds_read_b128 {vr(SD+20,4)}, v{T[1]}
    s_and_b32 s{sT1}, s{sW4}, 2
    s_and_b32 s{sT2}, s{sJ4}, 1
    s_add_u32 s{sT1}, s{sT1}, s{sT2}
    s_lshl_b32 s{sT2}, s{sMt}, 2
    s_add_u32 s{sT1}, s{sT1}, s{sT2}
    s_mul_i32 s{sT1}, s{sT1}, {TILE}
    s_add_u32 s{sT1}, s{sT1}, {KV_OFF + 32*KVS}
    s_cmp_lt_u32 s{sJ4}, 2
    s_cselect_b32 s{sT2}, 0, 1280
    s_mov_b32 s{sT3}, 1344
    s_cmov_b32 s{sT3}, 1280
    s_add_u32 s{sT1}, s{sT1}, s{sT2}
    """)
    srd(12, kWs, f"s{sT1}", f"s{sT3}")
    a(f"""
    s_and_b32 s{sT0}, s{sW4}, 1
    s_lshl_b32 s{sT0}, s{sT0}, 10
    v_lshl_add_u32 v{T[1]}, v{vL}, 4, s{sT0}
    s_waitcnt lgkmcnt(0)
    buffer_store_dwordx4 {vr(SD+20,4)}, v{T[1]}, s[12:15], 0 offen {SS}
    L_noe:
    """)
    for q in range(5): a(f"ds_read_b128 {vr(SD+4*q,4)}, v{T[0]} offset:{q*1024}")
    for q in range(5):
        a(f"s_waitcnt lgkmcnt({4-q})\nbuffer_store_dwordx4 {vr(SD+4*q,4)}, v{SO[q]}, s[8:11], 0 offen {SS}")
    a(f"""
    s_cmp_lg_u32 s{sGrp}, 2
    s_cbranch_scc1 L_no6
    ds_read_b128 {vr(SD+20,4)}, v{T[0]} offset:5120
    s_waitcnt lgkmcnt(0)
    buffer_store_dwordx4 {vr(SD+20,4)}, v{SO[5]}, s[8:11], 0 offen {SS}
    L_no6:
    """)
    mark(3)
    lstamp("es")

    R = RegAlloc(BASE)
    vK = [R.alloc("aK0"), R.alloc("aK1")]; vK1 = [R.alloc("aKa"), R.alloc("aKb")]; vV = [R.alloc("aV0"), R.alloc("aV1")]
    vIdx = R.alloc("idx"); vD = R.alloc("dma"); vM = [R.alloc("Ma"), R.alloc("Mb")]
    vOst = R.alloc("ost"); vOst2 = R.alloc("ost2"); vP = R.alloc("pk", 4, 2)
    R.n = max(R.n, SD + 24)
    Q0 = [R.alloc(f"Q0{s}", 4, 4) for s in range(2)]
    Q1 = [R.alloc(f"Q1{s}", 2, 2) for s in range(2)]
    K0 = [R.alloc(f"K0{i}", 4, 4) for i in range(2)]
    K1 = [R.alloc(f"K1{i}", 2, 2) for i in range(2)]
    V = [[R.alloc(f"V{i}{j}", 4, 4) for j in range(2)] for i in range(2)]
    S = [[R.alloc(f"S{s}{p}", 16, 4) for p in range(2)] for s in range(2)]
    O = [R.alloc(f"O{s}", 16, 4) for s in range(2)]
    assert R.n <= SO[0]
    nvmax.append(R.n)
    sHead, sTok, sBr, sOff, sF3, sGo = 28, 29, 30, 31, 32, 33
    R = RegAlloc(O[1] + 16)
    OW = [[R.alloc(f"OW{p}{q}") for q in range(5)] for p in range(2)]
    oM = R.alloc("oM"); oT = R.alloc("oT"); oF = R.alloc("oF"); oW = [R.alloc(f"oW{i}") for i in range(3)]; oS = [R.alloc("oS0"), R.alloc("oS1")]
    nvmax.append(R.n)
    R = RegAlloc(BASE)
    OF = [R.alloc(f"OF{k}", 4, 4) for k in range(16)]
    OT = [R.alloc(f"OT{k}", 2, 2) for k in range(8)]
    WB = [[[R.alloc(f"WB{b}{h}{t}", 4, 4) for t in range(5)] for h in range(2)] for b in range(2)]
    WT4 = [R.alloc(f"WT{t}", 4, 4) for t in range(5)]
    WT = [[WT4[t] + 2 * b for t in range(5)] for b in range(2)]
    assert OT[0] % 4 == 0
    assert R.n <= OW[0][0]
    OC = [228 + 4 * t for t in range(5)]
    WL = GROUP
    sNt, sDone, sRdy, sBo, sTo = 34, 35, 36, 37, 40
    for q in range(5):
        a(f"v_add_u32 v{T[0]}, {64*q}, v{vL}")
        divc(T[1], T[2], T[0], 10, 6554, 16)
        a(f"""
        v_lshrrev_b32 v{T[4]}, 4, v{T[1]}
        v_and_b32 v{T[5]}, 3, v{T[1]}
        v_bfe_u32 v{T[6]}, v{T[1]}, 3, 1
        v_mul_u32_u24 v{T[6]}, 20, v{T[6]}
        v_and_b32 v{T[7]}, 4, v{T[1]}
        v_add3_u32 v{T[6]}, v{T[6]}, v{T[7]}, v{T[5]}
        v_lshl_add_u32 v{T[6]}, v{T[4]}, 3, v{T[6]}
        v_mul_u32_u24 v{T[6]}, 1280, v{T[6]}
        v_lshl_add_u32 v{OW[0][q]}, v{T[2]}, 4, v{T[6]}
        v_lshrrev_b32 v{T[6]}, 2, v{T[1]}
        v_mul_u32_u24 v{T[6]}, 20, v{T[6]}
        v_add3_u32 v{T[6]}, v{T[6]}, v{T[5]}, 16
        v_mul_u32_u24 v{T[6]}, 1280, v{T[6]}
        v_lshl_add_u32 v{OW[1][q]}, v{T[2]}, 4, v{T[6]}
        """)
    a(f"""
    s_and_b32 s{sT0}, s2, 7
    s_lshr_b32 s{sT1}, s2, 3
    s_lshr_b32 s{sBo}, s{sT0}, 2
    s_and_b32 s{sT0}, s{sT0}, 3
    s_lshl_b32 s{sT0}, s{sT0}, 2
    s_and_b32 s{sT2}, s{sT1}, 3
    s_add_u32 s{sT0}, s{sT0}, s{sT2}
    s_lshr_b32 s{sNt}, s{sT1}, 2
    s_lshl_b32 s{sTo}, s{sT0}, 7
    s_lshl_b32 s{sT0}, s{sW}, 4
    s_add_u32 s{sTo}, s{sTo}, s{sT0}
    v_and_b32 v{T[4]}, 15, v{vL}
    v_lshrrev_b32 v{T[1]}, 4, v{vL}
    v_add_u32 v{T[5]}, s{sTo}, v{T[4]}
    v_lshlrev_b32 v{oM}, 15, v{T[1]}
    v_lshl_add_u32 v{oM}, v{T[5]}, 4, v{oM}
    v_lshlrev_b32 v{oT}, 14, v{T[1]}
    v_lshl_add_u32 v{oT}, v{T[5]}, 3, v{oT}
    v_lshrrev_b32 v{T[6]}, 2, v{vL}
    v_mul_u32_u24 v{T[6]}, 160, v{T[6]}
    v_and_b32 v{T[7]}, 3, v{vL}
    v_lshl_add_u32 v{oW[1]}, v{T[7]}, 3, v{T[6]}
    v_add_u32 v{oW[1]}, {WL}, v{oW[1]}
    v_mul_u32_u24 v{T[4]}, 2560, v{T[4]}
    v_lshl_add_u32 v{oS[1]}, v{T[1]}, 3, v{T[4]}
    v_and_b32 v{T[6]}, 1, v{T[1]}
    v_lshl_add_u32 v{T[6]}, v{T[6]}, 5, v{T[4]}
    v_lshrrev_b32 v{T[1]}, 1, v{T[1]}
    v_lshl_add_u32 v{oS[0]}, v{T[1]}, 4, v{T[6]}
    s_lshl_b32 s{sT0}, s{sNt}, 11
    s_lshl_b32 s{sT1}, s{sBo}, 10
    s_add_u32 s{sT0}, s{sT0}, s{sT1}
    s_lshr_b32 s{sT1}, s{sTo}, 9
    s_lshl_b32 s{sT1}, s{sT1}, 8
    s_add_u32 s{sT0}, s{sT0}, s{sT1}
    s_add_u32 s{sT0}, s{sT0}, {F3}
    v_and_b32 v{oF}, 31, v{vL}
    v_lshl_add_u32 v{oF}, v{oF}, 3, s{sT0}
    s_cmp_eq_u32 s{sBo}, 0
    s_cselect_b32 s{sT0}, s{kAo}, s{kBo}
    s_cselect_b32 s{sT1}, s{kAo+1}, s{kBo+1}
    s_mul_i32 s{sT2}, s{sNt}, 160
    s_add_u32 s92, s{sT0}, s{sT2}
    s_addc_u32 s93, s{sT1}, 0
    s_sub_u32 s94, {640*1280}, s{sT2}
    s_mov_b32 s95, 0x00020000
    """)
    a(f"""
    s_and_b32 s{sT0}, s2, 7
    s_lshr_b32 s{sT1}, s2, 3
    s_lshr_b32 s{sBr}, s{sT1}, 4
    s_bfe_u32 s{sT2}, s{sT1}, 0x20002
    s_lshl_b32 s{sHead}, s{sT0}, 2
    s_add_u32 s{sHead}, s{sHead}, s{sT2}
    s_and_b32 s{sT3}, s{sT1}, 3
    s_lshl_b32 s{sTok}, s{sT3}, 9
    s_lshl_b32 s{sT1}, s{sW}, 6
    s_add_u32 s{sTok}, s{sTok}, s{sT1}
    v_and_b32 v{T[0]}, 31, v{vL}
    v_lshrrev_b32 v{T[1]}, 5, v{vL}
    v_lshlrev_b32 v{vK[0]}, 4, v{vL}
    v_lshlrev_b32 v{vD}, 4, v{vL}
    v_lshlrev_b32 v{vK1[0]}, 3, v{T[0]}
    v_lshl_add_u32 v{vK1[0]}, v{T[1]}, 2, v{vK1[0]}
    v_cmp_eq_u32 vcc, 24, v{T[0]}
    v_mov_b32 v{T[3]}, 20
    v_mov_b32 v{T[4]}, {BIG}
    v_cndmask_b32 v{T[2]}, v{T[0]}, v{T[3]}, vcc
    v_mul_u32_u24 v{vV[0]}, 336, v{T[1]}
    v_lshl_add_u32 v{vV[0]}, v{T[2]}, 4, v{vV[0]}
    v_cmp_lt_u32 vcc, 20, v{T[2]}
    v_mov_b32 v{vIdx}, 0xdddddddd
    v_mov_b32 v{K1[0]+1}, 0x3f80
    v_cndmask_b32 v{vV[0]}, v{vV[0]}, v{T[4]}, vcc
    v_cmp_eq_u32 vcc, 20, v{T[0]}
    v_mov_b32 v{K1[1]+1}, 0x3f80
    v_mov_b32 v{Q1[0]+1}, 0
    v_cndmask_b32 v{vV[0]}, v{vV[0]}, v{T[4]}, vcc
    v_mov_b32 v{Q1[1]+1}, 0
    v_add_u32 v{vK[1]}, {3*GROUP}, v{vK[0]}
    v_add_u32 v{vK1[1]}, {3*GROUP}, v{vK1[0]}
    v_add_u32 v{vV[1]}, {3*GROUP}, v{vV[0]}
    s_mul_i32 s{sT1}, s{sBr}, {O_BR}
    s_add_u32 s{sT1}, s{sT1}, {O_OFF}
    """)
    srd(16, kWs, f"s{sT1}", O_BR)
    a(f"""
    s_lshl_b32 s{sT2}, s{sHead}, 16
    s_lshl_b32 s{sT1}, s{sTok}, 4
    s_add_u32 s{sT2}, s{sT2}, s{sT1}
    v_lshlrev_b32 v{vOst}, 15, v{T[1]}
    v_lshl_add_u32 v{vOst}, v{T[0]}, 4, v{vOst}
    v_add_u32 v{vOst}, s{sT2}, v{vOst}
    s_lshl_b32 s{sT2}, s{sHead}, 14
    s_lshl_b32 s{sT1}, s{sTok}, 3
    s_add_u32 s{sT2}, s{sT2}, s{sT1}
    s_add_u32 s{sT2}, s{sT2}, {O_TAIL}
    v_lshlrev_b32 v{vOst2}, 3, v{T[0]}
    v_lshl_add_u32 v{vOst2}, v{T[1]}, 24, v{vOst2}
    v_add_u32 v{vOst2}, s{sT2}, v{vOst2}
    s_lshl_b32 s{sF3}, s{sBr}, 10
    s_lshl_b32 s{sT1}, s{sT3}, 8
    s_add_u32 s{sF3}, s{sF3}, s{sT1}
    s_lshl_b32 s{sT1}, s{sHead}, 3
    s_add_u32 s{sF3}, s{sF3}, s{sT1}
    s_add_u32 s{sF3}, s{sF3}, {F3}
    """)
    a.c("flag addresses to poll (T5): B: slots 12..15 ; A: lanes 0-15 K slot, 16-31 V slot, 32-63 Q slot (own 4 mt)")
    a(f"""
    s_lshr_b32 s{sT1}, s{sHead}, 3
    s_lshl_b32 s{sT1}, s{sT1}, 7
    v_and_b32 v{T[2]}, 15, v{vL}
    v_lshrrev_b32 v{T[3]}, 4, v{vL}
    v_add_u32 v{T[3]}, 1, v{T[3]}
    v_lshlrev_b32 v{T[3]}, 9, v{T[3]}
    v_lshl_add_u32 v{T[3]}, v{T[2]}, 3, v{T[3]}
    v_and_b32 v{T[2]}, 3, v{vL}
    s_lshl_b32 s{sT2}, s{sT3}, 5
    v_lshl_add_u32 v{T[2]}, v{T[2]}, 3, s{sT2}
    v_cmp_gt_u32 vcc, 32, v{vL}
    v_lshlrev_b32 v{T[4]}, 3, v{vL}
    v_add_u32 v{T[4]}, {12*128}, v{T[4]}
    v_cndmask_b32 v{T[5]}, v{T[2]}, v{T[3]}, vcc
    v_add_u32 v{T[5]}, s{sT1}, v{T[5]}
    s_cmp_eq_u32 s{sBr}, 0
    s_cselect_b64 vcc, -1, 0
    s_and_b32 s{sT1}, s2, {NR-1}
    s_lshl_b32 s{sT1}, s{sT1}, 11
    s_add_u32 s{sT1}, s{sT1}, {F1}
    v_cndmask_b32 v{T[5]}, v{T[4]}, v{T[5]}, vcc
    v_add_u32 v{T[5]}, s{sT1}, v{T[5]}
    """)
    for s in range(2):
        for r in range(16): a(f"v_mov_b32 v{O[s]+r}, 0")
    for r in range(8, 16): a(f"v_mov_b32 v{S[1][1]+r}, 0")
    for r in range(4): a(f"v_mov_b32 v{V[1][1]+r}, 0")
    a(f"""
    s_cmp_eq_u32 s{sBr}, 0
    s_cselect_b32 s{sT1}, s{sHead}, 32
    s_mul_i32 s{sT1}, s{sT1}, {KVS}
    s_lshl_b32 s{sT2}, s{sBr}, 5
    s_add_u32 s{sT2}, s{sT2}, s{sHead}
    s_mul_i32 s{sT2}, s{sT2}, {Q_HEAD}
    s_mul_i32 s{sT3}, s{sTok}, 40
    s_add_u32 s{sT2}, s{sT2}, s{sT3}
    s_add_u32 s{sT2}, s{sT2}, {Q_OFF}
    """)
    lstamp("es")
    a(f"v_readfirstlane_b32 s{sN}, v{vF}\nv_readfirstlane_b32 s{sN+1}, v{vF+1}\ns_waitcnt vmcnt(0)")
    lstamp("es")
    srd(8, kWs, f"s{sT1}", KV_SET)
    srd(12, kWs, f"s{sT2}", 2560)
    a(f"""
    s_barrier
    s_cmp_lg_u32 s{sW}, 0
    s_cbranch_scc1 L_f1w
    """)
    put_flag(sFl, 11, NR)
    if PRE: a(f"s_sleep {PRE}")
    mark(4)
    a(f"""
    s_mov_b32 s{sSpin}, {SPIN}
    {f"global_load_dwordx2 {vr(vP,2)}, v{T[5]}, s[{kWs}:{kWs+1}] sc1"+chr(10)+"s_sleep 8" if PP else ""}
    L_f1l:
    global_load_dwordx2 {vr(vF,2)}, v{T[5]}, s[{kWs}:{kWs+1}] sc1
    """)
    if PP:
        a(f"""
        s_waitcnt vmcnt(1)
        v_cmp_ne_u64 vcc, s[{sN}:{sN+1}], {vr(vP,2)}
        s_cbranch_vccz L_f1w
        global_load_dwordx2 {vr(vP,2)}, v{T[5]}, s[{kWs}:{kWs+1}] sc1
        """)
    a(f"""
    s_waitcnt vmcnt({1 if PP else 0})
    v_cmp_ne_u64 vcc, s[{sN}:{sN+1}], {vr(vF,2)}
    s_sub_u32 s{sSpin}, s{sSpin}, 1
    s_cbranch_scc1 L_f1w
    s_cbranch_vccnz L_f1l
    L_f1w:
    s_barrier
    """)
    mark(5)
    if not EARLY:
      for s in range(2):
        a(f"buffer_load_dwordx4 {vr(Q0[s],4)}, v{vK[0]}, s[12:15], 0 offen offset:{1280*s} {SC}")
        a(f"buffer_load_dword v{Q1[s]}, v{vK1[0]}, s[12:15], 0 offen offset:{1280*s+1024} {SC}")
    a(f"s_lshl_b32 s{sOff}, s{sW}, 10")
    dma = f"buffer_load_dwordx4 v{vD}, s[8:11], s{sOff} offen {SC} lds"
    kd = f"s_mov_b32 m0, s{sOff}\ns_nop 0\n{dma}\ns_add_u32 s{sOff}, s{sOff}, 8192"
    for k in range(1 if EARLY else 4): a(kd)
    if EARLY:
      for s in range(2):
        a(f"buffer_load_dwordx4 {vr(Q0[s],4)}, v{vK[0]}, s[12:15], 0 offen offset:{1280*s} {SC}")
        a(f"buffer_load_dword v{Q1[s]}, v{vK1[0]}, s[12:15], 0 offen offset:{1280*s+1024} {SC}")
      a(kd)
    def qk1(s, Tt): p = Tt % 2; return f"v_mfma_f32_32x32x16_bf16 {vr(S[s][p],16)}, {vr(K0[p],4)}, {vr(Q0[s],4)}, 0"
    def qk2(s, Tt): p = Tt % 2; return f"v_mfma_f32_32x32x8_bf16 {vr(S[s][p],16)}, {vr(K1[p],2)}, {vr(Q1[s],2)}, {vr(S[s][p],16)}"
    def pv(s, Tt, h): p = Tt % 2; return f"v_smfmac_f32_32x32x32_bf16 {vr(O[s],16)}, {vr(V[p][h],4)}, {vr(S[s][p]+8*h,8)}, v{vIdx}"
    def rowmax(first):
        for s in range(2):
            x = S[s][0]
            if first:
                a(f"v_max3_f32 v{vM[s]}, v{x}, v{x+1}, v{x+2}")
                for r in range(3, 15, 2): a(f"v_max3_f32 v{vM[s]}, v{x+r}, v{x+r+1}, v{vM[s]}")
                a(f"v_max_f32 v{vM[s]}, v{x+15}, v{vM[s]}")
            else:
                for r in range(0, 16, 2): a(f"v_max3_f32 v{vM[s]}, v{x+r}, v{x+r+1}, v{vM[s]}")
    def crossmax():
        a(f"""
        v_mov_b32 v{T[0]}, v{vM[0]}
        v_mov_b32 v{T[1]}, v{vM[1]}
        s_nop 1
        v_permlane32_swap_b32 v{T[0]}, v{vM[0]}
        v_permlane32_swap_b32 v{T[1]}, v{vM[1]}
        s_nop 1
        v_max_f32 v{vM[0]}, v{vM[0]}, v{T[0]}
        v_max_f32 v{vM[1]}, v{vM[1]}, v{T[1]}
        """)
    a(f"s_waitcnt vmcnt({1 if EARLY else 3})\ns_barrier")
    mark(6)
    a(f"""
    ds_read_b128 {vr(K0[0],4)}, v{vK[0]}
    ds_read_b32 v{K1[0]}, v{vK1[0]} offset:1024
    ds_read_b128 {vr(K0[1],4)}, v{vK[0]} offset:{TILE}
    ds_read_b32 v{K1[1]}, v{vK1[0]} offset:{TILE+1024}
    ds_read_b128 {vr(V[0][0],4)}, v{vV[0]} offset:1280
    ds_read_b128 {vr(V[0][1],4)}, v{vV[0]} offset:{1280+672}
    s_waitcnt lgkmcnt(4)
    {qk1(0,0)}
    {qk2(0,0)}
    {qk1(1,0)}
    {qk2(1,0)}
    v_cmp_gt_u32 vcc, 32, v{vL}
    {kd + chr(10) + kd + chr(10) + "s_nop 0" if EARLY else "s_nop 8"}
    """)
    rowmax(True)
    crossmax()
    for s in range(2):
        a(f"""
        v_sub_f32 v{T[2]}, 0, v{vM[s]}
        v_and_b32 v{T[3]}, 0xffff0000, v{T[2]}
        v_sub_f32 v{T[4]}, v{T[2]}, v{T[3]}
        v_and_b32 v{T[4]}, 0xffff0000, v{T[4]}
        v_cndmask_b32 v{T[5]}, v{T[4]}, v{T[3]}, vcc
        v_lshrrev_b32 v{Q1[s]+1}, 16, v{T[5]}
        v_add_f32 v{vP+2*s}, v{T[3]}, v{T[4]}
        v_add_f32 v{vP+2*s+1}, v{T[3]}, v{T[4]}
        """)
    for s in range(2):
        for r in range(0, 16, 2): a(f"v_pk_add_f32 {vr(S[s][0]+r,2)}, {vr(S[s][0]+r,2)}, {vr(vP+2*s,2)}")
    a(f"""
    s_mov_b32 s{sC}, 0
    s_setprio 1
    s_waitcnt vmcnt(2) lgkmcnt(0)
    s_barrier
    """)
    mark(7)
    def body(first):
        for t in range(16):
            Tt = 16 + t
            def ad(regs, tl, o):
                return f"v{regs[1]} offset:{(tl-12)*TILE+o}" if 12 <= tl < 16 else f"v{regs[0]} offset:{tl*TILE+o}"
            for s in range(2):
                X = S[s][Tt % 2]
                e = lambda i: a(f"v_exp_f32 v{X+i}, v{X+i}")
                e(0); e(1)
                if s == 0:
                    a(pv(1, Tt - 1, 1))
                    if first and t < 8: a(f"s_mov_b32 m0, s{sOff}")
                    a(f"ds_read_b128 {vr(V[(Tt+1)%2][0],4)}, {ad(vV,t+1,1280)}")
                else:
                    a(pv(0, Tt, 1))
                    if first and t < 8: a(f"s_add_u32 m0, s{sOff}, 8192")
                    if stamp and "as" in DBG and t % 4 == 0: a("s_memtime s[88:89]")
                    a(f"ds_read_b128 {vr(V[(Tt+1)%2][1],4)}, {ad(vV,t+1,1952)}")
                e(2); e(3); e(4); e(5)
                a(qk1(s, Tt + 1))
                if s == 0: a(f"ds_read_b128 {vr(K0[Tt%2],4)}, {ad(vK,t+2,0)}")
                elif first and t < 8: a(dma.replace(f"s{sOff}", f"s{sT3}"))
                elif not first and t == 15: a(f"s_add_u32 s{sC}, s{sC}, 1")
                e(6); e(7); e(8); e(9)
                a(pv(s, Tt, 0))
                if s == 0:
                    a("s_waitcnt lgkmcnt(2)")
                    a(f"ds_read_b32 v{K1[Tt%2]}, {ad(vK1,t+2,1024)}")
                else:
                    if first and t < 8: a(f"s_add_u32 s{sOff}, s{sOff}, 16384")
                    if stamp and "as" in DBG and t % 4 == 0:
                        a(f"s_waitcnt lgkmcnt(0)\ns_sub_u32 s88, s88, s48\ns_mov_b32 m0, s63\ns_add_u32 s63, s63, 1\nv_writelane_b32 v255, s88, m0")
                    a("s_waitcnt lgkmcnt(1)")
                    if not first and t == BT1:
                        a(f"s_cmp_eq_u32 s{sC}, 1\ns_cbranch_scc1 L_bal1\nL_bal1r:")
                    if not first and t == BT:
                        a(f"s_cmp_eq_u32 s{sC}, 3\ns_cbranch_scc1 L_bal\nL_balr:")
                e(10); e(11); e(12); e(13)
                a(qk2(s, Tt + 1))
                if first and t < 8 and s == 0: a(dma + f"\ns_add_u32 s{sT3}, s{sOff}, 8192")
                e(14); e(15)
            if first and t in (3, 7):
                a("s_waitcnt vmcnt(8)\ns_barrier")
    def bump():
        for r in (vK, vK1, vV): a(f"v_add_u32 v{r[0]}, {4*GROUP}, v{r[0]}")
        a(f"""
        s_cmp_eq_u32 s{sC}, 3
        s_mov_b32 s{sT0}, {4*GROUP}
        s_cmov_b32 s{sT0}, {(4*GROUP - 15*GROUP) & 0xffffffff}
        """)
        for r in (vK, vK1, vV): a(f"v_add_u32 v{r[1]}, s{sT0}, v{r[1]}")
    a.raw(".p2align 6")
    body(True)
    a.c("group 15 -> slot 0 (all waves are past group 0)")
    a(f"""
    s_lshl_b32 s{sT0}, s{sW}, 11
    s_min_u32 s{sT1}, s{sT0}, {GROUP-1024}
    s_mov_b32 m0, s{sT1}
    s_add_u32 s{sOff}, s{sT1}, {15*GROUP}
    {dma}
    s_add_u32 s{sT0}, s{sT0}, 1024
    s_min_u32 s{sT1}, s{sT0}, {GROUP-1024}
    s_mov_b32 m0, s{sT1}
    s_add_u32 s{sOff}, s{sT1}, {15*GROUP}
    {dma}
    s_mov_b32 s{sC}, 1
    """)
    bump()
    a.raw(".p2align 6")
    a.label("L_loop")
    body(False)
    a(f"""
    s_cmp_eq_u32 s{sC}, 4
    s_cbranch_scc1 L_adone
    """)
    bump()
    a(f"""
    s_cmp_lg_u32 s{sC}, 2
    s_cbranch_scc1 L_loop
    s_waitcnt vmcnt(0)
    s_barrier
    s_setprio 1
    s_cmp_eq_u32 s{sHi}, 0
    s_cbranch_scc1 L_wpf
    s_setprio 2
    s_branch L_loop
    L_adone:
    s_setprio 3
    s_waitcnt lgkmcnt(0)
    {pv(1, 31, 1)}
    """)
    mark(8)
    lo, hi = 0x2b800000, 0x5d800000
    if force_fallback: lo = 0x7f000000
    lb = lambda s: f"v_mov_b32 v{O[s]+13}, v{O[s]+12}\ns_nop 1\nv_permlane32_swap_b32 v{O[s]+12}, v{O[s]+13}\ns_nop 1"
    for s in range(2):
        a(lb(s))
        a(f"v_mov_b32 v{T[s]}, v{O[s]+12}")
        for r in range(12): a(f"v_fma_f32 v{T[s]}, v{O[s]+r}, 0, v{T[s]}")
    a(f"""
    v_cmp_le_f32 vcc, 0x{lo:x}, v{T[0]}
    s_mov_b64 s[{sM0}:{sM1}], vcc
    v_cmp_le_f32 vcc, 0x{lo:x}, v{T[1]}
    s_and_b64 s[{sM0}:{sM1}], s[{sM0}:{sM1}], vcc
    v_cmp_ge_f32 vcc, 0x{hi:x}, v{T[0]}
    s_and_b64 s[{sM0}:{sM1}], s[{sM0}:{sM1}], vcc
    v_cmp_ge_f32 vcc, 0x{hi:x}, v{T[1]}
    s_and_b64 s[{sM0}:{sM1}], s[{sM0}:{sM1}], vcc
    s_cmp_eq_u64 s[{sM0}:{sM1}], -1
    s_cbranch_scc0 L_fallback
    L_store:
    v_rcp_f32 v{vP}, v{O[0]+12}
    v_rcp_f32 v{vP+2}, v{O[1]+12}
    v_mov_b32 v{vP+1}, v{vP}
    v_mov_b32 v{vP+3}, v{vP+2}
    """)
    for s in range(2):
        for r in range(0, 12, 2): a(f"v_pk_mul_f32 {vr(O[s]+r,2)}, {vr(O[s]+r,2)}, {vr(vP+2*s,2)}")
        for r in range(6): a(f"v_cvt_pk_bf16_f32 v{S[s][0]+r}, v{O[s]+2*r}, v{O[s]+2*r+1}")
        a(f"buffer_store_dwordx4 {vr(S[s][0],4)}, v{vOst}, s[16:19], 0 offen offset:{512*s} {SS}")
        a(f"buffer_store_dwordx2 {vr(S[s][0]+4,2)}, v{vOst2}, s[16:19], 0 offen offset:{256*s} {SS}")

    sU = [3, 4, 5, 6, 7, 12, 13, 14]
    def blk(pat):
        for q in range(5):
            a(f"s_add_u32 m0, s{sT0}, {WL + q*1024}\ns_nop 0\nbuffer_load_dwordx4 v{OW[pat][q]}, s[92:95], s{sT1} offen lds")
    a(f"""
    s_mul_i32 s{sT0}, s{sBo}, {O_BR}
    s_add_u32 s{sT0}, s{sT0}, {O_OFF}
    """)
    srd(8, kWs, f"s{sT0}", O_BR)
    a(f"""
    s_mov_b32 s{sDone}, 0
    s_mov_b32 s{sSpin}, {SPIN}
    s_barrier
    s_cmp_ge_u32 s{sW}, 6
    s_cbranch_scc1 L_ow4
    s_cmp_ge_u32 s{sW}, 4
    s_cbranch_scc1 L_ow2
    s_mul_i32 s{sT0}, s{sW}, 5120
    s_add_u32 s{sT0}, s{sT0}, {16*5120}
    s_mul_i32 s{sT1}, s{sW}, {160*1280}
    """)
    blk(1)
    a(f"""
    s_branch L_ow3
    L_ow2:
    s_add_u32 s{sT2}, s{sW}, 10
    s_mul_i32 s{sT0}, s{sT2}, 5120
    s_mul_i32 s{sT1}, s{sT2}, {40*1280}
    """)
    blk(0)
    a(f"""
    L_ow3:
    s_waitcnt vmcnt(5)
    s_branch L_ow5
    L_ow4:
    s_waitcnt vmcnt(0)
    L_ow5:
    s_barrier
    s_cmp_lg_u32 s{sW}, 7
    s_cbranch_scc1 L_nf3
    """)
    put_flag(sF3, 11)
    mark(9)
    a(f"""
    L_tp:
    global_load_dwordx2 {vr(vF,2)}, v{oF}, s[{kWs}:{kWs+1}] sc1
    s_waitcnt vmcnt(0)
    v_cmp_eq_u64 vcc, s[{sN}:{sN+1}], {vr(vF,2)}
    s_sub_u32 s{sSpin}, s{sSpin}, 1
    s_cselect_b32 vcc_lo, -1, vcc_lo
    s_lshr_b32 s{sT0}, vcc_lo, 1
    s_and_b32 s{sT0}, s{sT0}, vcc_lo
    s_lshr_b32 s{sT1}, s{sT0}, 2
    s_and_b32 s{sT0}, s{sT0}, s{sT1}
    s_and_b32 s{sRdy}, s{sT0}, 0x11111111
    s_bcnt1_i32_b32 s{sT0}, s{sRdy}
    s_cmp_lt_u32 s{sT0}, {MINR}
    s_cbranch_scc1 L_tp
    v_mov_b32 v{T[0]}, {LDS - 32}
    v_mov_b32 v{T[1]}, s{sRdy}
    ds_write_b32 v{T[0]}, v{T[1]}
    L_nf3:
    s_mul_i32 s{sT0}, s{sTo}, 2560
    s_mul_i32 s{sT1}, s{sBo}, 1280
    s_add_u32 s{sT0}, s{sT0}, s{sT1}
    s_mul_i32 s{sT1}, s{sNt}, 160
    s_add_u32 s{sT0}, s{sT0}, s{sT1}
    s_sub_u32 s{sT1}, {2048*2560}, s{sT0}
    """)
    srd(16, kOut, f"s{sT0}", f"s{sT1}")
    a(f"""
    v_mov_b32 v{T[0]}, {LDS - 32}
    s_waitcnt vmcnt(0) lgkmcnt(0)
    s_barrier
    ds_read_b32 v{T[1]}, v{T[0]}
    s_waitcnt lgkmcnt(0)
    v_readfirstlane_b32 s{sRdy}, v{T[1]}
    s_nop 3
    """)
    def issue(p):
        a(f"""
        s_andn2_b32 s{sT0}, s{sRdy}, s{sDone}
        s_cbranch_scc1 L_is{p}
        L_ip{p}:
        global_load_dwordx2 {vr(vF,2)}, v{oF}, s[{kWs}:{kWs+1}] sc1
        s_waitcnt vmcnt(0)
        v_cmp_eq_u64 vcc, s[{sN}:{sN+1}], {vr(vF,2)}
        s_sub_u32 s{sSpin}, s{sSpin}, 1
        s_cselect_b32 vcc_lo, -1, vcc_lo
        s_lshr_b32 s{sT0}, vcc_lo, 1
        s_and_b32 s{sT0}, s{sT0}, vcc_lo
        s_lshr_b32 s{sT1}, s{sT0}, 2
        s_and_b32 s{sT0}, s{sT0}, s{sT1}
        s_and_b32 s{sRdy}, s{sT0}, 0x11111111
        s_andn2_b32 s{sT0}, s{sRdy}, s{sDone}
        s_cbranch_scc0 L_ip{p}
        L_is{p}:
        s_ff1_i32_b32 s{sU[p]}, s{sT0}
        s_bitset1_b32 s{sDone}, s{sU[p]}
        s_lshl_b32 s{sT0}, s{sU[p]}, 16
        s_add_u32 s{sT1}, s{sT0}, {4*32768}
        s_lshl_b32 s{sT2}, s{sU[p]}, 14
        s_add_u32 s{sT2}, s{sT2}, {O_TAIL}
        {"" if "nol" in DBG else f"buffer_load_dwordx2 {vr(OT[p],2)}, v{oT}, s[8:11], s{sT2} offen {SC}"}
        {"" if "nol" in DBG else f"buffer_load_dwordx4 {vr(OF[2*p],4)}, v{oM}, s[8:11], s{sT0} offen {SC}"}
        buffer_load_dwordx4 {vr(OF[2*p+1],4)}, v{oM}, s[8:11], s{sT1} offen {SC}
        """)
    def wreads(p):
        b = p % 2
        a(f"""
        s_mul_i32 s{sT0}, s{sU[p]}, 2560
        s_mul_i32 s{sT1}, s{sU[p]}, 640
        s_add_u32 s{sT1}, s{sT1}, {16*5120}
        v_add_u32 v{oW[0]}, s{sT0}, v{oW[1]}
        v_add_u32 v{oW[2]}, s{sT1}, v{oW[1]}
        """)
        r = [f"ds_read_b64_tr_b16 {vr(WT[b][t],2)}, v{oW[2]} offset:{32*t}" for t in range(5)]
        r += [f"ds_read_b64_tr_b16 {vr(WB[b][h][t]+2*hr,2)}, v{oW[0]} offset:{h*5120 + hr*2560 + 32*t}" for h in range(2) for t in range(5) for hr in range(2)]
        if "now" in DBG: r = r[:5]
        return r
    if "noo" in DBG: a("s_mov_b32 s10, 0")
    mark(10)
    for p in range(LA): issue(p)
    for i, x in enumerate(wreads(0)):
        if i in (12, 20): a("s_waitcnt lgkmcnt(4)")
        a(x)
    for p in range(8):
        b = p % 2
        lstamp("os")
        a(f"s_waitcnt vmcnt({3*min(LA-1, 7-p)}) lgkmcnt(0)")
        nx = wreads(p + 1) if p < 7 else []
        mm = [f"v_mfma_f32_16x16x32_bf16 {vr(OC[t],4)}, {vr(WT4[t],4)}, {vr(OT[p-1],4)}, {vr(OC[t],4)}" for t in range(5)] if b else []
        mm += [f"v_mfma_f32_16x16x32_bf16 {vr(OC[t],4)}, {vr(WB[b][h][t],4)}, {vr(OF[2*p+h],4)}, {vr(OC[t],4) if (p, h) != (0, 0) else 0}" for h in range(2) for t in range(5)]
        nx = nx[5:] + nx[:5]
        k = 2 if b else 3
        for i, m in enumerate(mm):
            a(m)
            if nx and i in ((6, 10) if b else (4, 7)): a("s_waitcnt lgkmcnt(3)")
            for _ in range(k):
                if nx: a(nx.pop(0))
        assert not nx
        if p + LA < 8: issue(p + LA)
    a("s_nop 3")
    mark(11)
    for t in range(5):
        p = OF[0] + 2 * t
        a(f"v_cvt_pk_bf16_f32 v{p}, v{OC[t]}, v{OC[t]+1}")
        a(f"v_cvt_pk_bf16_f32 v{p+1}, v{OC[t]+2}, v{OC[t]+3}")
        if t % 2 == 1:
            a(f"s_nop 1\nv_permlane16_swap_b32 v{p-2}, v{p}\nv_permlane16_swap_b32 v{p-1}, v{p+1}")
            a(f"buffer_store_dwordx4 {vr(p-2,4)}, v{oS[0]}, s[16:19], 0 offen offset:{64*(t//2)} {OS}")
    a(f"buffer_store_dwordx2 {vr(OF[0]+8,2)}, v{oS[1]}, s[16:19], 0 offen offset:128 {OS}")
    if WB2 is not None:
        a(f"s_cmp_lg_u32 s{sW}, {WB2}\ns_cbranch_scc1 L_end\ns_waitcnt vmcnt(0)\nbuffer_wbl2 sc1")
    mark(12)
    stamp_end()
    a.label("L_end")
    a("s_endpgm")
    def blk(pat):
        for q in range(5):
            a(f"s_add_u32 m0, s{sT0}, {WL + q*1024}\ns_nop 0\nbuffer_load_dwordx4 v{OW[pat][q]}, s[92:95], s{sT1} offen lds")
    a(f"""
    L_wpf:
    s_mov_b32 s{sT2}, s{sW}
    L_wpl:
    s_mul_i32 s{sT0}, s{sT2}, 5120
    s_mul_i32 s{sT1}, s{sT2}, {40*1280}
    """)
    blk(0)
    a(f"""
    s_add_u32 s{sT2}, s{sT2}, 4
    s_cmp_lt_u32 s{sT2}, 14
    s_cbranch_scc1 L_wpl
    s_mov_b32 s{sT0}, {LDS}
    s_mul_i32 s{sT1}, s{sW}, {160*1280}
    """)
    blk(1)
    a(f"""
    s_cmp_ge_u32 s{sT2}, 16
    s_cbranch_scc1 L_loop
    s_mul_i32 s{sT1}, s{sT2}, {40*1280}
    """)
    blk(0)
    a("s_branch L_loop")
    a("L_bal1:\ns_setprio 0\ns_branch L_bal1r")
    a.label("L_bal")
    a("s_setprio 0\ns_branch L_balr")

    a.label("L_fallback")
    for r in (vK, vK1, vV): a(f"v_subrev_u32 v{r[0]}, {12*GROUP}, v{r[0]}")
    a(f"""
    v_mov_b32 v{Q1[0]+1}, 0
    v_mov_b32 v{Q1[1]+1}, 0
    v_mov_b32 v{vM[0]}, 0xff800000
    v_mov_b32 v{vM[1]}, 0xff800000
    s_mov_b32 s{sGo}, 0
    L_fb1:
    buffer_load_dwordx4 {vr(K0[0],4)}, v{vK[0]}, s[8:11], s{sGo} offen {SC}
    buffer_load_dword v{K1[0]}, v{vK1[0]}, s[8:11], s{sGo} offen offset:1024 {SC}
    s_waitcnt vmcnt(0)
    {qk1(0,0)}
    {qk2(0,0)}
    {qk1(1,0)}
    {qk2(1,0)}
    s_add_u32 s{sGo}, s{sGo}, {TILE}
    s_nop 8
    """)
    rowmax(False)
    a(f"s_cmp_lt_u32 s{sGo}, {KV_SET}\ns_cbranch_scc1 L_fb1")
    crossmax()
    for s in range(2):
        for r in range(16): a(f"v_mov_b32 v{O[s]+r}, 0")
    a(f"""
    s_mov_b32 s{sGo}, 0
    L_fb2:
    buffer_load_dwordx4 {vr(K0[0],4)}, v{vK[0]}, s[8:11], s{sGo} offen {SC}
    buffer_load_dword v{K1[0]}, v{vK1[0]}, s[8:11], s{sGo} offen offset:1024 {SC}
    buffer_load_dwordx4 {vr(V[0][0],4)}, v{vV[0]}, s[8:11], s{sGo} offen offset:1280 {SC}
    buffer_load_dwordx4 {vr(V[0][1],4)}, v{vV[0]}, s[8:11], s{sGo} offen offset:{1280+672} {SC}
    s_waitcnt vmcnt(0)
    {qk1(0,0)}
    {qk2(0,0)}
    {qk1(1,0)}
    {qk2(1,0)}
    s_add_u32 s{sGo}, s{sGo}, {TILE}
    s_nop 8
    """)
    for s in range(2):
        for r in range(16): a(f"v_sub_f32 v{S[s][0]+r}, v{S[s][0]+r}, v{vM[s]}")
        for r in range(16): a(f"v_exp_f32 v{S[s][0]+r}, v{S[s][0]+r}")
    a(f"""
    s_nop 1
    {pv(0,0,0)}
    {pv(0,0,1)}
    {pv(1,0,0)}
    {pv(1,0,1)}
    s_cmp_lt_u32 s{sGo}, {KV_SET}
    s_cbranch_scc1 L_fb2
    s_nop 15
    {lb(0)}
    {lb(1)}
    s_branch L_store
    L_codeend:
    """)
    print("nv per phase", nvmax)
    kernel_desc(a, name, 256, 102)

if __name__ == "__main__":
    import sys
    NAME = "concat_heads__mha_block__grouped_kv_mqa__prompt"
    ref = open(f"cdna_kernels/{NAME}.s.ref").read().split("\n")
    hdr = [l for l in ref if l.startswith(";") and "@launch" not in l]
    opts = eval("dict(" + (sys.argv[2] if len(sys.argv) > 2 else "") + ")")
    a = Asm()
    a.raw('.amdgcn_target "amdgcn-amd-amdhsa--gfx950"')
    gen(a, NAME + "_kernel", **opts)
    doc = """; Generated by a hand-written Python generator. One workgroup per CU, three phases in one launch:
;     first key tile; after the loop the row sum and the accumulators are range-checked and a wave whose check fails
; Hand-offs between workgroups: write-through stores, drained, then flags tagged with a per-launch nonce passed via d_debug.
"""
    out = "\n".join(hdr) + f"\n; @launch grid=(256,1,1) block=(512,1,1) lds={LDS}\n" + doc + a.text()
    dst = sys.argv[1] if len(sys.argv) > 1 else f"cdna_kernels/{NAME}.s"
    open(dst, "w").write(out)
```
